```python
import torch

def _softmax(x, axis=-1):
    return torch.softmax(x, dim=axis)
def _gelu(x):
    return torch.nn.functional.gelu(x, approximate="tanh")
def _silu(x):
    return torch.nn.functional.silu(x)
def _sigmoid(x):
    return torch.sigmoid(x)
def _layernorm(x, axis=-1, eps=1e-5):
    m = x.mean(dim=axis, keepdim=True)
    v = x.var(dim=axis, keepdim=True, unbiased=False)
    return (x - m) / torch.sqrt(v + eps)
def _scatter_add(tgt, idx, src, axis=0):
    return tgt.clone().index_add_(axis, idx, src)
def _segment_sum(src, seg, n):
    out = torch.zeros((n,) + src.shape[1:], dtype=src.dtype)
    return out.index_add_(0, seg, src)
def _pad(x, pw):
    flat = tuple(v for pair in reversed(pw) for v in pair)
    return torch.nn.functional.pad(x, flat)

kernel_name = 'gated_mix__mha_block__glu_gated_reglu__prompt'

def setup_inputs():

    _w = (lambda a: (lambda t: t.to(torch.bfloat16) if t.is_floating_point() else t)(torch.as_tensor(a)))
    def _A_setup():
        B, S, D, H = 1, 2048, 448, 16
        return {
            "x": _w((lambda *s: torch.randn(*s, dtype=torch.bfloat16) * 0.05)(B, S, D)),
            "wqkv": _w((lambda *s: torch.randn(*s, dtype=torch.bfloat16) * 0.8)(D, 3 * D)),
            "wo": _w((lambda *s: torch.randn(*s, dtype=torch.bfloat16) * 0.05)(D, D)),
        }
    _A_in = _A_setup()

    def _B_setup():
        B, S, D, F = 1, 2048, 448, 1792
        return {
            "x": _w((lambda *s: torch.randn(*s, dtype=torch.bfloat16) * 0.05)(B, S, D)),
            "W_gate": _w((lambda *s: torch.randn(*s, dtype=torch.bfloat16) * 1.6)(D, F) * (2.0 / D) ** 0.5),
            "W_up": _w((lambda *s: torch.randn(*s, dtype=torch.bfloat16) * 1.6)(D, F) * (2.0 / D) ** 0.5),
            "W_down": _w((lambda *s: torch.randn(*s, dtype=torch.bfloat16) * 1.6)(F, D) * (1.0 / F) ** 0.5),
        }
    _B_in = _B_setup()

    return {
        "A_x": _A_in["x"],
        "A_wqkv": _A_in["wqkv"],
        "A_wo": _A_in["wo"],
        "B_x": _B_in["x"],
        "B_W_gate": _B_in["W_gate"],
        "B_W_up": _B_in["W_up"],
        "B_W_down": _B_in["W_down"],
        "gate_w": _w((lambda *s: torch.randn(*s, dtype=torch.bfloat16) * 0.05)(448) * 16.0),
    }

def reference(A_x, A_wqkv, A_wo, B_x, B_W_gate, B_W_up, B_W_down, gate_w):
    def _A_ref(x, wqkv, wo):
        B, S, D = x.shape
        H = 16
        Dh = D // H
        qkv = (lambda x, *d: x.permute(*d))((x @ wqkv).reshape(B, S, 3, H, Dh), 2, 0, 3, 1, 4)
        q, k, v = qkv[0], qkv[1], qkv[2]
        scores = torch.einsum("bhqd,bhkd->bhqk", q, k) * (Dh ** -0.5)
        p = _softmax(scores, axis=-1)
        o = torch.einsum("bhqk,bhkd->bhqd", p, v)
        return (lambda x, *d: x.permute(*d))(o, 0, 2, 1, 3).reshape(B, S, D) @ wo

    def _B_ref(x, W_gate, W_up, W_down):
        gate = torch.einsum("bsd,df->bsf", x, W_gate)
        up = torch.einsum("bsd,df->bsf", x, W_up)
        gate = gate * (lambda x, dt: x.to(dt))(gate > 0, gate.dtype)
        h = gate * up
        return torch.einsum("bsf,fd->bsd", h, W_down)

    x = A_x
    g = _sigmoid((x * gate_w).sum(-1, keepdims=True))
    a = _A_ref(x, A_wqkv, A_wo)
    b = _B_ref(x, B_W_gate, B_W_up, B_W_down)
    return g * a + (1 - g) * b
```

```python
import re

class Asm:
    def __init__(self):
        self.lines = []
    def e(self, s, *more):
        self.lines.append("    " + s)
        for m in more:
            self.lines.append("    " + m)
    def label(self, s):
        self.lines.append(s + ":")
    def raw(self, s):
        self.lines.append(s)
    def c(self, s):
        self.lines.append("    ; " + s)
    def text(self):
        return "\n".join(self.lines) + "\n"

def vr(a, n=1):
    return f"v{a}" if n == 1 else f"v[{a}:{a+n-1}]"
def ar(a, n=1):
    return f"a{a}" if n == 1 else f"a[{a}:{a+n-1}]"
def sr(a, n=1):
    return f"s{a}" if n == 1 else f"s[{a}:{a+n-1}]"

_REG = re.compile(r"^(-|abs\()?([vsa])(\d+)\)?$")
_RNG = re.compile(r"^(-|abs\()?([vsa])\[(\d+):(\d+)\]\)?$")
def regs_of(op):
    op = op.strip()
    if op.startswith("|") and op.endswith("|"):
        op = op[1:-1]
    m = _REG.match(op)
    if m:
        return {(m.group(2), int(m.group(3)))}
    m = _RNG.match(op)
    if m:
        return {(m.group(2), i) for i in range(int(m.group(3)), int(m.group(4)) + 1)}
    if op in ("vcc", "vcc_lo", "vcc_hi"):
        return {("x", "vcc")}
    if op in ("exec", "exec_lo", "exec_hi"):
        return {("x", "exec")}
    if op == "m0":
        return {("x", "m0")}
    return set()

TRANS = ("v_exp_", "v_log_", "v_rcp_", "v_rsq_", "v_sqrt_", "v_sin_", "v_cos_")

class Ins:
    def __init__(self, line):
        s = line.split(";")[0].strip()
        self.text = s
        parts = s.split(None, 1)
        self.mn = parts[0]
        rest = parts[1] if len(parts) > 1 else ""
        ops = [o.strip() for o in rest.split(",")] if rest else []
        self.mods = ""
        if ops:
            toks = ops[-1].split()
            ops[-1] = toks[0]
            self.mods = " ".join(toks[1:])
        self.ops = ops
        mn = self.mn
        self.is_mfma = mn.startswith("v_mfma")
        self.is_valu = mn.startswith("v_") and not self.is_mfma
        self.is_trans = mn.startswith(TRANS)
        self.is_vmem = mn.startswith(("buffer_", "global_", "flat_"))
        self.is_ds = mn.startswith("ds_")
        self.is_salu = mn.startswith("s_")
        self.ws = 1
        if mn == "s_nop":
            self.ws = int(ops[0], 0) + 1
        R = [regs_of(o) for o in ops]
        self.dst = set(); self.src = set(); self.srcC = set(); self.srcAB = set(); self.data = set()
        self.passes = 0
        self.lds_dma = False
        if self.is_mfma:
            self.dst = R[0]; self.srcAB = R[1] | R[2]; self.srcC = R[3]; self.src = self.srcAB | self.srcC
            self.passes = 8 if "32x32" in mn else 4
        elif self.is_valu:
            if mn.startswith("v_cmp"):
                self.dst = R[0]; self.src = set().union(*R[1:])
            elif mn.startswith(("v_add_co", "v_sub_co", "v_addc_co", "v_subb_co")):
                self.dst = R[0] | R[1]; self.src = set().union(*R[2:])
            elif mn.startswith("v_permlane") and "swap" in mn:
                self.dst = R[0] | R[1]; self.src = R[0] | R[1]
            elif mn == "v_nop":
                pass
            else:
                self.dst = R[0]; self.src = set().union(*R[1:]) if len(R) > 1 else set()
                if mn.startswith(("v_fmac", "v_pk_fmac", "v_dot2c")) or "UNUSED_PRESERVE" in s or ("op_sel:" in s and not mn.startswith("v_pk_")):
                    self.src |= R[0]
                if mn.startswith("v_cndmask") and len(ops) == 3:
                    self.src |= {("x", "vcc")}
        elif self.is_vmem:
            words = s.split()
            self.lds_dma = "lds" in words or "_lds_" in mn
            if "wbl2" in mn or "inv" in mn:
                pass
            elif "load" in mn and not self.lds_dma:
                self.dst = R[0]; self.src = set().union(*R[1:])
            elif "load" in mn:
                self.src = set().union(*R) | {("x", "m0")}
            elif "store" in mn:
                self.src = set().union(*R)
                self.data = R[0] if mn.startswith("buffer_") else R[1]
            elif "atomic" in mn:
                self.src = set().union(*R)
                if "sc0" in words:
                    self.dst = R[0]
        elif self.is_ds:
            if mn.startswith(("ds_read", "ds_bpermute", "ds_permute", "ds_swizzle")) or "_rtn" in mn:
                self.dst = R[0]; self.src = set().union(*R[1:])
            else:
                self.src = set().union(*R)
        elif self.is_salu:
            if mn.startswith(("s_cmp", "s_cbranch", "s_branch", "s_waitcnt", "s_barrier", "s_nop", "s_endpgm", "s_setprio", "s_sleep")):
                self.src = set().union(*R) if R else set()
            else:
                self.dst = R[0] if R else set()
                self.src = set().union(*R[1:]) if len(R) > 1 else set()
                if "saveexec" in mn:
                    self.dst |= {("x", "exec")}
        self.wide_store = self.is_vmem and "store" in mn and ("x3" in mn or "x4" in mn)

def vonly(S):
    return {r for r in S if r[0] in "va"}
def sonly(S):
    return {r for r in S if r[0] == "s" or r == ("x", "vcc")}

def need(p, c):
    n = 0
    if p.is_valu:
        if c.is_mfma and vonly(p.dst) & c.src:
            n = max(n, 2)
        if p.is_trans and c.is_valu and not c.is_trans and vonly(p.dst) & c.src:
            n = max(n, 1)
        if p.is_trans and c.is_trans and vonly(p.dst) & c.src:
            n = max(n, 1)
        sd = sonly(p.dst)
        if sd:
            if c.is_vmem and sd & c.src:
                n = max(n, 5)
            if c.is_valu and sd & c.src:
                n = max(n, 4 if c.mn.startswith(("v_readlane", "v_writelane")) else 2)
            if c.is_salu and sd & c.src:
                n = max(n, 1)
        if vonly(p.dst) & c.src:
            if c.mn.startswith(("v_readfirstlane", "v_readlane")):
                n = max(n, 1)
            if c.mn.startswith("v_permlane") or "dpp" in c.text or "row_" in c.text or "quad_perm" in c.text:
                n = max(n, 2)
        if ("sdwa" in p.mn or ("op_sel:" in p.text and not p.mn.startswith("v_pk_"))) and c.is_valu and vonly(p.dst) & (c.src | c.dst):
            n = max(n, 1)
    if p.is_mfma:
        big = {8: 12, 4: 8}[p.passes]
        ov = {8: 10, 4: 6}[p.passes]
        war = {8: 7, 4: 3}[p.passes]
        if c.is_mfma:
            if p.dst & c.srcAB:
                n = max(n, big)
            if p.dst & c.srcC and not (p.dst == c.srcC and p.passes == c.passes):
                n = max(n, ov)
            if p.dst & c.dst and not (p.dst & c.srcC):
                n = max(n, big)
        elif c.is_valu:
            if p.dst & (c.src | c.dst):
                n = max(n, big)
            if p.srcC & c.dst:
                n = max(n, war)
        elif c.is_vmem or c.is_ds:
            if p.dst & (c.src | c.dst):
                n = max(n, big)
    if p.is_salu and ("x", "m0") in p.dst and (c.lds_dma or "addtid" in c.mn):
        n = max(n, 1)
    if p.wide_store and p.data & c.dst:
        n = max(n, 2 if c.is_valu else 1)
    return n

def is_instr(line):
    s = line.split(";")[0].strip()
    if not s or s.endswith(":") or s.startswith("."):
        return False
    return True

def fix_hazards(lines, verbose=False):
    out = []
    hist = []
    nins = 0
    for line in lines:
        if not is_instr(line):
            out.append(line)
            continue
        c = Ins(line)
        dist = 0
        req = 0
        for p in reversed(hist):
            k = need(p, c) - dist
            if k > req:
                req = k
            dist += p.ws
            if dist > 24:
                break
        while req > 0:
            n = min(req, 16)
            l = f"    s_nop {n-1}"
            out.append(l)
            hist.append(Ins(l))
            req -= n
            nins += 1
        out.append(line)
        hist.append(c)
        if len(hist) > 40:
            hist = hist[-40:]
    return out

def check_loop(lines, head_label, branch_line_idx=None):
    i0 = lines.index(head_label + ":")
    i1 = max(i for i, l in enumerate(lines) if is_instr(l) and l.split(";")[0].split()[-1] == head_label)
    body = [l for l in lines[i0 + 1 : i1 + 1]]
    dbl = body + body
    fixed = fix_hazards(dbl)
    if len(fixed) != len(dbl):
        extra = [(i, l) for i, l in enumerate(fixed)]
        for i, (a, b) in enumerate(zip(fixed, dbl)):
            if a != b:
                raise RuntimeError(f"loop {head_label}: wrap-around hazard near: {dbl[max(0,i-3):i+2]}")
    return True
```

```python
import sys, math, struct
from asmlib import *

NAME = "gated_mix__mha_block__glu_gated_reglu__prompt"
WS_QK, WS_V, WS_HO, WS_G, WS_END = 0, 0x380000, 0x540000, 0xE00000, 0xE20000
HO_TB = 140 * 1024
V_TB = 4 * 448 * 16
QSCALE = (28 ** -0.5) * math.log2(math.e)
def f2u(x): return struct.unpack("<I", struct.pack("<f", x))[0]

S_X, S_WQ, S_WG, S_WU, S_WS, S_WD, S_WO, S_OUT, S_GW, S_KV = 8, 12, 16, 20, 24, 28, 32, 36, 40, 44
MFMA = "v_mfma_f32_32x32x16_bf16"

def srd(a, dst, src, nbytes):
    a.e(f"s_mov_b32 s{dst}, s{src}", f"s_and_b32 s{dst+1}, s{src+1}, 0xffff",
        f"s_mov_b32 s{dst+2}, {nbytes:#x}", f"s_mov_b32 s{dst+3}, 0x20000")

class Lgkm:
    def __init__(self): self.n = 0
    def issue(self): self.n += 1; return self.n
    def wait(self, a, ticket):
        k = self.n - ticket
        a.e(f"s_waitcnt lgkmcnt({min(k,15)})")
class Vm:
    def __init__(self): self.n = 0
    def issue(self): self.n += 1; return self.n
    def wait(self, a, ticket):
        k = self.n - ticket
        assert k <= 63, k
        a.e(f"s_waitcnt vmcnt({k})")

AB = dict(X=16, ACC=128, FR=160, T=192)
V_LANE, V_WQ, V_WF, V_X0, V_X1, V_TR, V_XR, V_XC, V_SQ, V_SV, V_SH, V_T0, V_T1 = 1, 2, 3, 4, 5, 6, 208, 212, 9, 10, 11, 12, 13
S_RB, S_J, S_W, S_W1K, S_T0, S_T1, S_XOFF, S_TB, S_CH, S_W2K = 56, 57, 58, 59, 60, 61, 62, 63, 64, 65
S_COL, S_OB, S_SC = 66, 70, 74
PD = 4
NSLOT = 10
NFR = 8

def ab_prologue(a):
    a.e("s_load_dwordx4 s[76:79], s[0:1], 0", "s_load_dwordx4 s[80:83], s[0:1], 32",
        "s_load_dwordx2 s[84:85], s[0:1], 56", "s_load_dwordx2 s[86:87], s[0:1], 80")
    a.e(f"s_and_b32 s{S_T0}, s2, 7", f"s_lshr_b32 s{S_T1}, s2, 3",
        f"s_and_b32 s{S_RB}, s{S_T0}, 1", f"s_lshl_b32 s{S_RB}, s{S_RB}, 3",
        f"s_and_b32 s{S_J}, s{S_T1}, 7", f"s_add_u32 s{S_RB}, s{S_RB}, s{S_J}",
        f"s_lshr_b32 s{S_J}, s{S_T0}, 1", f"s_lshl_b32 s{S_J}, s{S_J}, 2",
        f"s_lshr_b32 s{S_T1}, s{S_T1}, 3", f"s_add_u32 s{S_J}, s{S_J}, s{S_T1}")
    a.e(f"v_lshrrev_b32 v{V_T0}, 6, v0", f"v_and_b32 v{V_LANE}, 63, v0", f"v_readfirstlane_b32 s{S_W}, v{V_T0}")
    a.e(f"s_lshl_b32 s{S_W1K}, s{S_W}, 10", f"s_lshl_b32 s{S_W2K}, s{S_W}, 11", f"s_lshr_b32 s{S_CH}, s{S_W}, 2",
        f"s_and_b32 s{S_T0}, s{S_W}, 3", f"s_lshl_b32 s{S_TB}, s{S_RB}, 2", f"s_add_u32 s{S_TB}, s{S_TB}, s{S_T0}",
        f"s_mul_i32 s{S_XOFF}, s{S_RB}, {128*896}")
    L = V_LANE
    A, B, C = AB["T"], AB["T"] + 1, AB["T"] + 2
    a.e(f"v_lshrrev_b32 v{A}, 3, v{L}", f"v_and_b32 v{B}, 7, v{L}")
    a.e(f"v_bfe_u32 v{C}, v{L}, 4, 1", f"v_lshlrev_b32 v{C}, 2, v{C}", f"v_xor_b32 v{C}, v{C}, v{B}", f"v_lshlrev_b32 v{C}, 4, v{C}")
    a.e(f"s_lshl_b32 s{S_T0}, s{S_W}, 3", f"v_add_u32 v{V_T0}, s{S_T0}, v{A}")
    a.e(f"v_mul_u32_u24 v{V_WQ}, 2688, v{V_T0}", f"v_add_u32 v{V_WQ}, v{V_WQ}, v{C}")
    a.e(f"v_mul_u32_u24 v{V_WF}, 3584, v{V_T0}", f"v_add_u32 v{V_WF}, v{V_WF}, v{C}")
    a.e(f"v_lshrrev_b32 v{C}, 4, v{L}", f"v_xor_b32 v{C}, v{C}, v{B}")
    a.e(f"s_lshl_b32 s{S_T0}, s{S_W}, 4", f"v_add_u32 v{V_T0}, s{S_T0}, v{A}", f"v_mul_u32_u24 v{V_T0}, 896, v{V_T0}")
    a.e(f"v_lshl_add_u32 v{V_X0}, v{C}, 4, v{V_T0}", f"v_xor_b32 v{C}, 4, v{C}", f"v_lshl_add_u32 v{V_X1}, v{C}, 4, v{V_T0}",
        f"v_add_u32 v{V_X1}, {8*896}, v{V_X1}")
    a.e(f"v_lshrrev_b32 v{A}, 5, v{L}", f"v_bfe_u32 v{B}, v{L}, 2, 2", f"v_lshl_add_u32 v{C}, v{A}, 3, v{B}",
        f"v_lshlrev_b32 v{V_TR}, 7, v{C}", f"v_lshrrev_b32 v{B}, 1, v{B}", f"v_xor_b32 v{B}, s{S_CH}, v{B}",
        f"v_lshl_add_u32 v{V_TR}, v{B}, 6, v{V_TR}", f"v_bfe_u32 v{B}, v{L}, 4, 1", f"v_lshl_add_u32 v{V_TR}, v{B}, 5, v{V_TR}",
        f"v_and_b32 v{B}, 3, v{L}", f"v_lshl_add_u32 v{V_TR}, v{B}, 3, v{V_TR}",
        f"v_add_u32 v{V_TR+1}, 0x10000, v{V_TR}", f"v_add_u32 v{V_TR+2}, 0x20000, v{V_TR}")
    a.e(f"v_and_b32 v{B}, 31, v{L}", f"s_and_b32 s{S_T0}, s{S_W}, 3", f"s_lshl_b32 s{S_T0}, s{S_T0}, 5",
        f"v_add_u32 v{C}, s{S_T0}, v{B}", f"v_lshlrev_b32 v{V_T0}, 7, v{C}", f"v_bfe_u32 v{V_T1}, v{L}, 1, 3",
        f"v_xor_b32 v{V_T1}, v{V_T1}, v{A}")
    for e in range(4):
        a.e(f"v_xor_b32 v{V_XR+e}, {2*e}, v{V_T1}", f"v_lshl_add_u32 v{V_XR+e}, v{V_XR+e}, 4, v{V_T0}")
    a.e(f"s_lshl_b32 s{S_T0}, s{S_TB}, 5", f"v_add_u32 v{C}, s{S_T0}, v{B}", f"v_lshlrev_b32 v{V_SQ}, 3, v{C}",
        f"v_lshl_add_u32 v{V_SQ}, v{A}, 14, v{V_SQ}")
    a.e(f"v_lshlrev_b32 v{V_T1}, 2, v{C}")
    a.e(f"v_mul_u32_u24 v{V_SV}, 7168, v{A}", f"v_lshl_add_u32 v{V_SV}, v{B}, 4, v{V_SV}")
    a.e(f"v_lshlrev_b32 v{V_SH}, 4, v{L}")
    a.e("s_waitcnt lgkmcnt(0)")
    srd(a, S_X, 76, 2048 * 896); srd(a, S_WQ, 78, 448 * 2688); srd(a, S_WG, 80, 448 * 3584); srd(a, S_WU, 82, 448 * 3584)
    srd(a, S_GW, 84, 896); srd(a, S_WS, 86, WS_END)

def ab_group_params(a, gi, kind, nreg):
    col, ob, sc = S_COL + gi, S_OB + gi, S_SC
    if kind == "G":
        return
    a.e(f"s_lshl_b32 s{col}, s{nreg}, 7")
    if kind == "QK":
        a.e(f"s_lshl_b32 s{ob}, s{nreg}, 1", f"s_add_u32 s{ob}, s{ob}, s{S_CH}", f"s_lshl_b32 s{ob}, s{ob}, 17")
        a.e(f"s_cmp_lt_u32 s{nreg}, 7", f"s_cselect_b32 s{sc}, {f2u(QSCALE):#x}, 1.0")
    elif kind == "V":
        a.e(f"s_lshl_b32 s{ob}, s{nreg}, 1", f"s_add_u32 s{ob}, s{ob}, s{S_CH}", f"s_lshl_b32 s{ob}, s{ob}, 9",
            f"s_mul_i32 s{S_T0}, s{S_TB}, {V_TB}", f"s_add_u32 s{ob}, s{ob}, s{S_T0}", f"s_add_u32 s{ob}, s{ob}, {WS_V - 14*1024}")
    elif kind == "F":
        a.e(f"s_lshl_b32 s{ob}, s{nreg}, 1", f"s_add_u32 s{ob}, s{ob}, s{S_CH}", f"s_lshl_b32 s{ob}, s{ob}, 11",
            f"s_mul_i32 s{S_T0}, s{S_TB}, {HO_TB}", f"s_add_u32 s{ob}, s{ob}, s{S_T0}", f"s_add_u32 s{ob}, s{ob}, {WS_HO}")

def ab_epilogue(a, vm, gi, kind, stflags=""):
    A0, A1, T = AB["ACC"], AB["ACC"] + 16, AB["T"]
    ob = S_OB + gi
    if kind == "QK":
        for i in range(16):
            a.e(f"v_mul_f32 v{A0+i}, s{S_SC}, v{A0+i}")
        for g in range(4):
            a.e(f"v_cvt_pk_bf16_f32 v{T+2*g}, v{A0+4*g}, v{A0+4*g+1}", f"v_cvt_pk_bf16_f32 v{T+2*g+1}, v{A0+4*g+2}, v{A0+4*g+3}")
            a.e(f"s_add_u32 s{S_T0}, s{ob}, {2*g*16384}")
            a.e(f"buffer_store_dwordx2 {vr(T+2*g,2)}, v{V_SQ}, {sr(S_WS,4)}, s{S_T0} offen {stflags}"); vm.issue()
    elif kind == "V":
        for k in range(8):
            a.e(f"v_cvt_pk_bf16_f32 v{T+k}, v{A0+2*k}, v{A0+2*k+1}")
            if k == 3:
                a.e(f"buffer_store_dwordx4 {vr(T,4)}, v{V_SV}, {sr(S_WS,4)}, s{ob} offen {stflags}"); vm.issue()
        a.e(f"s_add_u32 s{S_T0}, s{ob}, 14336")
        a.e(f"buffer_store_dwordx4 {vr(T+4,4)}, v{V_SV}, {sr(S_WS,4)}, s{S_T0} offen {stflags}"); vm.issue()
    elif kind == "F":
        for i in range(16):
            a.e(f"v_max_f32 v{A0+i}, 0, v{A0+i}")
        for i in range(16):
            a.e(f"v_mul_f32 v{A0+i}, v{A0+i}, v{A1+i}")
        for k in range(8):
            a.e(f"v_cvt_pk_bf16_f32 v{T+k}, v{A0+2*k}, v{A0+2*k+1}")
            if k == 3:
                a.e(f"buffer_store_dwordx4 {vr(T,4)}, v{V_SH}, {sr(S_WS,4)}, s{ob} offen {stflags}"); vm.issue()
        a.e(f"buffer_store_dwordx4 {vr(T+4,4)}, v{V_SH}, {sr(S_WS,4)}, s{ob} offen offset:1024 {stflags}"); vm.issue()
    elif kind == "G":
        a.e(f"v_mul_f32 v{T}, {f2u(-math.log2(math.e)):#x}, v{A0}", f"v_exp_f32 v{T}, v{T}", f"v_add_f32 v{T}, 1.0, v{T}",
            f"v_rcp_f32 v{T}, v{T}", f"s_mov_b32 s{S_T0}, {WS_G}")
        a.e("s_nop 0")
        a.e(f"buffer_store_dword v{T}, v{V_T1}, {sr(S_WS,4)}, s{S_T0} offen {stflags}"); vm.issue()

def ab_program(a, kinds, stflags=""):
    X, ACC, FR = AB["X"], AB["ACC"], AB["FR"]
    vm, lg = Vm(), Lgkm()
    stages = []
    for gi, kind in enumerate(kinds):
        if kind == "G":
            stages.append(dict(gi=gi, c=0, kind=kind, x=False))
        else:
            for c in range(7):
                stages.append(dict(gi=gi, c=c, kind=kind, x=(gi == 0)))
    mf = []
    for si, st in enumerate(stages):
        ks = range(28) if st["kind"] == "G" else range(4 * st["c"], 4 * st["c"] + 4)
        for s in ks:
            for tile in range(2 if st["kind"] == "F" else 1):
                mf.append(dict(si=si, s=s, tile=tile, kind=st["kind"], gi=st["gi"]))
    free = list(range(NSLOT))
    state = dict(next_dma=0)
    def issue_dma(si):
        st = stages[si]
        gi, c, kind = st["gi"], st["c"], st["kind"]
        if st["x"]:
            st["xs"] = free.pop(0) * 16384
            a.e(f"s_add_u32 m0, s{S_W2K}, {st['xs']}", f"s_add_u32 s{S_T0}, s{S_XOFF}, {c*128}")
            a.e(f"buffer_load_dwordx4 v{V_X0}, {sr(S_X,4)}, s{S_T0} offen lds"); vm.issue()
            a.e(f"s_add_u32 m0, s{S_W2K}, {st['xs']+1024}", "s_nop 0")
            a.e(f"buffer_load_dwordx4 v{V_X1}, {sr(S_X,4)}, s{S_T0} offen lds"); vm.issue()
        st["ws"] = free.pop(0) * 16384
        if kind == "G":
            a.e(f"s_add_u32 m0, s{S_W1K}, {st['ws']}", "s_nop 0")
            a.e(f"buffer_load_dwordx4 v{V_SH}, {sr(S_GW,4)}, 0 offen lds"); st["t"] = vm.issue()
        elif kind == "F":
            a.e(f"s_add_u32 m0, s{S_W1K}, {st['ws']}", f"s_add_u32 s{S_T0}, s{S_COL+gi}, {c*64*3584}")
            a.e(f"buffer_load_dwordx4 v{V_WF}, {sr(S_WG,4)}, s{S_T0} offen lds"); vm.issue()
            a.e(f"s_add_u32 m0, s{S_W1K}, {st['ws']+8192}", "s_nop 0")
            a.e(f"buffer_load_dwordx4 v{V_WF}, {sr(S_WU,4)}, s{S_T0} offen lds"); st["t"] = vm.issue()
        else:
            a.e(f"s_add_u32 m0, s{S_W1K}, {st['ws']}", f"s_add_u32 s{S_T0}, s{S_COL+gi}, {c*64*2688}")
            a.e(f"buffer_load_dwordx4 v{V_WQ}, {sr(S_WQ,4)}, s{S_T0} offen lds"); st["t"] = vm.issue()
    def fill():
        while state["next_dma"] < len(stages):
            st = stages[state["next_dma"]]
            if len(free) < (2 if st["x"] else 1):
                break
            issue_dma(state["next_dma"]); state["next_dma"] += 1
    def reads(m):
        e = mf[m]; st = stages[e["si"]]
        first_of_stage = (m == 0 or mf[m-1]["si"] != e["si"])
        if first_of_stage:
            si = e["si"]
            vm.wait(a, st["t"])
            a.e("s_barrier")
            if si >= 2:
                o = stages[si - 2]
                if o["x"]: free.append(o["xs"] // 16384)
                free.append(o["ws"] // 16384)
            fill()
            if st["x"]:
                for q in range(4):
                    a.e(f"v_add_u32 v{V_XC+q}, {st['xs']}, v{V_XR+q}")
            if st["kind"] == "G":
                a.e(f"v_lshrrev_b32 v{V_XC}, 5, v{V_LANE}", f"v_lshlrev_b32 v{V_XC}, 4, v{V_XC}",
                    f"s_add_u32 s{S_T0}, s{S_W1K}, {st['ws']}", f"v_add_u32 v{V_XC}, s{S_T0}, v{V_XC}")
        f = FR + 4 * (m % NFR)
        if st["x"] and e["tile"] == 0:
            a.e(f"ds_read_b128 {vr(X+4*e['s'],4)}, v{V_XC + e['s'] % 4}"); lg.issue()
        if st["kind"] == "G":
            a.e(f"ds_read_b128 {vr(f,4)}, v{V_XC} offset:{32*e['s']}"); e["t"] = lg.issue()
        else:
            for u in range(2):
                off = st["ws"] + e["tile"] * 8192 + (16 * (e["s"] % 4) + 4 * u) * 128
                a.e(f"ds_read_b64_tr_b16 {vr(f+2*u,2)}, v{V_TR + off // 65536} offset:{off % 65536}"); e["t"] = lg.issue()
    fill()
    for m in range(PD):
        reads(m)
    for m, e in enumerate(mf):
        lg.wait(a, e["t"])
        f = FR + 4 * (m % NFR)
        acc = ACC + 16 * e["tile"]
        cin = "0" if e["s"] == 0 else vr(acc, 16)
        xa = vr(X + 4 * e["s"], 4)
        if e["kind"] == "V":
            a.e(f"{MFMA} {vr(acc,16)}, {xa}, {vr(f,4)}, {cin}")
        else:
            a.e(f"{MFMA} {vr(acc,16)}, {vr(f,4)}, {xa}, {cin}")
        if m + PD < len(mf):
            reads(m + PD)
        if m + 1 == len(mf) or mf[m + 1]["gi"] != e["gi"]:
            ab_epilogue(a, vm, e["gi"], e["kind"], stflags)

def gen_k1(a):
    a.label("k1_kernel")
    a.e("s_cmp_ge_u32 s2, 256", "s_cbranch_scc1 L_k1_end")
    ab_prologue(a)
    N = 88
    a.e(f"s_cmp_lt_u32 s{S_J}, 12", "s_cbranch_scc1 L_k1_A", f"s_cmp_eq_u32 s{S_J}, 12", "s_cbranch_scc1 L_k1_B",
        f"s_cmp_eq_u32 s{S_J}, 15", "s_cbranch_scc1 L_k1_D")
    for lab, kinds in (("C", ["V", "V", "F"]), ("D", ["V", "V", "F", "G"])):
        a.label(f"L_k1_{lab}")
        a.e(f"s_lshl_b32 s{N}, s{S_J}, 1", f"s_sub_u32 s{N}, s{N}, 11"); ab_group_params(a, 0, "V", N)
        a.e(f"s_add_u32 s{N}, s{N}, 1"); ab_group_params(a, 1, "V", N)
        a.e(f"s_add_u32 s{N}, s{S_J}, 12"); ab_group_params(a, 2, "F", N)
        ab_program(a, kinds)
        a.e("s_endpgm")
    a.label("L_k1_B")
    a.e(f"s_mov_b32 s{N}, 12"); ab_group_params(a, 0, "QK", N)
    a.e(f"s_mov_b32 s{N}, 13"); ab_group_params(a, 1, "QK", N)
    a.e(f"s_mov_b32 s{N}, 14"); ab_group_params(a, 2, "V", N)
    a.e(f"s_mov_b32 s{N}, 24"); ab_group_params(a, 3, "F", N)
    ab_program(a, ["QK", "QK", "V", "F"])
    a.e("s_endpgm")
    a.label("L_k1_A")
    ab_group_params(a, 0, "QK", S_J)
    a.e(f"s_lshl_b32 s{N}, s{S_J}, 1"); ab_group_params(a, 1, "F", N)
    a.e(f"s_add_u32 s{N}, s{N}, 1"); ab_group_params(a, 2, "F", N)
    ab_program(a, ["QK", "F", "F"])
    a.label("L_k1_end")
    a.e("s_endpgm")

CQ, CO, CS, CP, CKV = 16, 48, 112, 144, 160
C_VK, C_VV, C_G, C_T = 2, 3, 4, 224
SC_HEAD, SC_QT, SC_K, SC_V0, SC_V1, SC_IT, SC_7J = 66, 67, 68, 72, 73, 74, 75
EXEC_V = 0x0FFFFFFF

def c_loads(a, buf, imm):
    kb, vb = CKV + 16 * buf, CKV + 16 * buf + 8
    for idx in range(3):
        a.e(f"buffer_load_dwordx2 {vr(kb+2*idx,2)}, v{C_VK}, {sr(S_KV,4)}, s{SC_K+idx} offen offset:{imm}")
    a.e("s_mov_b32 exec_hi, 0")
    a.e(f"buffer_load_dwordx2 {vr(kb+6,2)}, v{C_VK}, {sr(S_KV,4)}, s{SC_K+3} offen offset:{imm}")
    a.e(f"s_mov_b64 exec, s[76:77]")
    a.e(f"buffer_load_dwordx4 {vr(vb,4)}, v{C_VV}, {sr(S_KV,4)}, s{SC_V0} offen")
    a.e(f"buffer_load_dwordx4 {vr(vb+4,4)}, v{C_VV}, {sr(S_KV,4)}, s{SC_V1} offen")
    a.e("s_mov_b64 exec, -1")
    a.e(f"s_add_u32 s{SC_V0}, s{SC_V0}, {V_TB}", f"s_add_u32 s{SC_V1}, s{SC_V1}, {V_TB}")

def c_smfma(a, i, half):
    kt, qs = (i // 4) % 4, i % 4
    S = CS + 16 * (i % 2)
    kb = CKV + 16 * kt + 4 * half
    q = CQ + 8 * qs + 4 * half
    a.e(f"{MFMA} {vr(S,16)}, {vr(kb,4)}, {vr(q,4)}, {'0' if half == 0 else vr(S,16)}")
def c_pv(a, i, half):
    i %= 16
    kt, qs = i // 4, i % 4
    O = CO + 16 * qs
    vb = CKV + 16 * kt + 8 + 4 * half
    P = CP + 8 * (i % 2) + 4 * half
    a.e(f"{MFMA} {vr(O,16)}, {vr(vb,4)}, {vr(P,4)}, {vr(O,16)}")

def c_step(a, i):
    S, P = CS + 16 * (i % 2), CP + 8 * (i % 2)
    ex = lambda k: a.e(f"v_exp_f32 v{S+k}, v{S+k}")
    cv = lambda k: a.e(f"v_cvt_pk_bf16_f32 v{P+k}, v{S+2*k}, v{S+2*k+1}")
    if i % 4 == 3:
        a.e("s_waitcnt vmcnt(12)")
    c_smfma(a, i + 1, 0)
    for k in range(4): ex(k)
    c_smfma(a, i + 1, 1)
    ex(4); ex(5); cv(0); cv(1); ex(6); ex(7)
    c_pv(a, i - 1, 0)
    ex(8); ex(9); cv(2); cv(3); ex(10); ex(11)
    c_pv(a, i - 1, 1)
    if i % 4 == 0:
        kt = i // 4
        if kt == 1:
            a.e(f"s_cmp_eq_u32 s{SC_IT}, 1", f"s_cselect_b32 s{S_KV+2}, 0, s{S_KV+2}")
        c_loads(a, (kt + 3) % 4, 256 * (kt + 3))
    for k in range(12, 16): ex(k)
    cv(4); cv(5); cv(6); cv(7)

def gen_k2(a, stflags=""):
    a.label("k2_kernel")
    a.e("s_cmp_ge_u32 s2, 256", "s_cbranch_scc1 L_k2_end")
    a.e("s_load_dwordx2 s[86:87], s[0:1], 80")
    T = C_T
    a.e(f"s_and_b32 s{S_T0}, s2, 7", f"s_lshr_b32 s{S_T1}, s2, 3", f"s_and_b32 s{SC_HEAD}, s{S_T1}, 1",
        f"s_lshl_b32 s{SC_HEAD}, s{SC_HEAD}, 3", f"s_add_u32 s{SC_HEAD}, s{SC_HEAD}, s{S_T0}", f"s_lshr_b32 s{SC_QT}, s{S_T1}, 1")
    a.e(f"v_lshrrev_b32 v{T}, 6, v0", f"v_and_b32 v{V_LANE}, 63, v0", f"v_readfirstlane_b32 s{S_W}, v{T}")
    a.e(f"s_mul_i32 s{SC_7J}, s{SC_HEAD}, 7")
    L = V_LANE
    a.e(f"v_lshrrev_b32 v{T}, 5, v{L}", f"v_and_b32 v{T+1}, 31, v{L}")
    a.e(f"v_lshlrev_b32 v{C_VK}, 3, v{T+1}", f"v_lshl_add_u32 v{C_VK}, v{T}, 15, v{C_VK}")
    a.e(f"s_mul_i32 s{S_T0}, s{SC_HEAD}, 448", f"v_mul_u32_u24 v{C_VV}, 7168, v{T}", f"v_lshl_add_u32 v{C_VV}, v{T+1}, 4, v{C_VV}",
        f"v_add_u32 v{C_VV}, s{S_T0}, v{C_VV}")
    a.e(f"s_mov_b32 s76, {EXEC_V:#x}", f"s_mov_b32 s77, {EXEC_V:#x}")
    a.e("s_waitcnt lgkmcnt(0)")
    srd(a, S_WS, 86, WS_END); srd(a, S_KV, 86, WS_END)
    for qs in range(4):
        a.e(f"v_mov_b32 v{CQ+8*qs+6}, 0", f"v_mov_b32 v{CQ+8*qs+7}, 0")
    for b in range(4):
        a.e(f"v_mov_b32 v{CKV+16*b+6}, 0x3f803f80", f"v_mov_b32 v{CKV+16*b+7}, 0x00003f80")
        for k in range(8):
            a.e(f"v_mov_b32 v{CKV+16*b+8+k}, 0x3f803f80")
    for idx, gofs in enumerate((0, 1, 4, 5)):
        a.e(f"s_add_u32 s{S_T0}, s{SC_7J}, {gofs}", f"s_lshl_b32 s{S_T0}, s{S_T0}, 14", f"s_lshl_b32 s{S_T1}, s{SC_QT}, 10",
            f"s_add_u32 s{S_T0}, s{S_T0}, s{S_T1}")
        if idx == 3: a.e("s_mov_b32 exec_hi, 0")
        for qs in range(4):
            a.e(f"buffer_load_dwordx2 {vr(CQ+8*qs+2*idx,2)}, v{C_VK}, {sr(S_WS,4)}, s{S_T0} offen offset:{256*qs}")
        if idx == 3: a.e("s_mov_b64 exec, -1")
        a.e(f"s_add_u32 s{SC_K+idx}, s{SC_7J}, {112+gofs}", f"s_lshl_b32 s{SC_K+idx}, s{SC_K+idx}, 14", f"s_lshl_b32 s{S_T1}, s{S_W}, 12",
            f"s_add_u32 s{SC_K+idx}, s{SC_K+idx}, s{S_T1}")
    a.e(f"s_mul_i32 s{SC_V0}, s{S_W}, {16*V_TB}", f"s_add_u32 s{SC_V0}, s{SC_V0}, {WS_V}", f"s_add_u32 s{SC_V1}, s{SC_V0}, 14336")
    for kt in range(3):
        c_loads(a, kt, 256 * kt)
    a.e(f"s_lshl_b32 s{S_TB}, s{SC_QT}, 2", f"s_add_u32 s{S_TB}, s{S_TB}, s{S_W}", f"s_lshl_b32 s{S_T0}, s{S_TB}, 7",
        f"s_add_u32 s{S_T0}, s{S_T0}, {WS_G}", f"v_lshlrev_b32 v{T+2}, 2, v{T+1}")
    for i in range(64):
        a.e(f"v_mov_b32 v{CO+i}, 0")
    for i in range(8):
        a.e(f"v_mov_b32 v{CP+8+i}, 0")
    a.e(f"s_mov_b32 s{SC_IT}, 4")
    a.e("s_waitcnt vmcnt(12)")
    c_smfma(a, 0, 0); c_smfma(a, 0, 1)
    a.e("s_nop 7")
    a.raw(".p2align 3")
    a.label("L_c_loop")
    for i in range(16):
        c_step(a, i)
    a.e(f"v_add_u32 v{C_VK}, 1024, v{C_VK}")
    a.e(f"s_sub_u32 s{SC_IT}, s{SC_IT}, 1", f"s_cmp_lg_u32 s{SC_IT}, 0", "s_cbranch_scc1 L_c_loop")
    c_pv(a, 15, 0); c_pv(a, 15, 1)
    a.e(f"buffer_load_dword v{C_G}, v{T+2}, {sr(S_WS,4)}, s{S_T0} offen")
    a.e(f"v_lshlrev_b32 v{T+3}, 4, v{L}", f"s_lshl_b32 s{S_T1}, s{S_W}, 12", f"v_add_u32 v{T+4}, s{S_T1}, v{T+3}")
    for o in range(4):
        for q in range(4):
            a.e(f"ds_write_b128 v{T+4}, {vr(CO+16*o+4*q,4)} offset:{o*16384+q*1024}")
    a.e("s_waitcnt lgkmcnt(0)", "s_barrier")
    a.e(f"s_lshl_b32 s{S_T1}, s{S_W}, 14", f"v_add_u32 v{T+4}, s{S_T1}, v{T+3}")
    for w in range(4):
        for q in range(4):
            a.e(f"ds_read_b128 {vr(CO+16*w+4*q,4)}, v{T+4} offset:{w*4096+q*1024}")
    a.e("s_waitcnt lgkmcnt(0)")
    for i in range(16):
        a.e(f"v_add_f32 v{CO+i}, v{CO+i}, v{CO+16+i}", f"v_add_f32 v{CO+32+i}, v{CO+32+i}, v{CO+48+i}")
    for i in range(16):
        a.e(f"v_add_f32 v{CO+i}, v{CO+i}, v{CO+32+i}")
    a.e(f"v_mov_b32 v{T+5}, v{CO+12}", f"v_mov_b32 v{T+6}, v{CO+12}", f"v_permlane32_swap_b32 v{T+5}, v{T+6}")
    a.e(f"v_rcp_f32 v{T+6}, v{T+6}", "s_waitcnt vmcnt(0)", f"v_mul_f32 v{T+6}, v{T+6}, v{C_G}")
    for i in range(16):
        a.e(f"v_mul_f32 v{CO+i}, v{CO+i}, v{T+6}")
    a.e(f"s_mul_i32 s{S_T0}, s{S_TB}, {HO_TB}", f"s_add_u32 s{S_T0}, s{S_T0}, {WS_HO + 112*1024}")
    for g in range(4):
        a.e(f"s_add_u32 s{S_T1}, s{SC_7J}, {2*g}", f"v_add_u32 v{T+7}, s{S_T1}, v{T}",
            f"v_lshrrev_b32 v{T+8}, 2, v{T+7}", f"v_lshlrev_b32 v{T+8}, 10, v{T+8}",
            f"v_and_b32 v{T+9}, 1, v{T+7}", f"v_lshl_add_u32 v{T+8}, v{T+9}, 9, v{T+8}",
            f"v_bfe_u32 v{T+9}, v{T+7}, 1, 1", f"v_lshl_add_u32 v{T+8}, v{T+9}, 3, v{T+8}",
            f"v_lshl_add_u32 v{T+10+g}, v{T+1}, 4, v{T+8}")
        a.e(f"v_cvt_pk_bf16_f32 v{CP+2*g}, v{CO+4*g}, v{CO+4*g+1}", f"v_cvt_pk_bf16_f32 v{CP+2*g+1}, v{CO+4*g+2}, v{CO+4*g+3}")
        if g == 3: a.e("s_mov_b32 exec_hi, 0")
        a.e(f"buffer_store_dwordx2 {vr(CP+2*g,2)}, v{T+10+g}, {sr(S_WS,4)}, s{S_T0} offen {stflags}")
    a.label("L_k2_end")
    a.e("s_endpgm")

DACC, DB, DA = 16, 80, 144
D_VW, D_VB, D_TR, D_G, D_T = 2, 3, 4, 6, 160
SD_RT, SD_CT, SD_B0, SD_B1, SD_W, SD_LDS = 66, 67, 68, 69, 70, 71
DRING = 8
D_RED = 65536

def gen_k3(a):
    a.label("k3_kernel")
    a.e("s_cmp_ge_u32 s2, 224", "s_cbranch_scc1 L_k3_end")
    a.e("s_load_dwordx2 s[76:77], s[0:1], 16", "s_load_dwordx2 s[78:79], s[0:1], 48", "s_load_dwordx2 s[80:81], s[0:1], 64",
        "s_load_dwordx2 s[86:87], s[0:1], 80")
    T, L = D_T, V_LANE
    a.e(f"s_and_b32 s{S_T0}, s2, 7", f"s_lshr_b32 s{S_T1}, s2, 3", f"s_mul_i32 s{SD_RT}, s{S_T1}, 37", f"s_lshr_b32 s{SD_RT}, s{SD_RT}, 8",
        f"s_mul_i32 s{SD_CT}, s{SD_RT}, 7", f"s_sub_u32 s{SD_CT}, s{S_T1}, s{SD_CT}", f"s_lshl_b32 s{S_T0}, s{S_T0}, 2",
        f"s_add_u32 s{SD_RT}, s{SD_RT}, s{S_T0}")
    a.e(f"v_lshrrev_b32 v{T}, 6, v0", f"v_and_b32 v{L}, 63, v0", f"v_readfirstlane_b32 s{S_W}, v{T}")
    a.e(f"v_lshrrev_b32 v{T}, 3, v{L}", f"v_and_b32 v{T+1}, 7, v{L}", f"v_bfe_u32 v{T+2}, v{L}, 4, 1", f"v_lshlrev_b32 v{T+2}, 2, v{T+2}",
        f"v_xor_b32 v{T+2}, v{T+2}, v{T+1}", f"v_mul_u32_u24 v{D_VW}, 896, v{T}", f"v_lshl_add_u32 v{D_VW}, v{T+2}, 4, v{D_VW}")
    a.e(f"v_lshlrev_b32 v{D_VB}, 4, v{L}")
    a.e(f"s_lshl_b32 s{SD_LDS}, s{S_W}, 14")
    a.e(f"v_lshrrev_b32 v{T}, 5, v{L}", f"v_bfe_u32 v{T+1}, v{L}, 2, 2", f"v_lshl_add_u32 v{T+2}, v{T}, 2, v{T+1}",
        f"v_lshlrev_b32 v{D_TR}, 7, v{T+2}", f"v_lshrrev_b32 v{T+1}, 1, v{T+1}", f"v_lshl_add_u32 v{D_TR}, v{T+1}, 6, v{D_TR}",
        f"v_bfe_u32 v{T+1}, v{L}, 4, 1", f"v_lshl_add_u32 v{D_TR}, v{T+1}, 5, v{D_TR}", f"v_and_b32 v{T+1}, 3, v{L}",
        f"v_lshl_add_u32 v{D_TR}, v{T+1}, 3, v{D_TR}", f"v_add_u32 v{D_TR}, s{SD_LDS}, v{D_TR}", f"v_xor_b32 v{D_TR+1}, 64, v{D_TR}")
    a.e("s_waitcnt lgkmcnt(0)")
    srd(a, S_WO, 76, 448 * 896); srd(a, S_WD, 78, 1792 * 896); srd(a, S_OUT, 80, 2048 * 896); srd(a, S_WS, 86, WS_END)
    vm, lg = Vm(), Lgkm()
    a.e(f"v_and_b32 v{T+1}, 31, v{L}", f"v_lshlrev_b32 v{T+2}, 2, v{T+1}", f"s_lshl_b32 s{S_T0}, s{SD_RT}, 8", f"s_add_u32 s{S_T0}, s{S_T0}, {WS_G}")
    a.e(f"buffer_load_dword v{D_G}, v{T+2}, {sr(S_WS,4)}, s{S_T0} offen"); vm.issue()
    a.e(f"buffer_load_dword v{D_G+1}, v{T+2}, {sr(S_WS,4)}, s{S_T0} offen offset:128"); vm.issue()
    a.e(f"s_mul_i32 s{SD_B0}, s{SD_RT}, {2*HO_TB}", f"s_mul_i32 s{S_T0}, s{S_W}, {28*1024}", f"s_add_u32 s{SD_B0}, s{SD_B0}, s{S_T0}",
        f"s_add_u32 s{SD_B0}, s{SD_B0}, {WS_HO}", f"s_add_u32 s{SD_B1}, s{SD_B0}, {HO_TB}")
    a.e(f"s_mul_i32 s{SD_W}, s{S_W}, {28*16*896}", f"s_lshl_b32 s{S_T0}, s{SD_CT}, 7", f"s_add_u32 s{SD_W}, s{SD_W}, s{S_T0}")
    NK = 35
    tick = {}
    def loads(n):
        if n == 28:
            a.e(f"s_mul_i32 s{SD_B0}, s{SD_RT}, {2*HO_TB}", f"s_mul_i32 s{S_T0}, s{S_W}, {7*1024}", f"s_add_u32 s{SD_B0}, s{SD_B0}, s{S_T0}",
                f"s_add_u32 s{SD_B0}, s{SD_B0}, {WS_HO + 112*1024}", f"s_add_u32 s{SD_B1}, s{SD_B0}, {HO_TB}")
            a.e(f"s_mul_i32 s{SD_W}, s{S_W}, {7*16*896}", f"s_lshl_b32 s{S_T0}, s{SD_CT}, 7", f"s_add_u32 s{SD_W}, s{SD_W}, s{S_T0}")
        k = n if n < 28 else n - 28
        w = S_WD if n < 28 else S_WO
        slot = n % DRING
        a.e(f"s_add_u32 m0, s{SD_LDS}, {slot*2048}", f"s_add_u32 s{S_T0}, s{SD_W}, {k*16*896}")
        a.e(f"buffer_load_dwordx4 v{D_VW}, {sr(w,4)}, s{S_T0} offen lds"); vm.issue()
        a.e(f"s_add_u32 m0, s{SD_LDS}, {slot*2048+1024}", f"s_add_u32 s{S_T0}, s{S_T0}, {8*896}")
        a.e(f"buffer_load_dwordx4 v{D_VW}, {sr(w,4)}, s{S_T0} offen lds"); vm.issue()
        if k % 4 == 0 and k > 0:
            a.e(f"s_add_u32 s{SD_B0}, s{SD_B0}, 4096", f"s_add_u32 s{SD_B1}, s{SD_B1}, 4096")
        a.e(f"buffer_load_dwordx4 {vr(DB+8*slot,4)}, v{D_VB}, {sr(S_WS,4)}, s{SD_B0} offen offset:{(k%4)*1024}"); vm.issue()
        a.e(f"buffer_load_dwordx4 {vr(DB+8*slot+4,4)}, v{D_VB}, {sr(S_WS,4)}, s{SD_B1} offen offset:{(k%4)*1024}"); tick[n] = vm.issue()
    ltick = {}
    def areads(n):
        vm.wait(a, tick[n])
        slot = n % DRING
        for nb in range(2):
            for u in range(2):
                a.e(f"ds_read_b64_tr_b16 {vr(DA+8*(n%2)+4*nb+2*u,2)}, v{D_TR+nb} offset:{slot*2048+u*1024}"); ltick[(n, nb)] = lg.issue()
    for n in range(DRING):
        loads(n)
    areads(0)
    for n in range(NK):
        if n + 1 < NK:
            areads(n + 1)
        if n == 28:
            a.e(f"v_sub_f32 v{D_G}, 1.0, v{D_G}", f"v_sub_f32 v{D_G+1}, 1.0, v{D_G+1}")
            for nb in range(2):
                for tb in range(2):
                    for i in range(16):
                        r = DACC + 32 * nb + 16 * tb + i
                        a.e(f"v_mul_f32 v{r}, v{r}, v{D_G+tb}")
        slot = n % DRING
        for nb in range(2):
            lg.wait(a, ltick[(n, nb)])
            for tb in range(2):
                acc = DACC + 32 * nb + 16 * tb
                a.e(f"{MFMA} {vr(acc,16)}, {vr(DA+8*(n%2)+4*nb,4)}, {vr(DB+8*slot+4*tb,4)}, {'0' if n == 0 else vr(acc,16)}")
        if n + DRING < NK:
            loads(n + DRING)
    a.e(f"v_and_b32 v{T+1}, 31, v{L}", f"v_lshrrev_b32 v{T}, 5, v{L}", f"v_mul_u32_u24 v{T+2}, 272, v{T+1}", f"v_lshl_add_u32 v{T+2}, v{T}, 4, v{T+2}",
        f"s_mul_i32 s{S_T0}, s{S_W}, 17408", f"s_add_u32 s{S_T0}, s{S_T0}, {D_RED}", f"v_add_u32 v{T+2}, s{S_T0}, v{T+2}")
    for nb in range(2):
        for tb in range(2):
            for g in range(4):
                a.e(f"ds_write_b128 v{T+2}, {vr(DACC+32*nb+16*tb+4*g,4)} offset:{tb*32*272 + nb*128 + g*32}")
    a.e("s_waitcnt lgkmcnt(0)", "s_barrier")
    a.e(f"v_lshrrev_b32 v{T}, 3, v0", f"v_and_b32 v{T+1}, 7, v0", f"v_mul_u32_u24 v{T+2}, 272, v{T}", f"v_lshl_add_u32 v{T+2}, v{T+1}, 5, v{T+2}",
        f"v_add_u32 v{T+2}, {D_RED}, v{T+2}")
    a.e(f"v_mul_u32_u24 v{T+3}, 896, v{T}", f"v_lshl_add_u32 v{T+3}, v{T+1}, 4, v{T+3}")
    a.e(f"s_mul_i32 s{S_T0}, s{SD_RT}, {64*896}", f"s_lshl_b32 s{S_T1}, s{SD_CT}, 7", f"s_add_u32 s{S_T0}, s{S_T0}, s{S_T1}",
        f"s_add_u32 s{S_T1}, s{S_T0}, {32*896}")
    for p in range(2):
        for w in range(4):
            for q in range(2):
                a.e(f"ds_read_b128 {vr(DACC+32*p+8*w+4*q,4)}, v{T+2} offset:{w*17408 + p*32*272 + q*16}")
    for p in range(2):
        a.e(f"s_waitcnt lgkmcnt({8 if p == 0 else 0})")
        b = DACC + 32 * p
        for i in range(8):
            a.e(f"v_add_f32 v{b+i}, v{b+i}, v{b+8+i}", f"v_add_f32 v{b+16+i}, v{b+16+i}, v{b+24+i}")
        for i in range(8):
            a.e(f"v_add_f32 v{b+i}, v{b+i}, v{b+16+i}")
        for k in range(4):
            a.e(f"v_cvt_pk_bf16_f32 v{b+8+k}, v{b+2*k}, v{b+2*k+1}")
        a.e(f"buffer_store_dwordx4 {vr(b+8,4)}, v{T+3}, {sr(S_OUT,4)}, s{S_T0 if p == 0 else S_T1} offen")
    a.label("L_k3_end")
    a.e("s_endpgm")

def kd(name, vgpr, sgpr=102):
    acc = (vgpr + 3) // 4 * 4
    return f""".amdhsa_kernel {name}
  .amdhsa_next_free_vgpr {vgpr}
  .amdhsa_next_free_sgpr {sgpr}
  .amdhsa_accum_offset {acc}
  .amdhsa_group_segment_fixed_size 0
  .amdhsa_kernarg_size 88
  .amdhsa_user_sgpr_count 2
  .amdhsa_user_sgpr_kernarg_segment_ptr 1
  .amdhsa_system_sgpr_workgroup_id_x 1
.end_amdhsa_kernel
"""

def main(out):
    head = open("cdna_kernels/" + NAME + ".s.ref").read().split("; Override launch")[0]
    launches = [("k1_kernel", 256, 512, 163840), ("k2_kernel", 256, 256, 65536), ("k3_kernel", 224, 256, 65536 + 4 * 17408)]
    txt = head
    for k, g, b, l in launches:
        txt += f"; @launch kernel={k} grid=({g},1,1) block=({b},1,1) lds={l}\n"
    txt += '.amdgcn_target "amdgcn-amd-amdhsa--gfx950"\n.text\n'
    for name, fn in (("k1_kernel", gen_k1), ("k2_kernel", gen_k2), ("k3_kernel", gen_k3)):
        a = Asm()
        fn(a)
        lines = fix_hazards(a.lines)
        if name == "k2_kernel":
            check_loop(lines, "L_c_loop")
        txt += f".globl {name}\n.p2align 8\n.type {name},@function\n" + "\n".join(lines) + "\n"
    txt += '.section .rodata,"a"\n'
    for name, v in (("k1_kernel", 216), ("k2_kernel", 240), ("k3_kernel", 168)):
        txt += ".p2align 6\n" + kd(name, v)
    open(out, "w").write(txt)

if __name__ == "__main__":
    main(sys.argv[1] if len(sys.argv) > 1 else "cdna_kernels/" + NAME + ".s")
```

```python
import sys, math, struct
from asmlib import *

NAME = "gated_mix__mha_block__glu_gated_reglu__prompt"
WS_QK, WS_V, WS_HO, WS_G, WS_END = 0, 0x380000, 0x540000, 0xE00000, 0xE20000
HO_TB = 140 * 1024
V_TB = 4 * 448 * 16
QSCALE = (28 ** -0.5) * math.log2(math.e)
def f2u(x): return struct.unpack("<I", struct.pack("<f", x))[0]

S_X, S_WQ, S_WG, S_WU, S_WS, S_WD, S_WO, S_OUT, S_GW, S_KV = 8, 12, 16, 20, 24, 28, 32, 36, 40, 44
MFMA = "v_mfma_f32_32x32x16_bf16"

def srd(a, dst, src, nbytes):
    a.e(f"s_mov_b32 s{dst}, s{src}", f"s_and_b32 s{dst+1}, s{src+1}, 0xffff",
        f"s_mov_b32 s{dst+2}, {nbytes:#x}", f"s_mov_b32 s{dst+3}, 0x20000")

STAMP = False
def stamp_start(a):
    if STAMP:
        a.e("s_memrealtime s[92:93]", "s_memtime s[94:95]")
def stamp_mid(a, idx):
    pass
def stamp_end(a, kidx):
    if STAMP:
        a.e("s_waitcnt vmcnt(0)", "s_memrealtime s[96:97]", "s_memtime s[98:99]", "s_load_dwordx2 s[90:91], s[0:1], 72", "s_waitcnt lgkmcnt(0)")
        a.e("s_mov_b64 exec, 1")
        a.e("v_mov_b32 v4, s92", "v_mov_b32 v5, s96", "s_sub_u32 s98, s98, s94", "v_mov_b32 v6, s98", "v_mov_b32 v7, s2")
        a.e(f"s_lshl_b32 s89, s2, 7", f"s_lshl_b32 s88, s{S_W}, 4", "s_add_u32 s89, s89, s88", f"s_add_u32 s89, s89, {WS_END + kidx*256*128}", "v_mov_b32 v8, s89")
        a.e(f"s_mov_b32 s{S_WS+2}, 0x1000000", "s_nop 1")
        a.e(f"buffer_store_dwordx4 v[4:7], v8, {sr(S_WS,4)}, 0 offen")
        a.e(f"s_sub_u32 s90, s90, {512*kidx}", "s_subb_u32 s91, s91, 0", f"s_cmp_lg_u32 s2, 5", f"s_cbranch_scc1 L_nodbg{kidx}_{len(a.lines)}")
        lab = a.lines[-1].split()[-1]
        a.e(f"s_cmp_lg_u32 s{S_W}, 0", f"s_cbranch_scc1 {lab}")
        a.e(f"v_mov_b32 v8, {16*kidx}", "global_store_dwordx4 v8, v[4:7], s[90:91]")
        a.label(lab)

class Lgkm:
    def __init__(self): self.n = 0
    def issue(self): self.n += 1; return self.n
    def wait(self, a, ticket):
        k = self.n - ticket
        a.e(f"s_waitcnt lgkmcnt({min(k,15)})")
class Vm:
    def __init__(self): self.n = 0
    def issue(self): self.n += 1; return self.n
    def wait(self, a, ticket):
        k = self.n - ticket
        assert k <= 63, k
        a.e(f"s_waitcnt vmcnt({k})")

AB = dict(X=16, ACC=128, FR=160, T=192)
V_LANE, V_WQ, V_WF, V_X0, V_X1, V_TR, V_XR, V_XC, V_SQ, V_SV, V_SH, V_T0, V_T1 = 1, 2, 3, 4, 5, 6, 208, 212, 9, 10, 11, 12, 13
S_RB, S_J, S_W, S_W1K, S_T0, S_T1, S_XOFF, S_TB, S_CH, S_W2K = 56, 57, 58, 59, 60, 61, 62, 63, 64, 65
S_COL, S_OB, S_SC = 66, 70, 74
PD = 4
NSLOT = 10
NFR = 8

def ab_prologue(a):
    a.e("s_load_dwordx4 s[76:79], s[0:1], 0", "s_load_dwordx4 s[80:83], s[0:1], 32",
        "s_load_dwordx2 s[84:85], s[0:1], 56", "s_load_dwordx2 s[86:87], s[0:1], 80")
    a.e(f"s_and_b32 s{S_T0}, s2, 7", f"s_lshr_b32 s{S_T1}, s2, 3",
        f"s_and_b32 s{S_RB}, s{S_T0}, 1", f"s_lshl_b32 s{S_RB}, s{S_RB}, 3",
        f"s_and_b32 s{S_J}, s{S_T1}, 7", f"s_add_u32 s{S_RB}, s{S_RB}, s{S_J}",
        f"s_lshr_b32 s{S_J}, s{S_T0}, 1", f"s_lshl_b32 s{S_J}, s{S_J}, 2",
        f"s_lshr_b32 s{S_T1}, s{S_T1}, 3", f"s_add_u32 s{S_J}, s{S_J}, s{S_T1}")
    a.e(f"v_lshrrev_b32 v{V_T0}, 6, v0", f"v_and_b32 v{V_LANE}, 63, v0", f"v_readfirstlane_b32 s{S_W}, v{V_T0}")
    a.e(f"s_lshl_b32 s{S_W1K}, s{S_W}, 10", f"s_lshl_b32 s{S_W2K}, s{S_W}, 11", f"s_lshr_b32 s{S_CH}, s{S_W}, 2",
        f"s_and_b32 s{S_T0}, s{S_W}, 3", f"s_lshl_b32 s{S_TB}, s{S_RB}, 2", f"s_add_u32 s{S_TB}, s{S_TB}, s{S_T0}",
        f"s_mul_i32 s{S_XOFF}, s{S_RB}, {128*896}")
    L = V_LANE
    A, B, C = AB["T"], AB["T"] + 1, AB["T"] + 2
    a.e(f"v_lshrrev_b32 v{A}, 3, v{L}", f"v_and_b32 v{B}, 7, v{L}")
    a.e(f"v_bfe_u32 v{C}, v{L}, 4, 1", f"v_lshlrev_b32 v{C}, 2, v{C}", f"v_xor_b32 v{C}, v{C}, v{B}", f"v_lshlrev_b32 v{C}, 4, v{C}")
    a.e(f"s_lshl_b32 s{S_T0}, s{S_W}, 3", f"v_add_u32 v{V_T0}, s{S_T0}, v{A}")
    a.e(f"v_mul_u32_u24 v{V_WQ}, 2688, v{V_T0}", f"v_add_u32 v{V_WQ}, v{V_WQ}, v{C}")
    a.e(f"v_mul_u32_u24 v{V_WF}, 3584, v{V_T0}", f"v_add_u32 v{V_WF}, v{V_WF}, v{C}")
    a.e(f"v_lshrrev_b32 v{C}, 4, v{L}", f"v_xor_b32 v{C}, v{C}, v{B}")
    a.e(f"s_lshl_b32 s{S_T0}, s{S_W}, 4", f"v_add_u32 v{V_T0}, s{S_T0}, v{A}", f"v_mul_u32_u24 v{V_T0}, 896, v{V_T0}")
    a.e(f"v_lshl_add_u32 v{V_X0}, v{C}, 4, v{V_T0}", f"v_xor_b32 v{C}, 4, v{C}", f"v_lshl_add_u32 v{V_X1}, v{C}, 4, v{V_T0}",
        f"v_add_u32 v{V_X1}, {8*896}, v{V_X1}")
    a.e(f"v_lshrrev_b32 v{A}, 5, v{L}", f"v_bfe_u32 v{B}, v{L}, 2, 2", f"v_lshl_add_u32 v{C}, v{A}, 3, v{B}",
        f"v_lshlrev_b32 v{V_TR}, 7, v{C}", f"v_lshrrev_b32 v{B}, 1, v{B}", f"v_xor_b32 v{B}, s{S_CH}, v{B}",
        f"v_lshl_add_u32 v{V_TR}, v{B}, 6, v{V_TR}", f"v_bfe_u32 v{B}, v{L}, 4, 1", f"v_lshl_add_u32 v{V_TR}, v{B}, 5, v{V_TR}",
        f"v_and_b32 v{B}, 3, v{L}", f"v_lshl_add_u32 v{V_TR}, v{B}, 3, v{V_TR}",
        f"v_add_u32 v{V_TR+1}, 0x10000, v{V_TR}", f"v_add_u32 v{V_TR+2}, 0x20000, v{V_TR}")
    a.e(f"v_and_b32 v{B}, 31, v{L}", f"s_and_b32 s{S_T0}, s{S_W}, 3", f"s_lshl_b32 s{S_T0}, s{S_T0}, 5",
        f"v_add_u32 v{C}, s{S_T0}, v{B}", f"v_lshlrev_b32 v{V_T0}, 7, v{C}", f"v_bfe_u32 v{V_T1}, v{L}, 1, 3",
        f"v_xor_b32 v{V_T1}, v{V_T1}, v{A}")
    for e in range(4):
        a.e(f"v_xor_b32 v{V_XR+e}, {2*e}, v{V_T1}", f"v_lshl_add_u32 v{V_XR+e}, v{V_XR+e}, 4, v{V_T0}")
    a.e(f"s_lshl_b32 s{S_T0}, s{S_TB}, 5", f"v_add_u32 v{C}, s{S_T0}, v{B}", f"v_lshlrev_b32 v{V_SQ}, 3, v{C}",
        f"v_lshl_add_u32 v{V_SQ}, v{A}, 14, v{V_SQ}")
    a.e(f"v_lshlrev_b32 v{V_T1}, 2, v{C}")
    a.e(f"v_mul_u32_u24 v{V_SV}, 7168, v{A}", f"v_lshl_add_u32 v{V_SV}, v{B}, 4, v{V_SV}")
    a.e(f"v_lshlrev_b32 v{V_SH}, 4, v{L}")
    a.e("s_waitcnt lgkmcnt(0)")
    srd(a, S_X, 76, 2048 * 896); srd(a, S_WQ, 78, 448 * 2688); srd(a, S_WG, 80, 448 * 3584); srd(a, S_WU, 82, 448 * 3584)
    srd(a, S_GW, 84, 896); srd(a, S_WS, 86, WS_END)

def ab_group_params(a, gi, kind, nreg):
    col, ob, sc = S_COL + gi, S_OB + gi, S_SC
    if kind == "G":
        return
    a.e(f"s_lshl_b32 s{col}, s{nreg}, 7")
    if kind == "QK":
        a.e(f"s_lshl_b32 s{ob}, s{nreg}, 1", f"s_add_u32 s{ob}, s{ob}, s{S_CH}", f"s_lshl_b32 s{ob}, s{ob}, 17")
        a.e(f"s_cmp_lt_u32 s{nreg}, 7", f"s_cselect_b32 s{sc}, {f2u(QSCALE):#x}, 1.0")
    elif kind == "V":
        a.e(f"s_lshl_b32 s{ob}, s{nreg}, 1", f"s_add_u32 s{ob}, s{ob}, s{S_CH}", f"s_lshl_b32 s{ob}, s{ob}, 9",
            f"s_mul_i32 s{S_T0}, s{S_TB}, {V_TB}", f"s_add_u32 s{ob}, s{ob}, s{S_T0}", f"s_add_u32 s{ob}, s{ob}, {WS_V - 14*1024}")
    elif kind == "F":
        a.e(f"s_lshl_b32 s{ob}, s{nreg}, 1", f"s_add_u32 s{ob}, s{ob}, s{S_CH}", f"s_lshl_b32 s{ob}, s{ob}, 11",
            f"s_mul_i32 s{S_T0}, s{S_TB}, {HO_TB}", f"s_add_u32 s{ob}, s{ob}, s{S_T0}", f"s_add_u32 s{ob}, s{ob}, {WS_HO}")

def ab_epilogue(a, vm, gi, kind, stflags=""):
    A0, A1, T = AB["ACC"], AB["ACC"] + 16, AB["T"]
    ob = S_OB + gi
    if kind == "QK":
        for i in range(16):
            a.e(f"v_mul_f32 v{A0+i}, s{S_SC}, v{A0+i}")
        for g in range(4):
            a.e(f"v_cvt_pk_bf16_f32 v{T+2*g}, v{A0+4*g}, v{A0+4*g+1}", f"v_cvt_pk_bf16_f32 v{T+2*g+1}, v{A0+4*g+2}, v{A0+4*g+3}")
            a.e(f"s_add_u32 s{S_T0}, s{ob}, {2*g*16384}")
            a.e(f"buffer_store_dwordx2 {vr(T+2*g,2)}, v{V_SQ}, {sr(S_WS,4)}, s{S_T0} offen {stflags}"); vm.issue()
    elif kind == "V":
        for k in range(8):
            a.e(f"v_cvt_pk_bf16_f32 v{T+k}, v{A0+2*k}, v{A0+2*k+1}")
            if k == 3:
                a.e(f"buffer_store_dwordx4 {vr(T,4)}, v{V_SV}, {sr(S_WS,4)}, s{ob} offen {stflags}"); vm.issue()
        a.e(f"s_add_u32 s{S_T0}, s{ob}, 14336")
        a.e(f"buffer_store_dwordx4 {vr(T+4,4)}, v{V_SV}, {sr(S_WS,4)}, s{S_T0} offen {stflags}"); vm.issue()
    elif kind == "F":
        for i in range(16):
            a.e(f"v_max_f32 v{A0+i}, 0, v{A0+i}")
        for i in range(16):
            a.e(f"v_mul_f32 v{A0+i}, v{A0+i}, v{A1+i}")
        for k in range(8):
            a.e(f"v_cvt_pk_bf16_f32 v{T+k}, v{A0+2*k}, v{A0+2*k+1}")
            if k == 3:
                a.e(f"buffer_store_dwordx4 {vr(T,4)}, v{V_SH}, {sr(S_WS,4)}, s{ob} offen {stflags}"); vm.issue()
        a.e(f"buffer_store_dwordx4 {vr(T+4,4)}, v{V_SH}, {sr(S_WS,4)}, s{ob} offen offset:1024 {stflags}"); vm.issue()
    elif kind == "G":
        a.e(f"v_mul_f32 v{T}, {f2u(-math.log2(math.e)):#x}, v{A0}", f"v_exp_f32 v{T}, v{T}", f"v_add_f32 v{T}, 1.0, v{T}",
            f"v_rcp_f32 v{T}, v{T}", f"s_mov_b32 s{S_T0}, {WS_G}")
        a.e("s_nop 0")
        a.e(f"buffer_store_dword v{T}, v{V_T1}, {sr(S_WS,4)}, s{S_T0} offen {stflags}"); vm.issue()

def ab_program(a, kinds, stflags=""):
    X, ACC, FR = AB["X"], AB["ACC"], AB["FR"]
    vm, lg = Vm(), Lgkm()
    stages = []
    for gi, kind in enumerate(kinds):
        if kind == "G":
            stages.append(dict(gi=gi, c=0, kind=kind, x=False))
        else:
            for c in range(7):
                stages.append(dict(gi=gi, c=c, kind=kind, x=(gi == 0)))
    mf = []
    for si, st in enumerate(stages):
        ks = range(28) if st["kind"] == "G" else range(4 * st["c"], 4 * st["c"] + 4)
        for s in ks:
            for tile in range(2 if st["kind"] == "F" else 1):
                mf.append(dict(si=si, s=s, tile=tile, kind=st["kind"], gi=st["gi"]))
    free = list(range(NSLOT))
    state = dict(next_dma=0)
    def issue_dma(si):
        st = stages[si]
        gi, c, kind = st["gi"], st["c"], st["kind"]
        if st["x"]:
            st["xs"] = free.pop(0) * 16384
            a.e(f"s_add_u32 m0, s{S_W2K}, {st['xs']}", f"s_add_u32 s{S_T0}, s{S_XOFF}, {c*128}")
            a.e(f"buffer_load_dwordx4 v{V_X0}, {sr(S_X,4)}, s{S_T0} offen lds"); vm.issue()
            a.e(f"s_add_u32 m0, s{S_W2K}, {st['xs']+1024}", "s_nop 0")
            a.e(f"buffer_load_dwordx4 v{V_X1}, {sr(S_X,4)}, s{S_T0} offen lds"); vm.issue()
        st["ws"] = free.pop(0) * 16384
        if kind == "G":
            a.e(f"s_add_u32 m0, s{S_W1K}, {st['ws']}", "s_nop 0")
            a.e(f"buffer_load_dwordx4 v{V_SH}, {sr(S_GW,4)}, 0 offen lds"); st["t"] = vm.issue()
        elif kind == "F":
            a.e(f"s_add_u32 m0, s{S_W1K}, {st['ws']}", f"s_add_u32 s{S_T0}, s{S_COL+gi}, {c*64*3584}")
            a.e(f"buffer_load_dwordx4 v{V_WF}, {sr(S_WG,4)}, s{S_T0} offen lds"); vm.issue()
            a.e(f"s_add_u32 m0, s{S_W1K}, {st['ws']+8192}", "s_nop 0")
            a.e(f"buffer_load_dwordx4 v{V_WF}, {sr(S_WU,4)}, s{S_T0} offen lds"); st["t"] = vm.issue()
        else:
            a.e(f"s_add_u32 m0, s{S_W1K}, {st['ws']}", f"s_add_u32 s{S_T0}, s{S_COL+gi}, {c*64*2688}")
            a.e(f"buffer_load_dwordx4 v{V_WQ}, {sr(S_WQ,4)}, s{S_T0} offen lds"); st["t"] = vm.issue()
    def fill():
        while state["next_dma"] < len(stages):
            st = stages[state["next_dma"]]
            if len(free) < (2 if st["x"] else 1):
                break
            issue_dma(state["next_dma"]); state["next_dma"] += 1
    def reads(m):
        e = mf[m]; st = stages[e["si"]]
        first_of_stage = (m == 0 or mf[m-1]["si"] != e["si"])
        if first_of_stage:
            si = e["si"]
            vm.wait(a, st["t"])
            a.e("s_barrier")
            if si >= 2:
                o = stages[si - 2]
                if o["x"]: free.append(o["xs"] // 16384)
                free.append(o["ws"] // 16384)
            fill()
            if st["x"]:
                for q in range(4):
                    a.e(f"v_add_u32 v{V_XC+q}, {st['xs']}, v{V_XR+q}")
            if st["kind"] == "G":
                a.e(f"v_lshrrev_b32 v{V_XC}, 5, v{V_LANE}", f"v_lshlrev_b32 v{V_XC}, 4, v{V_XC}",
                    f"s_add_u32 s{S_T0}, s{S_W1K}, {st['ws']}", f"v_add_u32 v{V_XC}, s{S_T0}, v{V_XC}")
        f = FR + 4 * (m % NFR)
        if st["x"] and e["tile"] == 0:
            a.e(f"ds_read_b128 {vr(X+4*e['s'],4)}, v{V_XC + e['s'] % 4}"); lg.issue()
        if st["kind"] == "G":
            a.e(f"ds_read_b128 {vr(f,4)}, v{V_XC} offset:{32*e['s']}"); e["t"] = lg.issue()
        else:
            for u in range(2):
                off = st["ws"] + e["tile"] * 8192 + (16 * (e["s"] % 4) + 4 * u) * 128
                a.e(f"ds_read_b64_tr_b16 {vr(f+2*u,2)}, v{V_TR + off // 65536} offset:{off % 65536}"); e["t"] = lg.issue()
    fill()
    for m in range(PD):
        reads(m)
    for m, e in enumerate(mf):
        lg.wait(a, e["t"])
        f = FR + 4 * (m % NFR)
        acc = ACC + 16 * e["tile"]
        cin = "0" if e["s"] == 0 else vr(acc, 16)
        xa = vr(X + 4 * e["s"], 4)
        if e["kind"] == "V":
            a.e(f"{MFMA} {vr(acc,16)}, {xa}, {vr(f,4)}, {cin}")
        else:
            a.e(f"{MFMA} {vr(acc,16)}, {vr(f,4)}, {xa}, {cin}")
        if m + PD < len(mf):
            reads(m + PD)
        if m + 1 == len(mf) or mf[m + 1]["gi"] != e["gi"]:
            ab_epilogue(a, vm, e["gi"], e["kind"], stflags)

def gen_k1(a):
    a.label("k1_kernel")
    a.e("s_cmp_ge_u32 s2, 256", "s_cbranch_scc1 L_k1_end")
    stamp_start(a)
    ab_prologue(a)
    N = 88
    a.e(f"s_cmp_lt_u32 s{S_J}, 12", "s_cbranch_scc1 L_k1_A", f"s_cmp_eq_u32 s{S_J}, 12", "s_cbranch_scc1 L_k1_B",
        f"s_cmp_eq_u32 s{S_J}, 15", "s_cbranch_scc1 L_k1_D")
    for lab, kinds in (("C", ["V", "V", "F"]), ("D", ["V", "V", "F", "G"])):
        a.label(f"L_k1_{lab}")
        a.e(f"s_lshl_b32 s{N}, s{S_J}, 1", f"s_sub_u32 s{N}, s{N}, 11"); ab_group_params(a, 0, "V", N)
        a.e(f"s_add_u32 s{N}, s{N}, 1"); ab_group_params(a, 1, "V", N)
        a.e(f"s_add_u32 s{N}, s{S_J}, 12"); ab_group_params(a, 2, "F", N)
        ab_program(a, kinds)
        stamp_end(a, 0)
        a.e("s_endpgm")
    a.label("L_k1_B")
    a.e(f"s_mov_b32 s{N}, 12"); ab_group_params(a, 0, "QK", N)
    a.e(f"s_mov_b32 s{N}, 13"); ab_group_params(a, 1, "QK", N)
    a.e(f"s_mov_b32 s{N}, 14"); ab_group_params(a, 2, "V", N)
    a.e(f"s_mov_b32 s{N}, 24"); ab_group_params(a, 3, "F", N)
    ab_program(a, ["QK", "QK", "V", "F"])
    stamp_end(a, 0)
    a.e("s_endpgm")
    a.label("L_k1_A")
    ab_group_params(a, 0, "QK", S_J)
    a.e(f"s_lshl_b32 s{N}, s{S_J}, 1"); ab_group_params(a, 1, "F", N)
    a.e(f"s_add_u32 s{N}, s{N}, 1"); ab_group_params(a, 2, "F", N)
    ab_program(a, ["QK", "F", "F"])
    stamp_end(a, 0)
    a.label("L_k1_end")
    a.e("s_endpgm")

CQ, CO, CS, CP, CKV = 16, 48, 112, 144, 160
C_VK, C_VV, C_G, C_T = 2, 3, 4, 224
SC_HEAD, SC_QT, SC_K, SC_V0, SC_V1, SC_IT, SC_7J = 66, 67, 68, 72, 73, 74, 75
EXEC_V = 0x0FFFFFFF

def c_loads(a, buf, imm):
    kb, vb = CKV + 16 * buf, CKV + 16 * buf + 8
    for idx in range(3):
        a.e(f"buffer_load_dwordx2 {vr(kb+2*idx,2)}, v{C_VK}, {sr(S_KV,4)}, s{SC_K+idx} offen offset:{imm}")
    a.e("s_mov_b32 exec_hi, 0")
    a.e(f"buffer_load_dwordx2 {vr(kb+6,2)}, v{C_VK}, {sr(S_KV,4)}, s{SC_K+3} offen offset:{imm}")
    a.e(f"s_mov_b64 exec, s[76:77]")
    a.e(f"buffer_load_dwordx4 {vr(vb,4)}, v{C_VV}, {sr(S_KV,4)}, s{SC_V0} offen")
    a.e(f"buffer_load_dwordx4 {vr(vb+4,4)}, v{C_VV}, {sr(S_KV,4)}, s{SC_V1} offen")
    a.e("s_mov_b64 exec, -1")
    a.e(f"s_add_u32 s{SC_V0}, s{SC_V0}, {V_TB}", f"s_add_u32 s{SC_V1}, s{SC_V1}, {V_TB}")

def c_smfma(a, i, half):
    kt, qs = (i // 4) % 4, i % 4
    S = CS + 16 * (i % 2)
    kb = CKV + 16 * kt + 4 * half
    q = CQ + 8 * qs + 4 * half
    a.e(f"{MFMA} {vr(S,16)}, {vr(kb,4)}, {vr(q,4)}, {'0' if half == 0 else vr(S,16)}")
def c_pv(a, i, half):
    i %= 16
    kt, qs = i // 4, i % 4
    O = CO + 16 * qs
    vb = CKV + 16 * kt + 8 + 4 * half
    P = CP + 8 * (i % 2) + 4 * half
    a.e(f"{MFMA} {vr(O,16)}, {vr(vb,4)}, {vr(P,4)}, {vr(O,16)}")

def c_step(a, i):
    S, P = CS + 16 * (i % 2), CP + 8 * (i % 2)
    ex = lambda k: a.e(f"v_exp_f32 v{S+k}, v{S+k}")
    cv = lambda k: a.e(f"v_cvt_pk_bf16_f32 v{P+k}, v{S+2*k}, v{S+2*k+1}")
    if i % 4 == 3:
        a.e("s_waitcnt vmcnt(12)")
    c_smfma(a, i + 1, 0)
    for k in range(4): ex(k)
    c_smfma(a, i + 1, 1)
    ex(4); ex(5); cv(0); cv(1); ex(6); ex(7)
    c_pv(a, i - 1, 0)
    ex(8); ex(9); cv(2); cv(3); ex(10); ex(11)
    c_pv(a, i - 1, 1)
    if i % 4 == 0:
        kt = i // 4
        if kt == 1:
            a.e(f"s_cmp_eq_u32 s{SC_IT}, 1", f"s_cselect_b32 s{S_KV+2}, 0, s{S_KV+2}")
        c_loads(a, (kt + 3) % 4, 256 * (kt + 3))
    for k in range(12, 16): ex(k)
    cv(4); cv(5); cv(6); cv(7)

def gen_k2(a, stflags=""):
    a.label("k2_kernel")
    a.e("s_cmp_ge_u32 s2, 256", "s_cbranch_scc1 L_k2_end")
    stamp_start(a)
    a.e("s_load_dwordx2 s[86:87], s[0:1], 80")
    T = C_T
    a.e(f"s_and_b32 s{S_T0}, s2, 7", f"s_lshr_b32 s{S_T1}, s2, 3", f"s_and_b32 s{SC_HEAD}, s{S_T1}, 1",
        f"s_lshl_b32 s{SC_HEAD}, s{SC_HEAD}, 3", f"s_add_u32 s{SC_HEAD}, s{SC_HEAD}, s{S_T0}", f"s_lshr_b32 s{SC_QT}, s{S_T1}, 1")
    a.e(f"v_lshrrev_b32 v{T}, 6, v0", f"v_and_b32 v{V_LANE}, 63, v0", f"v_readfirstlane_b32 s{S_W}, v{T}")
    a.e(f"s_mul_i32 s{SC_7J}, s{SC_HEAD}, 7")
    L = V_LANE
    a.e(f"v_lshrrev_b32 v{T}, 5, v{L}", f"v_and_b32 v{T+1}, 31, v{L}")
    a.e(f"v_lshlrev_b32 v{C_VK}, 3, v{T+1}", f"v_lshl_add_u32 v{C_VK}, v{T}, 15, v{C_VK}")
    a.e(f"s_mul_i32 s{S_T0}, s{SC_HEAD}, 448", f"v_mul_u32_u24 v{C_VV}, 7168, v{T}", f"v_lshl_add_u32 v{C_VV}, v{T+1}, 4, v{C_VV}",
        f"v_add_u32 v{C_VV}, s{S_T0}, v{C_VV}")
    a.e(f"s_mov_b32 s76, {EXEC_V:#x}", f"s_mov_b32 s77, {EXEC_V:#x}")
    a.e("s_waitcnt lgkmcnt(0)")
    srd(a, S_WS, 86, WS_END); srd(a, S_KV, 86, WS_END)
    for qs in range(4):
        a.e(f"v_mov_b32 v{CQ+8*qs+6}, 0", f"v_mov_b32 v{CQ+8*qs+7}, 0")
    for b in range(4):
        a.e(f"v_mov_b32 v{CKV+16*b+6}, 0x3f803f80", f"v_mov_b32 v{CKV+16*b+7}, 0x00003f80")
        for k in range(8):
            a.e(f"v_mov_b32 v{CKV+16*b+8+k}, 0x3f803f80")
    for idx, gofs in enumerate((0, 1, 4, 5)):
        a.e(f"s_add_u32 s{S_T0}, s{SC_7J}, {gofs}", f"s_lshl_b32 s{S_T0}, s{S_T0}, 14", f"s_lshl_b32 s{S_T1}, s{SC_QT}, 10",
            f"s_add_u32 s{S_T0}, s{S_T0}, s{S_T1}")
        if idx == 3: a.e("s_mov_b32 exec_hi, 0")
        for qs in range(4):
            a.e(f"buffer_load_dwordx2 {vr(CQ+8*qs+2*idx,2)}, v{C_VK}, {sr(S_WS,4)}, s{S_T0} offen offset:{256*qs}")
        if idx == 3: a.e("s_mov_b64 exec, -1")
        a.e(f"s_add_u32 s{SC_K+idx}, s{SC_7J}, {112+gofs}", f"s_lshl_b32 s{SC_K+idx}, s{SC_K+idx}, 14", f"s_lshl_b32 s{S_T1}, s{S_W}, 12",
            f"s_add_u32 s{SC_K+idx}, s{SC_K+idx}, s{S_T1}")
    a.e(f"s_mul_i32 s{SC_V0}, s{S_W}, {16*V_TB}", f"s_add_u32 s{SC_V0}, s{SC_V0}, {WS_V}", f"s_add_u32 s{SC_V1}, s{SC_V0}, 14336")
    for kt in range(3):
        c_loads(a, kt, 256 * kt)
    a.e(f"s_lshl_b32 s{S_TB}, s{SC_QT}, 2", f"s_add_u32 s{S_TB}, s{S_TB}, s{S_W}", f"s_lshl_b32 s{S_T0}, s{S_TB}, 7",
        f"s_add_u32 s{S_T0}, s{S_T0}, {WS_G}", f"v_lshlrev_b32 v{T+2}, 2, v{T+1}")
    for i in range(64):
        a.e(f"v_mov_b32 v{CO+i}, 0")
    for i in range(8):
        a.e(f"v_mov_b32 v{CP+8+i}, 0")
    a.e(f"s_mov_b32 s{SC_IT}, 4")
    a.e("s_waitcnt vmcnt(12)")
    c_smfma(a, 0, 0); c_smfma(a, 0, 1)
    a.e("s_nop 7")
    a.raw(".p2align 3")
    a.label("L_c_loop")
    for i in range(16):
        c_step(a, i)
    a.e(f"v_add_u32 v{C_VK}, 1024, v{C_VK}")
    a.e(f"s_sub_u32 s{SC_IT}, s{SC_IT}, 1", f"s_cmp_lg_u32 s{SC_IT}, 0", "s_cbranch_scc1 L_c_loop")
    c_pv(a, 15, 0); c_pv(a, 15, 1)
    a.e(f"buffer_load_dword v{C_G}, v{T+2}, {sr(S_WS,4)}, s{S_T0} offen")
    a.e(f"v_lshlrev_b32 v{T+3}, 4, v{L}", f"s_lshl_b32 s{S_T1}, s{S_W}, 12", f"v_add_u32 v{T+4}, s{S_T1}, v{T+3}")
    for o in range(4):
        for q in range(4):
            a.e(f"ds_write_b128 v{T+4}, {vr(CO+16*o+4*q,4)} offset:{o*16384+q*1024}")
    a.e("s_waitcnt lgkmcnt(0)", "s_barrier")
    a.e(f"s_lshl_b32 s{S_T1}, s{S_W}, 14", f"v_add_u32 v{T+4}, s{S_T1}, v{T+3}")
    for w in range(4):
        for q in range(4):
            a.e(f"ds_read_b128 {vr(CO+16*w+4*q,4)}, v{T+4} offset:{w*4096+q*1024}")
    a.e("s_waitcnt lgkmcnt(0)")
    for i in range(16):
        a.e(f"v_add_f32 v{CO+i}, v{CO+i}, v{CO+16+i}", f"v_add_f32 v{CO+32+i}, v{CO+32+i}, v{CO+48+i}")
    for i in range(16):
        a.e(f"v_add_f32 v{CO+i}, v{CO+i}, v{CO+32+i}")
    a.e(f"v_mov_b32 v{T+5}, v{CO+12}", f"v_mov_b32 v{T+6}, v{CO+12}", f"v_permlane32_swap_b32 v{T+5}, v{T+6}")
    a.e(f"v_rcp_f32 v{T+6}, v{T+6}", "s_waitcnt vmcnt(0)", f"v_mul_f32 v{T+6}, v{T+6}, v{C_G}")
    for i in range(16):
        a.e(f"v_mul_f32 v{CO+i}, v{CO+i}, v{T+6}")
    a.e(f"s_mul_i32 s{S_T0}, s{S_TB}, {HO_TB}", f"s_add_u32 s{S_T0}, s{S_T0}, {WS_HO + 112*1024}")
    for g in range(4):
        a.e(f"s_add_u32 s{S_T1}, s{SC_7J}, {2*g}", f"v_add_u32 v{T+7}, s{S_T1}, v{T}",
            f"v_lshrrev_b32 v{T+8}, 2, v{T+7}", f"v_lshlrev_b32 v{T+8}, 10, v{T+8}",
            f"v_and_b32 v{T+9}, 1, v{T+7}", f"v_lshl_add_u32 v{T+8}, v{T+9}, 9, v{T+8}",
            f"v_bfe_u32 v{T+9}, v{T+7}, 1, 1", f"v_lshl_add_u32 v{T+8}, v{T+9}, 3, v{T+8}",
            f"v_lshl_add_u32 v{T+10+g}, v{T+1}, 4, v{T+8}")
        a.e(f"v_cvt_pk_bf16_f32 v{CP+2*g}, v{CO+4*g}, v{CO+4*g+1}", f"v_cvt_pk_bf16_f32 v{CP+2*g+1}, v{CO+4*g+2}, v{CO+4*g+3}")
        if g == 3: a.e("s_mov_b32 exec_hi, 0")
        a.e(f"buffer_store_dwordx2 {vr(CP+2*g,2)}, v{T+10+g}, {sr(S_WS,4)}, s{S_T0} offen {stflags}")
    stamp_end(a, 1)
    a.label("L_k2_end")
    a.e("s_endpgm")

DACC, DB, DA = 16, 80, 144
D_VW, D_VB, D_TR, D_G, D_T = 2, 3, 4, 6, 160
SD_RT, SD_CT, SD_B0, SD_B1, SD_W, SD_LDS = 66, 67, 68, 69, 70, 71
DRING = 8
D_RED = 65536

def gen_k3(a):
    a.label("k3_kernel")
    a.e("s_cmp_ge_u32 s2, 224", "s_cbranch_scc1 L_k3_end")
    stamp_start(a)
    a.e("s_load_dwordx2 s[76:77], s[0:1], 16", "s_load_dwordx2 s[78:79], s[0:1], 48", "s_load_dwordx2 s[80:81], s[0:1], 64",
        "s_load_dwordx2 s[86:87], s[0:1], 80")
    T, L = D_T, V_LANE
    a.e(f"s_and_b32 s{S_T0}, s2, 7", f"s_lshr_b32 s{S_T1}, s2, 3", f"s_mul_i32 s{SD_RT}, s{S_T1}, 37", f"s_lshr_b32 s{SD_RT}, s{SD_RT}, 8",
        f"s_mul_i32 s{SD_CT}, s{SD_RT}, 7", f"s_sub_u32 s{SD_CT}, s{S_T1}, s{SD_CT}", f"s_lshl_b32 s{S_T0}, s{S_T0}, 2",
        f"s_add_u32 s{SD_RT}, s{SD_RT}, s{S_T0}")
    a.e(f"v_lshrrev_b32 v{T}, 6, v0", f"v_and_b32 v{L}, 63, v0", f"v_readfirstlane_b32 s{S_W}, v{T}")
    a.e(f"v_lshrrev_b32 v{T}, 3, v{L}", f"v_and_b32 v{T+1}, 7, v{L}", f"v_bfe_u32 v{T+2}, v{L}, 4, 1", f"v_lshlrev_b32 v{T+2}, 2, v{T+2}",
        f"v_xor_b32 v{T+2}, v{T+2}, v{T+1}", f"v_mul_u32_u24 v{D_VW}, 896, v{T}", f"v_lshl_add_u32 v{D_VW}, v{T+2}, 4, v{D_VW}")
    a.e(f"v_lshlrev_b32 v{D_VB}, 4, v{L}")
    a.e(f"s_lshl_b32 s{SD_LDS}, s{S_W}, 14")
    a.e(f"v_lshrrev_b32 v{T}, 5, v{L}", f"v_bfe_u32 v{T+1}, v{L}, 2, 2", f"v_lshl_add_u32 v{T+2}, v{T}, 2, v{T+1}",
        f"v_lshlrev_b32 v{D_TR}, 7, v{T+2}", f"v_lshrrev_b32 v{T+1}, 1, v{T+1}", f"v_lshl_add_u32 v{D_TR}, v{T+1}, 6, v{D_TR}",
        f"v_bfe_u32 v{T+1}, v{L}, 4, 1", f"v_lshl_add_u32 v{D_TR}, v{T+1}, 5, v{D_TR}", f"v_and_b32 v{T+1}, 3, v{L}",
        f"v_lshl_add_u32 v{D_TR}, v{T+1}, 3, v{D_TR}", f"v_add_u32 v{D_TR}, s{SD_LDS}, v{D_TR}", f"v_xor_b32 v{D_TR+1}, 64, v{D_TR}")
    a.e("s_waitcnt lgkmcnt(0)")
    srd(a, S_WO, 76, 448 * 896); srd(a, S_WD, 78, 1792 * 896); srd(a, S_OUT, 80, 2048 * 896); srd(a, S_WS, 86, WS_END)
    vm, lg = Vm(), Lgkm()
    a.e(f"v_and_b32 v{T+1}, 31, v{L}", f"v_lshlrev_b32 v{T+2}, 2, v{T+1}", f"s_lshl_b32 s{S_T0}, s{SD_RT}, 8", f"s_add_u32 s{S_T0}, s{S_T0}, {WS_G}")
    a.e(f"buffer_load_dword v{D_G}, v{T+2}, {sr(S_WS,4)}, s{S_T0} offen"); vm.issue()
    a.e(f"buffer_load_dword v{D_G+1}, v{T+2}, {sr(S_WS,4)}, s{S_T0} offen offset:128"); vm.issue()
    a.e(f"s_mul_i32 s{SD_B0}, s{SD_RT}, {2*HO_TB}", f"s_mul_i32 s{S_T0}, s{S_W}, {28*1024}", f"s_add_u32 s{SD_B0}, s{SD_B0}, s{S_T0}",
        f"s_add_u32 s{SD_B0}, s{SD_B0}, {WS_HO}", f"s_add_u32 s{SD_B1}, s{SD_B0}, {HO_TB}")
    a.e(f"s_mul_i32 s{SD_W}, s{S_W}, {28*16*896}", f"s_lshl_b32 s{S_T0}, s{SD_CT}, 7", f"s_add_u32 s{SD_W}, s{SD_W}, s{S_T0}")
    NK = 35
    tick = {}
    def loads(n):
        if n == 28:
            a.e(f"s_mul_i32 s{SD_B0}, s{SD_RT}, {2*HO_TB}", f"s_mul_i32 s{S_T0}, s{S_W}, {7*1024}", f"s_add_u32 s{SD_B0}, s{SD_B0}, s{S_T0}",
                f"s_add_u32 s{SD_B0}, s{SD_B0}, {WS_HO + 112*1024}", f"s_add_u32 s{SD_B1}, s{SD_B0}, {HO_TB}")
            a.e(f"s_mul_i32 s{SD_W}, s{S_W}, {7*16*896}", f"s_lshl_b32 s{S_T0}, s{SD_CT}, 7", f"s_add_u32 s{SD_W}, s{SD_W}, s{S_T0}")
        k = n if n < 28 else n - 28
        w = S_WD if n < 28 else S_WO
        slot = n % DRING
        a.e(f"s_add_u32 m0, s{SD_LDS}, {slot*2048}", f"s_add_u32 s{S_T0}, s{SD_W}, {k*16*896}")
        a.e(f"buffer_load_dwordx4 v{D_VW}, {sr(w,4)}, s{S_T0} offen lds"); vm.issue()
        a.e(f"s_add_u32 m0, s{SD_LDS}, {slot*2048+1024}", f"s_add_u32 s{S_T0}, s{S_T0}, {8*896}")
        a.e(f"buffer_load_dwordx4 v{D_VW}, {sr(w,4)}, s{S_T0} offen lds"); vm.issue()
        if k % 4 == 0 and k > 0:
            a.e(f"s_add_u32 s{SD_B0}, s{SD_B0}, 4096", f"s_add_u32 s{SD_B1}, s{SD_B1}, 4096")
        a.e(f"buffer_load_dwordx4 {vr(DB+8*slot,4)}, v{D_VB}, {sr(S_WS,4)}, s{SD_B0} offen offset:{(k%4)*1024}"); vm.issue()
        a.e(f"buffer_load_dwordx4 {vr(DB+8*slot+4,4)}, v{D_VB}, {sr(S_WS,4)}, s{SD_B1} offen offset:{(k%4)*1024}"); tick[n] = vm.issue()
    ltick = {}
    def areads(n):
        vm.wait(a, tick[n])
        slot = n % DRING
        for nb in range(2):
            for u in range(2):
                a.e(f"ds_read_b64_tr_b16 {vr(DA+8*(n%2)+4*nb+2*u,2)}, v{D_TR+nb} offset:{slot*2048+u*1024}"); ltick[(n, nb)] = lg.issue()
    for n in range(DRING):
        loads(n)
    areads(0)
    for n in range(NK):
        if n + 1 < NK:
            areads(n + 1)
        if n == 28:
            a.e(f"v_sub_f32 v{D_G}, 1.0, v{D_G}", f"v_sub_f32 v{D_G+1}, 1.0, v{D_G+1}")
            for nb in range(2):
                for tb in range(2):
                    for i in range(16):
                        r = DACC + 32 * nb + 16 * tb + i
                        a.e(f"v_mul_f32 v{r}, v{r}, v{D_G+tb}")
        slot = n % DRING
        for nb in range(2):
            lg.wait(a, ltick[(n, nb)])
            for tb in range(2):
                acc = DACC + 32 * nb + 16 * tb
                a.e(f"{MFMA} {vr(acc,16)}, {vr(DA+8*(n%2)+4*nb,4)}, {vr(DB+8*slot+4*tb,4)}, {'0' if n == 0 else vr(acc,16)}")
        if n + DRING < NK:
            loads(n + DRING)
    a.e(f"v_and_b32 v{T+1}, 31, v{L}", f"v_lshrrev_b32 v{T}, 5, v{L}", f"v_mul_u32_u24 v{T+2}, 272, v{T+1}", f"v_lshl_add_u32 v{T+2}, v{T}, 4, v{T+2}",
        f"s_mul_i32 s{S_T0}, s{S_W}, 17408", f"s_add_u32 s{S_T0}, s{S_T0}, {D_RED}", f"v_add_u32 v{T+2}, s{S_T0}, v{T+2}")
    for nb in range(2):
        for tb in range(2):
            for g in range(4):
                a.e(f"ds_write_b128 v{T+2}, {vr(DACC+32*nb+16*tb+4*g,4)} offset:{tb*32*272 + nb*128 + g*32}")
    a.e("s_waitcnt lgkmcnt(0)", "s_barrier")
    a.e(f"v_lshrrev_b32 v{T}, 3, v0", f"v_and_b32 v{T+1}, 7, v0", f"v_mul_u32_u24 v{T+2}, 272, v{T}", f"v_lshl_add_u32 v{T+2}, v{T+1}, 5, v{T+2}",
        f"v_add_u32 v{T+2}, {D_RED}, v{T+2}")
    a.e(f"v_mul_u32_u24 v{T+3}, 896, v{T}", f"v_lshl_add_u32 v{T+3}, v{T+1}, 4, v{T+3}")
    a.e(f"s_mul_i32 s{S_T0}, s{SD_RT}, {64*896}", f"s_lshl_b32 s{S_T1}, s{SD_CT}, 7", f"s_add_u32 s{S_T0}, s{S_T0}, s{S_T1}",
        f"s_add_u32 s{S_T1}, s{S_T0}, {32*896}")
    for p in range(2):
        for w in range(4):
            for q in range(2):
                a.e(f"ds_read_b128 {vr(DACC+32*p+8*w+4*q,4)}, v{T+2} offset:{w*17408 + p*32*272 + q*16}")
    for p in range(2):
        a.e(f"s_waitcnt lgkmcnt({8 if p == 0 else 0})")
        b = DACC + 32 * p
        for i in range(8):
            a.e(f"v_add_f32 v{b+i}, v{b+i}, v{b+8+i}", f"v_add_f32 v{b+16+i}, v{b+16+i}, v{b+24+i}")
        for i in range(8):
            a.e(f"v_add_f32 v{b+i}, v{b+i}, v{b+16+i}")
        for k in range(4):
            a.e(f"v_cvt_pk_bf16_f32 v{b+8+k}, v{b+2*k}, v{b+2*k+1}")
        a.e(f"buffer_store_dwordx4 {vr(b+8,4)}, v{T+3}, {sr(S_OUT,4)}, s{S_T0 if p == 0 else S_T1} offen")
    stamp_end(a, 2)
    a.label("L_k3_end")
    a.e("s_endpgm")

def kd(name, vgpr, sgpr=102):
    acc = (vgpr + 3) // 4 * 4
    return f""".amdhsa_kernel {name}
  .amdhsa_next_free_vgpr {vgpr}
  .amdhsa_next_free_sgpr {sgpr}
  .amdhsa_accum_offset {acc}
  .amdhsa_group_segment_fixed_size 0
  .amdhsa_kernarg_size 88
  .amdhsa_user_sgpr_count 2
  .amdhsa_user_sgpr_kernarg_segment_ptr 1
  .amdhsa_system_sgpr_workgroup_id_x 1
.end_amdhsa_kernel
"""

def main(out):
    head = open("cdna_kernels/" + NAME + ".s.ref").read().split("; Override launch")[0]
    launches = [("k1_kernel", 256, 512, 163840), ("k2_kernel", 256, 256, 65536), ("k3_kernel", 224, 256, 65536 + 4 * 17408)]
    txt = head
    for k, g, b, l in launches:
        txt += f"; @launch kernel={k} grid=({g},1,1) block=({b},1,1) lds={l}\n"
    txt += '.amdgcn_target "amdgcn-amd-amdhsa--gfx950"\n.text\n'
    for name, fn in (("k1_kernel", gen_k1), ("k2_kernel", gen_k2), ("k3_kernel", gen_k3)):
        a = Asm()
        fn(a)
        lines = fix_hazards(a.lines)
        if name == "k2_kernel":
            check_loop(lines, "L_c_loop")
        txt += f".globl {name}\n.p2align 8\n.type {name},@function\n" + "\n".join(lines) + "\n"
    txt += '.section .rodata,"a"\n'
    for name, v in (("k1_kernel", 216), ("k2_kernel", 240), ("k3_kernel", 168)):
        txt += ".p2align 6\n" + kd(name, v)
    open(out, "w").write(txt)

if __name__ == "__main__":
    if "--stamp" in sys.argv:
        STAMP = True; sys.argv.remove("--stamp")
    main(sys.argv[1] if len(sys.argv) > 1 else "cdna_kernels/" + NAME + ".s")
```

```python
import sys, math, struct
from asmlib import *

NAME = "gated_mix__mha_block__glu_gated_reglu__prompt"
WS_QK, WS_V, WS_HO, WS_G, WS_END = 0, 0x380000, 0x540000, 0xE00000, 0xE20000
HO_TB = 140 * 1024
V_TB = 4 * 448 * 16
QSCALE = (28 ** -0.5) * math.log2(math.e)
def f2u(x): return struct.unpack("<I", struct.pack("<f", x))[0]

S_X, S_WQ, S_WG, S_WU, S_WS, S_WD, S_WO, S_OUT, S_GW, S_KV = 8, 12, 16, 20, 24, 28, 32, 36, 40, 44
MFMA = "v_mfma_f32_32x32x16_bf16"

def srd(a, dst, src, nbytes):
    a.e(f"s_mov_b32 s{dst}, s{src}", f"s_and_b32 s{dst+1}, s{src+1}, 0xffff",
        f"s_mov_b32 s{dst+2}, {nbytes:#x}", f"s_mov_b32 s{dst+3}, 0x20000")

STAMP = False
def stamp_start(a):
    if STAMP:
        a.e("s_memrealtime s[92:93]", "s_memtime s[94:95]")
def stamp_mid(a, idx):
    if STAMP:
        a.e("s_memtime s[98:99]", "s_waitcnt lgkmcnt(0)", "s_sub_u32 s98, s98, s94", f"v_writelane_b32 v250, s98, {idx}")
def stamp_end(a, kidx):
    if STAMP:
        a.e("s_waitcnt vmcnt(0)", "s_memrealtime s[96:97]", "s_memtime s[98:99]", "s_load_dwordx2 s[90:91], s[0:1], 72", "s_waitcnt lgkmcnt(0)")
        a.e("s_mov_b64 exec, 1")
        a.e("v_mov_b32 v4, s92", "v_mov_b32 v5, s96", "s_sub_u32 s98, s98, s94", "v_mov_b32 v6, s98", "v_mov_b32 v7, s2")
        a.e(f"s_lshl_b32 s89, s2, 7", f"s_lshl_b32 s88, s{S_W}, 4", "s_add_u32 s89, s89, s88", f"s_add_u32 s89, s89, {WS_END + kidx*256*128}", "v_mov_b32 v8, s89")
        a.e(f"s_mov_b32 s{S_WS+2}, 0x1000000", "s_nop 1")
        a.e(f"buffer_store_dwordx4 v[4:7], v8, {sr(S_WS,4)}, 0 offen")
        a.e("s_mov_b64 exec, 0xffff", f"s_lshl_b32 s89, s2, 9", f"s_lshl_b32 s88, s{S_W}, 6", "s_add_u32 s89, s89, s88", f"s_add_u32 s89, s89, {WS_END + 3*256*128 + kidx*256*512}")
        a.e(f"v_lshlrev_b32 v9, 2, v{V_LANE}", f"buffer_store_dword v250, v9, {sr(S_WS,4)}, s89 offen", "s_mov_b64 exec, 1")
        a.e(f"s_sub_u32 s90, s90, {512*kidx}", "s_subb_u32 s91, s91, 0", f"s_cmp_lg_u32 s2, 5", f"s_cbranch_scc1 L_nodbg{kidx}_{len(a.lines)}")
        lab = a.lines[-1].split()[-1]
        a.e(f"s_cmp_lg_u32 s{S_W}, 0", f"s_cbranch_scc1 {lab}")
        a.e(f"v_mov_b32 v8, {16*kidx}", "global_store_dwordx4 v8, v[4:7], s[90:91]")
        a.label(lab)

class Lgkm:
    def __init__(self): self.n = 0
    def issue(self): self.n += 1; return self.n
    def wait(self, a, ticket):
        k = self.n - ticket
        a.e(f"s_waitcnt lgkmcnt({min(k,15)})")
class Vm:
    def __init__(self): self.n = 0
    def issue(self): self.n += 1; return self.n
    def wait(self, a, ticket):
        k = self.n - ticket
        assert k <= 63, k
        a.e(f"s_waitcnt vmcnt({k})")

AB = dict(X=16, ACC=128, FR=160, T=192)
V_LANE, V_WQ, V_WF, V_X0, V_X1, V_TR, V_XR, V_XC, V_SQ, V_SV, V_SH, V_T0, V_T1 = 1, 2, 3, 4, 5, 6, 208, 212, 9, 10, 11, 12, 13
S_RB, S_J, S_W, S_W1K, S_T0, S_T1, S_XOFF, S_TB, S_CH, S_W2K = 56, 57, 58, 59, 60, 61, 62, 63, 64, 65
S_COL, S_OB, S_SC = 66, 70, 74
PD = 4
NSLOT = 10
NFR = 8

def ab_prologue(a):
    a.e("s_load_dwordx4 s[76:79], s[0:1], 0", "s_load_dwordx4 s[80:83], s[0:1], 32",
        "s_load_dwordx2 s[84:85], s[0:1], 56", "s_load_dwordx2 s[86:87], s[0:1], 80")
    a.e(f"s_and_b32 s{S_T0}, s2, 7", f"s_lshr_b32 s{S_T1}, s2, 3",
        f"s_and_b32 s{S_RB}, s{S_T0}, 1", f"s_lshl_b32 s{S_RB}, s{S_RB}, 3",
        f"s_and_b32 s{S_J}, s{S_T1}, 7", f"s_add_u32 s{S_RB}, s{S_RB}, s{S_J}",
        f"s_lshr_b32 s{S_J}, s{S_T0}, 1", f"s_lshl_b32 s{S_J}, s{S_J}, 2",
        f"s_lshr_b32 s{S_T1}, s{S_T1}, 3", f"s_add_u32 s{S_J}, s{S_J}, s{S_T1}")
    a.e(f"v_lshrrev_b32 v{V_T0}, 6, v0", f"v_and_b32 v{V_LANE}, 63, v0", f"v_readfirstlane_b32 s{S_W}, v{V_T0}")
    a.e(f"s_lshl_b32 s{S_W1K}, s{S_W}, 10", f"s_lshl_b32 s{S_W2K}, s{S_W}, 11", f"s_lshr_b32 s{S_CH}, s{S_W}, 2",
        f"s_and_b32 s{S_T0}, s{S_W}, 3", f"s_lshl_b32 s{S_TB}, s{S_RB}, 2", f"s_add_u32 s{S_TB}, s{S_TB}, s{S_T0}",
        f"s_mul_i32 s{S_XOFF}, s{S_RB}, {128*896}")
    L = V_LANE
    A, B, C = AB["T"], AB["T"] + 1, AB["T"] + 2
    a.e(f"v_lshrrev_b32 v{A}, 3, v{L}", f"v_and_b32 v{B}, 7, v{L}")
    a.e(f"v_bfe_u32 v{C}, v{L}, 4, 1", f"v_lshlrev_b32 v{C}, 2, v{C}", f"v_xor_b32 v{C}, v{C}, v{B}", f"v_lshlrev_b32 v{C}, 4, v{C}")
    a.e(f"s_lshl_b32 s{S_T0}, s{S_W}, 3", f"v_add_u32 v{V_T0}, s{S_T0}, v{A}")
    a.e(f"v_mul_u32_u24 v{V_WQ}, 2688, v{V_T0}", f"v_add_u32 v{V_WQ}, v{V_WQ}, v{C}")
    a.e(f"v_mul_u32_u24 v{V_WF}, 3584, v{V_T0}", f"v_add_u32 v{V_WF}, v{V_WF}, v{C}")
    a.e(f"v_lshrrev_b32 v{C}, 4, v{L}", f"v_xor_b32 v{C}, v{C}, v{B}")
    a.e(f"s_lshl_b32 s{S_T0}, s{S_W}, 4", f"v_add_u32 v{V_T0}, s{S_T0}, v{A}", f"v_mul_u32_u24 v{V_T0}, 896, v{V_T0}")
    a.e(f"v_lshl_add_u32 v{V_X0}, v{C}, 4, v{V_T0}", f"v_xor_b32 v{C}, 4, v{C}", f"v_lshl_add_u32 v{V_X1}, v{C}, 4, v{V_T0}",
        f"v_add_u32 v{V_X1}, {8*896}, v{V_X1}")
    a.e(f"v_lshrrev_b32 v{A}, 5, v{L}", f"v_bfe_u32 v{B}, v{L}, 2, 2", f"v_lshl_add_u32 v{C}, v{A}, 3, v{B}",
        f"v_lshlrev_b32 v{V_TR}, 7, v{C}", f"v_lshrrev_b32 v{B}, 1, v{B}", f"v_xor_b32 v{B}, s{S_CH}, v{B}",
        f"v_lshl_add_u32 v{V_TR}, v{B}, 6, v{V_TR}", f"v_bfe_u32 v{B}, v{L}, 4, 1", f"v_lshl_add_u32 v{V_TR}, v{B}, 5, v{V_TR}",
        f"v_and_b32 v{B}, 3, v{L}", f"v_lshl_add_u32 v{V_TR}, v{B}, 3, v{V_TR}",
        f"v_add_u32 v{V_TR+1}, 0x10000, v{V_TR}", f"v_add_u32 v{V_TR+2}, 0x20000, v{V_TR}")
    a.e(f"v_and_b32 v{B}, 31, v{L}", f"s_and_b32 s{S_T0}, s{S_W}, 3", f"s_lshl_b32 s{S_T0}, s{S_T0}, 5",
        f"v_add_u32 v{C}, s{S_T0}, v{B}", f"v_lshlrev_b32 v{V_T0}, 7, v{C}", f"v_bfe_u32 v{V_T1}, v{L}, 1, 3",
        f"v_xor_b32 v{V_T1}, v{V_T1}, v{A}")
    for e in range(4):
        a.e(f"v_xor_b32 v{V_XR+e}, {2*e}, v{V_T1}", f"v_lshl_add_u32 v{V_XR+e}, v{V_XR+e}, 4, v{V_T0}")
    a.e(f"s_lshl_b32 s{S_T0}, s{S_TB}, 5", f"v_add_u32 v{C}, s{S_T0}, v{B}", f"v_lshlrev_b32 v{V_SQ}, 3, v{C}",
        f"v_lshl_add_u32 v{V_SQ}, v{A}, 14, v{V_SQ}")
    a.e(f"v_lshlrev_b32 v{V_T1}, 2, v{C}")
    a.e(f"v_mul_u32_u24 v{V_SV}, 7168, v{A}", f"v_lshl_add_u32 v{V_SV}, v{B}, 4, v{V_SV}")
    a.e(f"v_lshlrev_b32 v{V_SH}, 4, v{L}")
    stamp_mid(a, 6)
    a.e("s_waitcnt lgkmcnt(0)")
    srd(a, S_X, 76, 2048 * 896); srd(a, S_WQ, 78, 448 * 2688); srd(a, S_WG, 80, 448 * 3584); srd(a, S_WU, 82, 448 * 3584)
    srd(a, S_GW, 84, 896); srd(a, S_WS, 86, WS_END)

def ab_group_params(a, gi, kind, nreg):
    col, ob, sc = S_COL + gi, S_OB + gi, S_SC
    if kind == "G":
        return
    a.e(f"s_lshl_b32 s{col}, s{nreg}, 7")
    if kind == "QK":
        a.e(f"s_lshl_b32 s{ob}, s{nreg}, 1", f"s_add_u32 s{ob}, s{ob}, s{S_CH}", f"s_lshl_b32 s{ob}, s{ob}, 17")
        a.e(f"s_cmp_lt_u32 s{nreg}, 7", f"s_cselect_b32 s{sc}, {f2u(QSCALE):#x}, 1.0")
    elif kind == "V":
        a.e(f"s_lshl_b32 s{ob}, s{nreg}, 1", f"s_add_u32 s{ob}, s{ob}, s{S_CH}", f"s_lshl_b32 s{ob}, s{ob}, 9",
            f"s_mul_i32 s{S_T0}, s{S_TB}, {V_TB}", f"s_add_u32 s{ob}, s{ob}, s{S_T0}", f"s_add_u32 s{ob}, s{ob}, {WS_V - 14*1024}")
    elif kind == "F":
        a.e(f"s_lshl_b32 s{ob}, s{nreg}, 1", f"s_add_u32 s{ob}, s{ob}, s{S_CH}", f"s_lshl_b32 s{ob}, s{ob}, 11",
            f"s_mul_i32 s{S_T0}, s{S_TB}, {HO_TB}", f"s_add_u32 s{ob}, s{ob}, s{S_T0}", f"s_add_u32 s{ob}, s{ob}, {WS_HO}")

def ab_epilogue(a, vm, gi, kind, stflags=""):
    A0, A1, T = AB["ACC"], AB["ACC"] + 16, AB["T"]
    ob = S_OB + gi
    if kind == "QK":
        for i in range(16):
            a.e(f"v_mul_f32 v{A0+i}, s{S_SC}, v{A0+i}")
        for g in range(4):
            a.e(f"v_cvt_pk_bf16_f32 v{T+2*g}, v{A0+4*g}, v{A0+4*g+1}", f"v_cvt_pk_bf16_f32 v{T+2*g+1}, v{A0+4*g+2}, v{A0+4*g+3}")
            a.e(f"s_add_u32 s{S_T0}, s{ob}, {2*g*16384}")
            a.e(f"buffer_store_dwordx2 {vr(T+2*g,2)}, v{V_SQ}, {sr(S_WS,4)}, s{S_T0} offen {stflags}"); vm.issue()
    elif kind == "V":
        for k in range(8):
            a.e(f"v_cvt_pk_bf16_f32 v{T+k}, v{A0+2*k}, v{A0+2*k+1}")
            if k == 3:
                a.e(f"buffer_store_dwordx4 {vr(T,4)}, v{V_SV}, {sr(S_WS,4)}, s{ob} offen {stflags}"); vm.issue()
        a.e(f"s_add_u32 s{S_T0}, s{ob}, 14336")
        a.e(f"buffer_store_dwordx4 {vr(T+4,4)}, v{V_SV}, {sr(S_WS,4)}, s{S_T0} offen {stflags}"); vm.issue()
    elif kind == "F":
        for i in range(16):
            a.e(f"v_max_f32 v{A0+i}, 0, v{A0+i}")
        for i in range(16):
            a.e(f"v_mul_f32 v{A0+i}, v{A0+i}, v{A1+i}")
        for k in range(8):
            a.e(f"v_cvt_pk_bf16_f32 v{T+k}, v{A0+2*k}, v{A0+2*k+1}")
            if k == 3:
                a.e(f"buffer_store_dwordx4 {vr(T,4)}, v{V_SH}, {sr(S_WS,4)}, s{ob} offen {stflags}"); vm.issue()
        a.e(f"buffer_store_dwordx4 {vr(T+4,4)}, v{V_SH}, {sr(S_WS,4)}, s{ob} offen offset:1024 {stflags}"); vm.issue()
    elif kind == "G":
        a.e(f"v_mul_f32 v{T}, {f2u(-math.log2(math.e)):#x}, v{A0}", f"v_exp_f32 v{T}, v{T}", f"v_add_f32 v{T}, 1.0, v{T}",
            f"v_rcp_f32 v{T}, v{T}", f"s_mov_b32 s{S_T0}, {WS_G}")
        a.e("s_nop 0")
        a.e(f"buffer_store_dword v{T}, v{V_T1}, {sr(S_WS,4)}, s{S_T0} offen {stflags}"); vm.issue()

def ab_program(a, kinds, stflags=""):
    X, ACC, FR = AB["X"], AB["ACC"], AB["FR"]
    vm, lg = Vm(), Lgkm()
    stages = []
    for gi, kind in enumerate(kinds):
        if kind == "G":
            stages.append(dict(gi=gi, c=0, kind=kind, x=False))
        else:
            for c in range(7):
                stages.append(dict(gi=gi, c=c, kind=kind, x=(gi == 0)))
    mf = []
    for si, st in enumerate(stages):
        ks = range(28) if st["kind"] == "G" else range(4 * st["c"], 4 * st["c"] + 4)
        for s in ks:
            for tile in range(2 if st["kind"] == "F" else 1):
                mf.append(dict(si=si, s=s, tile=tile, kind=st["kind"], gi=st["gi"]))
    free = list(range(NSLOT))
    state = dict(next_dma=0)
    def issue_dma(si):
        st = stages[si]
        gi, c, kind = st["gi"], st["c"], st["kind"]
        if st["x"]:
            st["xs"] = free.pop(0) * 16384
            a.e(f"s_add_u32 m0, s{S_W2K}, {st['xs']}", f"s_add_u32 s{S_T0}, s{S_XOFF}, {c*128}")
            a.e(f"buffer_load_dwordx4 v{V_X0}, {sr(S_X,4)}, s{S_T0} offen lds"); vm.issue()
            a.e(f"s_add_u32 m0, s{S_W2K}, {st['xs']+1024}", "s_nop 0")
            a.e(f"buffer_load_dwordx4 v{V_X1}, {sr(S_X,4)}, s{S_T0} offen lds"); vm.issue()
        st["ws"] = free.pop(0) * 16384
        if kind == "G":
            a.e(f"s_add_u32 m0, s{S_W1K}, {st['ws']}", "s_nop 0")
            a.e(f"buffer_load_dwordx4 v{V_SH}, {sr(S_GW,4)}, 0 offen lds"); st["t"] = vm.issue()
        elif kind == "F":
            a.e(f"s_add_u32 m0, s{S_W1K}, {st['ws']}", f"s_add_u32 s{S_T0}, s{S_COL+gi}, {c*64*3584}")
            a.e(f"buffer_load_dwordx4 v{V_WF}, {sr(S_WG,4)}, s{S_T0} offen lds"); vm.issue()
            a.e(f"s_add_u32 m0, s{S_W1K}, {st['ws']+8192}", "s_nop 0")
            a.e(f"buffer_load_dwordx4 v{V_WF}, {sr(S_WU,4)}, s{S_T0} offen lds"); st["t"] = vm.issue()
        else:
            a.e(f"s_add_u32 m0, s{S_W1K}, {st['ws']}", f"s_add_u32 s{S_T0}, s{S_COL+gi}, {c*64*2688}")
            a.e(f"buffer_load_dwordx4 v{V_WQ}, {sr(S_WQ,4)}, s{S_T0} offen lds"); st["t"] = vm.issue()
    def fill():
        while state["next_dma"] < len(stages):
            st = stages[state["next_dma"]]
            if len(free) < (2 if st["x"] else 1):
                break
            issue_dma(state["next_dma"]); state["next_dma"] += 1
    def reads(m):
        e = mf[m]; st = stages[e["si"]]
        first_of_stage = (m == 0 or mf[m-1]["si"] != e["si"])
        if first_of_stage:
            si = e["si"]
            vm.wait(a, st["t"])
            a.e("s_barrier")
            if si >= 2:
                o = stages[si - 2]
                if o["x"]: free.append(o["xs"] // 16384)
                free.append(o["ws"] // 16384)
            fill()
            if st["x"]:
                for q in range(4):
                    a.e(f"v_add_u32 v{V_XC+q}, {st['xs']}, v{V_XR+q}")
            if st["kind"] == "G":
                a.e(f"v_lshrrev_b32 v{V_XC}, 5, v{V_LANE}", f"v_lshlrev_b32 v{V_XC}, 4, v{V_XC}",
                    f"s_add_u32 s{S_T0}, s{S_W1K}, {st['ws']}", f"v_add_u32 v{V_XC}, s{S_T0}, v{V_XC}")
        f = FR + 4 * (m % NFR)
        if st["x"] and e["tile"] == 0:
            a.e(f"ds_read_b128 {vr(X+4*e['s'],4)}, v{V_XC + e['s'] % 4}"); lg.issue()
        if st["kind"] == "G":
            a.e(f"ds_read_b128 {vr(f,4)}, v{V_XC} offset:{32*e['s']}"); e["t"] = lg.issue()
        else:
            for u in range(2):
                off = st["ws"] + e["tile"] * 8192 + (16 * (e["s"] % 4) + 4 * u) * 128
                a.e(f"ds_read_b64_tr_b16 {vr(f+2*u,2)}, v{V_TR + off // 65536} offset:{off % 65536}"); e["t"] = lg.issue()
    stamp_mid(a, 7)
    fill()
    stamp_mid(a, 0)
    for m in range(PD):
        reads(m)
    stamp_mid(a, 1)
    for m, e in enumerate(mf):
        lg.wait(a, e["t"])
        f = FR + 4 * (m % NFR)
        acc = ACC + 16 * e["tile"]
        cin = "0" if e["s"] == 0 else vr(acc, 16)
        xa = vr(X + 4 * e["s"], 4)
        if e["kind"] == "V":
            a.e(f"{MFMA} {vr(acc,16)}, {xa}, {vr(f,4)}, {cin}")
        else:
            a.e(f"{MFMA} {vr(acc,16)}, {vr(f,4)}, {xa}, {cin}")
        if m + PD < len(mf):
            reads(m + PD)
        if m + 1 == len(mf) or mf[m + 1]["gi"] != e["gi"]:
            ab_epilogue(a, vm, e["gi"], e["kind"], stflags)
            stamp_mid(a, 2 + e["gi"])

def gen_k1(a):
    a.label("k1_kernel")
    a.e("s_cmp_ge_u32 s2, 256", "s_cbranch_scc1 L_k1_end")
    stamp_start(a)
    ab_prologue(a)
    N = 88
    a.e(f"s_cmp_lt_u32 s{S_J}, 12", "s_cbranch_scc1 L_k1_A", f"s_cmp_eq_u32 s{S_J}, 12", "s_cbranch_scc1 L_k1_B",
        f"s_cmp_eq_u32 s{S_J}, 15", "s_cbranch_scc1 L_k1_D")
    for lab, kinds in (("C", ["V", "V", "F"]), ("D", ["V", "V", "F", "G"])):
        a.label(f"L_k1_{lab}")
        a.e(f"s_lshl_b32 s{N}, s{S_J}, 1", f"s_sub_u32 s{N}, s{N}, 11"); ab_group_params(a, 0, "V", N)
        a.e(f"s_add_u32 s{N}, s{N}, 1"); ab_group_params(a, 1, "V", N)
        a.e(f"s_add_u32 s{N}, s{S_J}, 12"); ab_group_params(a, 2, "F", N)
        ab_program(a, kinds)
        stamp_end(a, 0)
        a.e("s_endpgm")
    a.label("L_k1_B")
    a.e(f"s_mov_b32 s{N}, 12"); ab_group_params(a, 0, "QK", N)
    a.e(f"s_mov_b32 s{N}, 13"); ab_group_params(a, 1, "QK", N)
    a.e(f"s_mov_b32 s{N}, 14"); ab_group_params(a, 2, "V", N)
    a.e(f"s_mov_b32 s{N}, 24"); ab_group_params(a, 3, "F", N)
    ab_program(a, ["QK", "QK", "V", "F"])
    stamp_end(a, 0)
    a.e("s_endpgm")
    a.label("L_k1_A")
    ab_group_params(a, 0, "QK", S_J)
    a.e(f"s_lshl_b32 s{N}, s{S_J}, 1"); ab_group_params(a, 1, "F", N)
    a.e(f"s_add_u32 s{N}, s{N}, 1"); ab_group_params(a, 2, "F", N)
    ab_program(a, ["QK", "F", "F"])
    stamp_end(a, 0)
    a.label("L_k1_end")
    a.e("s_endpgm")

CQ, CO, CS, CP, CKV = 16, 48, 112, 144, 160
C_VK, C_VV, C_G, C_T = 2, 3, 4, 224
SC_HEAD, SC_QT, SC_K, SC_V0, SC_V1, SC_IT, SC_7J = 66, 67, 68, 72, 73, 74, 75
EXEC_V = 0x0FFFFFFF

def c_loads(a, buf, imm):
    kb, vb = CKV + 16 * buf, CKV + 16 * buf + 8
    for idx in range(3):
        a.e(f"buffer_load_dwordx2 {vr(kb+2*idx,2)}, v{C_VK}, {sr(S_KV,4)}, s{SC_K+idx} offen offset:{imm}")
    a.e("s_mov_b32 exec_hi, 0")
    a.e(f"buffer_load_dwordx2 {vr(kb+6,2)}, v{C_VK}, {sr(S_KV,4)}, s{SC_K+3} offen offset:{imm}")
    a.e(f"s_mov_b64 exec, s[76:77]")
    a.e(f"buffer_load_dwordx4 {vr(vb,4)}, v{C_VV}, {sr(S_KV,4)}, s{SC_V0} offen")
    a.e(f"buffer_load_dwordx4 {vr(vb+4,4)}, v{C_VV}, {sr(S_KV,4)}, s{SC_V1} offen")
    a.e("s_mov_b64 exec, -1")
    a.e(f"s_add_u32 s{SC_V0}, s{SC_V0}, {V_TB}", f"s_add_u32 s{SC_V1}, s{SC_V1}, {V_TB}")

def c_smfma(a, i, half):
    kt, qs = (i // 4) % 4, i % 4
    S = CS + 16 * (i % 2)
    kb = CKV + 16 * kt + 4 * half
    q = CQ + 8 * qs + 4 * half
    a.e(f"{MFMA} {vr(S,16)}, {vr(kb,4)}, {vr(q,4)}, {'0' if half == 0 else vr(S,16)}")
def c_pv(a, i, half):
    i %= 16
    kt, qs = i // 4, i % 4
    O = CO + 16 * qs
    vb = CKV + 16 * kt + 8 + 4 * half
    P = CP + 8 * (i % 2) + 4 * half
    a.e(f"{MFMA} {vr(O,16)}, {vr(vb,4)}, {vr(P,4)}, {vr(O,16)}")

def c_step(a, i):
    S, P = CS + 16 * (i % 2), CP + 8 * (i % 2)
    ex = lambda k: a.e(f"v_exp_f32 v{S+k}, v{S+k}")
    cv = lambda k: a.e(f"v_cvt_pk_bf16_f32 v{P+k}, v{S+2*k}, v{S+2*k+1}")
    if i % 4 == 3:
        a.e("s_waitcnt vmcnt(12)")
    c_smfma(a, i + 1, 0)
    for k in range(4): ex(k)
    c_smfma(a, i + 1, 1)
    ex(4); ex(5); cv(0); cv(1); ex(6); ex(7)
    c_pv(a, i - 1, 0)
    ex(8); ex(9); cv(2); cv(3); ex(10); ex(11)
    c_pv(a, i - 1, 1)
    if i % 4 == 0:
        kt = i // 4
        if kt == 1:
            a.e(f"s_cmp_eq_u32 s{SC_IT}, 1", f"s_cselect_b32 s{S_KV+2}, 0, s{S_KV+2}")
        c_loads(a, (kt + 3) % 4, 256 * (kt + 3))
    for k in range(12, 16): ex(k)
    cv(4); cv(5); cv(6); cv(7)

def gen_k2(a, stflags=""):
    a.label("k2_kernel")
    a.e("s_cmp_ge_u32 s2, 256", "s_cbranch_scc1 L_k2_end")
    stamp_start(a)
    a.e("s_load_dwordx2 s[86:87], s[0:1], 80")
    T = C_T
    a.e(f"s_and_b32 s{S_T0}, s2, 7", f"s_lshr_b32 s{S_T1}, s2, 3", f"s_and_b32 s{SC_HEAD}, s{S_T1}, 1",
        f"s_lshl_b32 s{SC_HEAD}, s{SC_HEAD}, 3", f"s_add_u32 s{SC_HEAD}, s{SC_HEAD}, s{S_T0}", f"s_lshr_b32 s{SC_QT}, s{S_T1}, 1")
    a.e(f"v_lshrrev_b32 v{T}, 6, v0", f"v_and_b32 v{V_LANE}, 63, v0", f"v_readfirstlane_b32 s{S_W}, v{T}")
    a.e(f"s_mul_i32 s{SC_7J}, s{SC_HEAD}, 7")
    L = V_LANE
    a.e(f"v_lshrrev_b32 v{T}, 5, v{L}", f"v_and_b32 v{T+1}, 31, v{L}")
    a.e(f"v_lshlrev_b32 v{C_VK}, 3, v{T+1}", f"v_lshl_add_u32 v{C_VK}, v{T}, 15, v{C_VK}")
    a.e(f"s_mul_i32 s{S_T0}, s{SC_HEAD}, 448", f"v_mul_u32_u24 v{C_VV}, 7168, v{T}", f"v_lshl_add_u32 v{C_VV}, v{T+1}, 4, v{C_VV}",
        f"v_add_u32 v{C_VV}, s{S_T0}, v{C_VV}")
    a.e(f"s_mov_b32 s76, {EXEC_V:#x}", f"s_mov_b32 s77, {EXEC_V:#x}")
    a.e("s_waitcnt lgkmcnt(0)")
    stamp_mid(a, 4)
    srd(a, S_WS, 86, WS_END); srd(a, S_KV, 86, WS_END)
    for qs in range(4):
        a.e(f"v_mov_b32 v{CQ+8*qs+6}, 0", f"v_mov_b32 v{CQ+8*qs+7}, 0")
    for b in range(4):
        a.e(f"v_mov_b32 v{CKV+16*b+6}, 0x3f803f80", f"v_mov_b32 v{CKV+16*b+7}, 0x00003f80")
        for k in range(8):
            a.e(f"v_mov_b32 v{CKV+16*b+8+k}, 0x3f803f80")
    stamp_mid(a, 5)
    for idx, gofs in enumerate((0, 1, 4, 5)):
        a.e(f"s_add_u32 s{S_T0}, s{SC_7J}, {gofs}", f"s_lshl_b32 s{S_T0}, s{S_T0}, 14", f"s_lshl_b32 s{S_T1}, s{SC_QT}, 10",
            f"s_add_u32 s{S_T0}, s{S_T0}, s{S_T1}")
        if idx == 3: a.e("s_mov_b32 exec_hi, 0")
        for qs in range(4):
            a.e(f"buffer_load_dwordx2 {vr(CQ+8*qs+2*idx,2)}, v{C_VK}, {sr(S_WS,4)}, s{S_T0} offen offset:{256*qs}")
        if idx == 3: a.e("s_mov_b64 exec, -1")
        a.e(f"s_add_u32 s{SC_K+idx}, s{SC_7J}, {112+gofs}", f"s_lshl_b32 s{SC_K+idx}, s{SC_K+idx}, 14", f"s_lshl_b32 s{S_T1}, s{S_W}, 12",
            f"s_add_u32 s{SC_K+idx}, s{SC_K+idx}, s{S_T1}")
    a.e(f"s_mul_i32 s{SC_V0}, s{S_W}, {16*V_TB}", f"s_add_u32 s{SC_V0}, s{SC_V0}, {WS_V}", f"s_add_u32 s{SC_V1}, s{SC_V0}, 14336")
    stamp_mid(a, 6)
    for kt in range(3):
        c_loads(a, kt, 256 * kt)
    stamp_mid(a, 7)
    a.e(f"s_lshl_b32 s{S_TB}, s{SC_QT}, 2", f"s_add_u32 s{S_TB}, s{S_TB}, s{S_W}", f"s_lshl_b32 s{S_T0}, s{S_TB}, 7",
        f"s_add_u32 s{S_T0}, s{S_T0}, {WS_G}", f"v_lshlrev_b32 v{T+2}, 2, v{T+1}")
    for i in range(64):
        a.e(f"v_mov_b32 v{CO+i}, 0")
    for i in range(8):
        a.e(f"v_mov_b32 v{CP+8+i}, 0")
    a.e(f"s_mov_b32 s{SC_IT}, 4")
    stamp_mid(a, 0)
    a.e("s_waitcnt vmcnt(12)")
    stamp_mid(a, 1)
    c_smfma(a, 0, 0); c_smfma(a, 0, 1)
    a.e("s_nop 7")
    a.raw(".p2align 3")
    a.label("L_c_loop")
    for i in range(16):
        c_step(a, i)
    a.e(f"v_add_u32 v{C_VK}, 1024, v{C_VK}")
    a.e(f"s_sub_u32 s{SC_IT}, s{SC_IT}, 1", f"s_cmp_lg_u32 s{SC_IT}, 0", "s_cbranch_scc1 L_c_loop")
    stamp_mid(a, 2)
    c_pv(a, 15, 0); c_pv(a, 15, 1)
    a.e(f"buffer_load_dword v{C_G}, v{T+2}, {sr(S_WS,4)}, s{S_T0} offen")
    a.e(f"v_lshlrev_b32 v{T+3}, 4, v{L}", f"s_lshl_b32 s{S_T1}, s{S_W}, 12", f"v_add_u32 v{T+4}, s{S_T1}, v{T+3}")
    for o in range(4):
        for q in range(4):
            a.e(f"ds_write_b128 v{T+4}, {vr(CO+16*o+4*q,4)} offset:{o*16384+q*1024}")
    a.e("s_waitcnt lgkmcnt(0)", "s_barrier")
    stamp_mid(a, 3)
    a.e(f"s_lshl_b32 s{S_T1}, s{S_W}, 14", f"v_add_u32 v{T+4}, s{S_T1}, v{T+3}")
    for w in range(4):
        for q in range(4):
            a.e(f"ds_read_b128 {vr(CO+16*w+4*q,4)}, v{T+4} offset:{w*4096+q*1024}")
    a.e("s_waitcnt lgkmcnt(0)")
    for i in range(16):
        a.e(f"v_add_f32 v{CO+i}, v{CO+i}, v{CO+16+i}", f"v_add_f32 v{CO+32+i}, v{CO+32+i}, v{CO+48+i}")
    for i in range(16):
        a.e(f"v_add_f32 v{CO+i}, v{CO+i}, v{CO+32+i}")
    a.e(f"v_mov_b32 v{T+5}, v{CO+12}", f"v_mov_b32 v{T+6}, v{CO+12}", f"v_permlane32_swap_b32 v{T+5}, v{T+6}")
    a.e(f"v_rcp_f32 v{T+6}, v{T+6}", "s_waitcnt vmcnt(0)", f"v_mul_f32 v{T+6}, v{T+6}, v{C_G}")
    for i in range(16):
        a.e(f"v_mul_f32 v{CO+i}, v{CO+i}, v{T+6}")
    a.e(f"s_mul_i32 s{S_T0}, s{S_TB}, {HO_TB}", f"s_add_u32 s{S_T0}, s{S_T0}, {WS_HO + 112*1024}")
    for g in range(4):
        a.e(f"s_add_u32 s{S_T1}, s{SC_7J}, {2*g}", f"v_add_u32 v{T+7}, s{S_T1}, v{T}",
            f"v_lshrrev_b32 v{T+8}, 2, v{T+7}", f"v_lshlrev_b32 v{T+8}, 10, v{T+8}",
            f"v_and_b32 v{T+9}, 1, v{T+7}", f"v_lshl_add_u32 v{T+8}, v{T+9}, 9, v{T+8}",
            f"v_bfe_u32 v{T+9}, v{T+7}, 1, 1", f"v_lshl_add_u32 v{T+8}, v{T+9}, 3, v{T+8}",
            f"v_lshl_add_u32 v{T+10+g}, v{T+1}, 4, v{T+8}")
        a.e(f"v_cvt_pk_bf16_f32 v{CP+2*g}, v{CO+4*g}, v{CO+4*g+1}", f"v_cvt_pk_bf16_f32 v{CP+2*g+1}, v{CO+4*g+2}, v{CO+4*g+3}")
        if g == 3: a.e("s_mov_b32 exec_hi, 0")
        a.e(f"buffer_store_dwordx2 {vr(CP+2*g,2)}, v{T+10+g}, {sr(S_WS,4)}, s{S_T0} offen {stflags}")
    stamp_end(a, 1)
    a.label("L_k2_end")
    a.e("s_endpgm")

DACC, DB, DA = 16, 80, 144
D_VW, D_VB, D_TR, D_G, D_T = 2, 3, 4, 6, 160
SD_RT, SD_CT, SD_B0, SD_B1, SD_W, SD_LDS = 66, 67, 68, 69, 70, 71
DRING = 8
D_RED = 65536

def gen_k3(a):
    a.label("k3_kernel")
    a.e("s_cmp_ge_u32 s2, 224", "s_cbranch_scc1 L_k3_end")
    stamp_start(a)
    a.e("s_load_dwordx2 s[76:77], s[0:1], 16", "s_load_dwordx2 s[78:79], s[0:1], 48", "s_load_dwordx2 s[80:81], s[0:1], 64",
        "s_load_dwordx2 s[86:87], s[0:1], 80")
    T, L = D_T, V_LANE
    a.e(f"s_and_b32 s{S_T0}, s2, 7", f"s_lshr_b32 s{S_T1}, s2, 3", f"s_mul_i32 s{SD_RT}, s{S_T1}, 37", f"s_lshr_b32 s{SD_RT}, s{SD_RT}, 8",
        f"s_mul_i32 s{SD_CT}, s{SD_RT}, 7", f"s_sub_u32 s{SD_CT}, s{S_T1}, s{SD_CT}", f"s_lshl_b32 s{S_T0}, s{S_T0}, 2",
        f"s_add_u32 s{SD_RT}, s{SD_RT}, s{S_T0}")
    a.e(f"v_lshrrev_b32 v{T}, 6, v0", f"v_and_b32 v{L}, 63, v0", f"v_readfirstlane_b32 s{S_W}, v{T}")
    a.e(f"v_lshrrev_b32 v{T}, 3, v{L}", f"v_and_b32 v{T+1}, 7, v{L}", f"v_bfe_u32 v{T+2}, v{L}, 4, 1", f"v_lshlrev_b32 v{T+2}, 2, v{T+2}",
        f"v_xor_b32 v{T+2}, v{T+2}, v{T+1}", f"v_mul_u32_u24 v{D_VW}, 896, v{T}", f"v_lshl_add_u32 v{D_VW}, v{T+2}, 4, v{D_VW}")
    a.e(f"v_lshlrev_b32 v{D_VB}, 4, v{L}")
    a.e(f"s_lshl_b32 s{SD_LDS}, s{S_W}, 14")
    a.e(f"v_lshrrev_b32 v{T}, 5, v{L}", f"v_bfe_u32 v{T+1}, v{L}, 2, 2", f"v_lshl_add_u32 v{T+2}, v{T}, 2, v{T+1}",
        f"v_lshlrev_b32 v{D_TR}, 7, v{T+2}", f"v_lshrrev_b32 v{T+1}, 1, v{T+1}", f"v_lshl_add_u32 v{D_TR}, v{T+1}, 6, v{D_TR}",
        f"v_bfe_u32 v{T+1}, v{L}, 4, 1", f"v_lshl_add_u32 v{D_TR}, v{T+1}, 5, v{D_TR}", f"v_and_b32 v{T+1}, 3, v{L}",
        f"v_lshl_add_u32 v{D_TR}, v{T+1}, 3, v{D_TR}", f"v_add_u32 v{D_TR}, s{SD_LDS}, v{D_TR}", f"v_xor_b32 v{D_TR+1}, 64, v{D_TR}")
    a.e("s_waitcnt lgkmcnt(0)")
    srd(a, S_WO, 76, 448 * 896); srd(a, S_WD, 78, 1792 * 896); srd(a, S_OUT, 80, 2048 * 896); srd(a, S_WS, 86, WS_END)
    vm, lg = Vm(), Lgkm()
    a.e(f"v_and_b32 v{T+1}, 31, v{L}", f"v_lshlrev_b32 v{T+2}, 2, v{T+1}", f"s_lshl_b32 s{S_T0}, s{SD_RT}, 8", f"s_add_u32 s{S_T0}, s{S_T0}, {WS_G}")
    a.e(f"buffer_load_dword v{D_G}, v{T+2}, {sr(S_WS,4)}, s{S_T0} offen"); vm.issue()
    a.e(f"buffer_load_dword v{D_G+1}, v{T+2}, {sr(S_WS,4)}, s{S_T0} offen offset:128"); vm.issue()
    a.e(f"s_mul_i32 s{SD_B0}, s{SD_RT}, {2*HO_TB}", f"s_mul_i32 s{S_T0}, s{S_W}, {28*1024}", f"s_add_u32 s{SD_B0}, s{SD_B0}, s{S_T0}",
        f"s_add_u32 s{SD_B0}, s{SD_B0}, {WS_HO}", f"s_add_u32 s{SD_B1}, s{SD_B0}, {HO_TB}")
    a.e(f"s_mul_i32 s{SD_W}, s{S_W}, {28*16*896}", f"s_lshl_b32 s{S_T0}, s{SD_CT}, 7", f"s_add_u32 s{SD_W}, s{SD_W}, s{S_T0}")
    NK = 35
    tick = {}
    def loads(n):
        if n == 28:
            a.e(f"s_mul_i32 s{SD_B0}, s{SD_RT}, {2*HO_TB}", f"s_mul_i32 s{S_T0}, s{S_W}, {7*1024}", f"s_add_u32 s{SD_B0}, s{SD_B0}, s{S_T0}",
                f"s_add_u32 s{SD_B0}, s{SD_B0}, {WS_HO + 112*1024}", f"s_add_u32 s{SD_B1}, s{SD_B0}, {HO_TB}")
            a.e(f"s_mul_i32 s{SD_W}, s{S_W}, {7*16*896}", f"s_lshl_b32 s{S_T0}, s{SD_CT}, 7", f"s_add_u32 s{SD_W}, s{SD_W}, s{S_T0}")
        k = n if n < 28 else n - 28
        w = S_WD if n < 28 else S_WO
        slot = n % DRING
        a.e(f"s_add_u32 m0, s{SD_LDS}, {slot*2048}", f"s_add_u32 s{S_T0}, s{SD_W}, {k*16*896}")
        a.e(f"buffer_load_dwordx4 v{D_VW}, {sr(w,4)}, s{S_T0} offen lds"); vm.issue()
        a.e(f"s_add_u32 m0, s{SD_LDS}, {slot*2048+1024}", f"s_add_u32 s{S_T0}, s{S_T0}, {8*896}")
        a.e(f"buffer_load_dwordx4 v{D_VW}, {sr(w,4)}, s{S_T0} offen lds"); vm.issue()
        if k % 4 == 0 and k > 0:
            a.e(f"s_add_u32 s{SD_B0}, s{SD_B0}, 4096", f"s_add_u32 s{SD_B1}, s{SD_B1}, 4096")
        a.e(f"buffer_load_dwordx4 {vr(DB+8*slot,4)}, v{D_VB}, {sr(S_WS,4)}, s{SD_B0} offen offset:{(k%4)*1024}"); vm.issue()
        a.e(f"buffer_load_dwordx4 {vr(DB+8*slot+4,4)}, v{D_VB}, {sr(S_WS,4)}, s{SD_B1} offen offset:{(k%4)*1024}"); tick[n] = vm.issue()
    ltick = {}
    def areads(n):
        vm.wait(a, tick[n])
        slot = n % DRING
        for nb in range(2):
            for u in range(2):
                a.e(f"ds_read_b64_tr_b16 {vr(DA+8*(n%2)+4*nb+2*u,2)}, v{D_TR+nb} offset:{slot*2048+u*1024}"); ltick[(n, nb)] = lg.issue()
    for n in range(DRING):
        loads(n)
    stamp_mid(a, 0)
    areads(0)
    stamp_mid(a, 1)
    for n in range(NK):
        if n + 1 < NK:
            areads(n + 1)
        if n == 28:
            a.e(f"v_sub_f32 v{D_G}, 1.0, v{D_G}", f"v_sub_f32 v{D_G+1}, 1.0, v{D_G+1}")
            for nb in range(2):
                for tb in range(2):
                    for i in range(16):
                        r = DACC + 32 * nb + 16 * tb + i
                        a.e(f"v_mul_f32 v{r}, v{r}, v{D_G+tb}")
        slot = n % DRING
        for nb in range(2):
            lg.wait(a, ltick[(n, nb)])
            for tb in range(2):
                acc = DACC + 32 * nb + 16 * tb
                a.e(f"{MFMA} {vr(acc,16)}, {vr(DA+8*(n%2)+4*nb,4)}, {vr(DB+8*slot+4*tb,4)}, {'0' if n == 0 else vr(acc,16)}")
        if n + DRING < NK:
            loads(n + DRING)
        if n % 7 == 6: stamp_mid(a, 2 + n // 7)
    a.e(f"v_and_b32 v{T+1}, 31, v{L}", f"v_lshrrev_b32 v{T}, 5, v{L}", f"v_mul_u32_u24 v{T+2}, 272, v{T+1}", f"v_lshl_add_u32 v{T+2}, v{T}, 4, v{T+2}",
        f"s_mul_i32 s{S_T0}, s{S_W}, 17408", f"s_add_u32 s{S_T0}, s{S_T0}, {D_RED}", f"v_add_u32 v{T+2}, s{S_T0}, v{T+2}")
    for nb in range(2):
        for tb in range(2):
            for g in range(4):
                a.e(f"ds_write_b128 v{T+2}, {vr(DACC+32*nb+16*tb+4*g,4)} offset:{tb*32*272 + nb*128 + g*32}")
    a.e("s_waitcnt lgkmcnt(0)", "s_barrier")
    a.e(f"v_lshrrev_b32 v{T}, 3, v0", f"v_and_b32 v{T+1}, 7, v0", f"v_mul_u32_u24 v{T+2}, 272, v{T}", f"v_lshl_add_u32 v{T+2}, v{T+1}, 5, v{T+2}",
        f"v_add_u32 v{T+2}, {D_RED}, v{T+2}")
    a.e(f"v_mul_u32_u24 v{T+3}, 896, v{T}", f"v_lshl_add_u32 v{T+3}, v{T+1}, 4, v{T+3}")
    a.e(f"s_mul_i32 s{S_T0}, s{SD_RT}, {64*896}", f"s_lshl_b32 s{S_T1}, s{SD_CT}, 7", f"s_add_u32 s{S_T0}, s{S_T0}, s{S_T1}",
        f"s_add_u32 s{S_T1}, s{S_T0}, {32*896}")
    for p in range(2):
        for w in range(4):
            for q in range(2):
                a.e(f"ds_read_b128 {vr(DACC+32*p+8*w+4*q,4)}, v{T+2} offset:{w*17408 + p*32*272 + q*16}")
    for p in range(2):
        a.e(f"s_waitcnt lgkmcnt({8 if p == 0 else 0})")
        b = DACC + 32 * p
        for i in range(8):
            a.e(f"v_add_f32 v{b+i}, v{b+i}, v{b+8+i}", f"v_add_f32 v{b+16+i}, v{b+16+i}, v{b+24+i}")
        for i in range(8):
            a.e(f"v_add_f32 v{b+i}, v{b+i}, v{b+16+i}")
        for k in range(4):
            a.e(f"v_cvt_pk_bf16_f32 v{b+8+k}, v{b+2*k}, v{b+2*k+1}")
        a.e(f"buffer_store_dwordx4 {vr(b+8,4)}, v{T+3}, {sr(S_OUT,4)}, s{S_T0 if p == 0 else S_T1} offen")
    stamp_end(a, 2)
    a.label("L_k3_end")
    a.e("s_endpgm")

def kd(name, vgpr, sgpr=102):
    acc = (vgpr + 3) // 4 * 4
    return f""".amdhsa_kernel {name}
  .amdhsa_next_free_vgpr {vgpr}
  .amdhsa_next_free_sgpr {sgpr}
  .amdhsa_accum_offset {acc}
  .amdhsa_group_segment_fixed_size 0
  .amdhsa_kernarg_size 88
  .amdhsa_user_sgpr_count 2
  .amdhsa_user_sgpr_kernarg_segment_ptr 1
  .amdhsa_system_sgpr_workgroup_id_x 1
.end_amdhsa_kernel
"""

def main(out):
    head = open("cdna_kernels/" + NAME + ".s.ref").read().split("; Override launch")[0]
    launches = [("k1_kernel", 256, 512, 163840), ("k2_kernel", 256, 256, 65536), ("k3_kernel", 224, 256, 65536 + 4 * 17408)]
    txt = head
    for k, g, b, l in launches:
        txt += f"; @launch kernel={k} grid=({g},1,1) block=({b},1,1) lds={l}\n"
    txt += '.amdgcn_target "amdgcn-amd-amdhsa--gfx950"\n.text\n'
    for name, fn in (("k1_kernel", gen_k1), ("k2_kernel", gen_k2), ("k3_kernel", gen_k3)):
        a = Asm()
        fn(a)
        lines = fix_hazards(a.lines)
        if name == "k2_kernel":
            check_loop(lines, "L_c_loop")
        txt += f".globl {name}\n.p2align 8\n.type {name},@function\n" + "\n".join(lines) + "\n"
    txt += '.section .rodata,"a"\n'
    for name, v in (("k1_kernel", 216), ("k2_kernel", 240), ("k3_kernel", 168)):
        txt += ".p2align 6\n" + kd(name, 256 if STAMP else v)
    open(out, "w").write(txt)

if __name__ == "__main__":
    if "--stamp" in sys.argv:
        STAMP = True; sys.argv.remove("--stamp")
    main(sys.argv[1] if len(sys.argv) > 1 else "cdna_kernels/" + NAME + ".s")
```

```python
import sys, math, struct, re
from asmlib import *

NAME = "gated_mix__mha_block__glu_gated_reglu__prompt"
WS_QK, WS_V, WS_HO, WS_G, WS_F, WS_END = 0, 0x380000, 0x540000, 0xE40000, 0xE50000, 0xE60000
F_T, F_H, F_O = 0, 0x6000, 0xE000
HO_TB = 144 * 1024
V_TB = 4 * 448 * 16
OCT = 32768
QSCALE = (28 ** -0.5) * math.log2(math.e)
TAGX = 0x5bd1e995
def f2u(x): return struct.unpack("<I", struct.pack("<f", x))[0]

class Opt:
    stamp = False
    bars = False
    diag = None
    pubd_s = 2
    pubd = 3
    prio_attn = 1
    pref_code = 1
    pref_w = True
    mall_at = 2
    pack = 1
    spread = 1
    poll_back = 2
    pref_f = 0
    la1 = 3
    la0 = 2
    hsplit = True
    la = 36
    rot = True
    rotc = True
    rotd = True
    early = True
    hook_back = 5
    delay_d = True
    rw = 11
    rb = 16
    d_pre = 6
    d_go = (1, 10)
    d_first = 0
    o_sleep = 0
    d_pace = 2
    noload = False
    dsleep = 4
    nod = False
    h_touch = False
    order_A = ["QK", "F", "F"]
O = Opt()

S_X, S_WQ, S_WG, S_WU, S_WS, S_WD, S_WO, S_OUT, S_GW, S_KV, S_DBG = 8, 12, 16, 20, 24, 28, 32, 36, 40, 44, 48
S_RB, S_J, S_W, S_W1K, S_T0, S_T1, S_XOFF, S_TB, S_CH, S_W2K = 56, 57, 58, 59, 60, 61, 62, 63, 64, 65
S_COL, S_OB, S_SC, S_N = 66, 70, 74, 7
S_TAG, S_FL, S_SPIN, S_LOB, S_LFL = 76, 78, 52, 53, 54
SC_HEAD, SC_QT, SC_K, SC_V0, SC_V1, SC_IT, SC_O, SC_EX = 82, 83, 84, 86, 87, 88, 89, 92
SD_RT, SD_CT, SD_B0, SD_B1, SD_W, SD_LDS, SD_CP, SD_WB, SD_BB = 82, 83, 84, 85, 86, 87, 88, 89, 90
MFMA = "v_mfma_f32_32x32x16_bf16"
SC1 = "sc1"

X, ACC, FR, T = 16, 128, 160, 192
V_LANE, V_WQ, V_WF, V_X0, V_X1, V_TR, V_SQ, V_SV, V_SH, V_T0, V_GS = 1, 2, 3, 4, 5, 6, 9, 10, 11, 12, 13
V_ZERO, V_T56 = 14, 15
V_XR, V_XC = 208, 212
V_LWF, V_LW, V_TRX, FB0 = 201, 202, 204, 216
S_W4K = 55
S_CP = 75
ROT7 = 0x0065432106543210
V_PD, V_NONCE, V_FD, V_DUM = 216, 200, 222, 203
CQ, CKV, CO, CS, CP = 16, 48, 128, 192, 224
C_VK, C_VV, C_PA, C_PB, C_MA, C_MB, C_G, C_T = 240, 241, 242, 243, 244, 245, 246, 112
C_ONE, C_VK1, C_VV1, C_QA = 247, 248, 249, 250
DACC, DB, DA = 16, 80, 224
D_VW, D_TR, D_PH, D_PO, D_G, D_T = 240, 242, 244, 245, 246, 208
PD, NUNIT, NFR = 4, 20, 8
L_DREG = 22528
L_XCH = 4 * L_DREG
S_EARLY = 91
S_CNT = 3
EXEC_V = 0x0FFFFFFF

def srd(a, dst, src, nbytes):
    a.e(f"s_mov_b32 s{dst}, s{src}", f"s_and_b32 s{dst+1}, s{src+1}, 0xffff",
        f"s_mov_b32 s{dst+2}, {nbytes:#x}", f"s_mov_b32 s{dst+3}, 0x20000")

_uid = [0]
def uid(p):
    _uid[0] += 1
    return f"L_{p}{_uid[0]}"

def stamp_start(a):
    if O.stamp:
        a.e("s_memrealtime s[98:99]", "s_memtime s[100:101]")
def stamp(a, idx):
    if O.stamp == 1:
        a.e("s_memtime s[6:7]", "s_memrealtime s[4:5]", "s_waitcnt lgkmcnt(0)", "s_sub_u32 s6, s6, s100", f"v_writelane_b32 v255, s6, {idx}",
            f"v_writelane_b32 v255, s4, {32+idx}")
def stamp_end(a):
    if O.diag:
        idx, wg, wv = O.diag
        sk, top = uid("dg"), uid("dg")
        a.e("s_waitcnt vmcnt(0)", "s_mov_b64 exec, -1", f"s_cmp_lg_u32 s{S_W}, {wv}", f"s_cbranch_scc1 {sk}")
        if wg >= 0: a.e(f"s_cmp_lg_u32 s2, {wg}", f"s_cbranch_scc1 {sk}")
        if idx == -1: a.e("s_mov_b32 s6, s98")
        elif idx == -2: a.e("s_memrealtime s[6:7]", "s_waitcnt lgkmcnt(0)")
        elif idx == -3: a.e(f"s_add_u32 s6, s98, 500", f"s_mov_b32 s98, s{S_TAG}")
        else: a.e(f"v_readlane_b32 s6, v255, {32+idx}", "s_nop 3")
        a.e("s_sub_u32 s6, s6, s98", "s_mul_i32 s6, s6, 10", "s_add_u32 s6, s6, 6000")
        a.label(top)
        a.e("s_memrealtime s[4:5]", "s_waitcnt lgkmcnt(0)", "s_sub_u32 s4, s4, s98", "s_cmp_lt_u32 s4, s6", f"s_cbranch_scc1 {top}")
        a.label(sk)
        return
    if O.stamp:
        a.e("s_waitcnt vmcnt(0)", "s_memrealtime s[4:5]", "s_memtime s[6:7]", "s_waitcnt lgkmcnt(0)", "s_sub_u32 s6, s6, s100")
        a.e("v_writelane_b32 v255, s6, 29", "v_writelane_b32 v255, s98, 30", "v_writelane_b32 v255, s4, 31")
        a.e("s_mov_b64 exec, -1", "s_lshl_b32 s4, s2, 11", f"s_lshl_b32 s5, s{S_W}, 8", "s_add_u32 s4, s4, s5", f"s_add_u32 s4, s4, {WS_END}")
        a.e(f"s_mov_b32 s{S_WS+2}, 0x1000000", f"v_lshlrev_b32 v254, 2, v{V_LANE}")
        a.e(f"buffer_store_dword v255, v254, {sr(S_WS,4)}, s4 offen")

class Cnt:
    def __init__(self, name, mx): self.n = 0; self.name = name; self.mx = mx
    def issue(self): self.n += 1; return self.n
    def wait(self, a, ticket):
        k = self.n - ticket
        a.e(f"s_waitcnt {self.name}({min(k, self.mx)})")
def Vm(): return Cnt("vmcnt", 63)
def Lg(): return Cnt("lgkmcnt", 15)

def publish(a, soff):
    a.e("s_mov_b64 exec, 1", f"buffer_store_dwordx2 {vr(V_FD,2)}, v{V_ZERO}, {sr(S_WS,4)}, {soff} offen {SC1}", "s_mov_b64 exec, -1")

def poll_check(a, data, fail_label):
    a.e(f"v_cmp_ne_u32 vcc, s{S_TAG}, v{data}", f"v_cmp_ne_u32 s[4:5], s{S_TAG+1}, v{data+1}", "s_or_b64 vcc, vcc, s[4:5]",
        f"s_cbranch_vccnz {fail_label}")

def poll_spin(a, addrs, data, sleep=2):
    top, done = uid("spin"), uid("spind")
    a.e(f"s_mov_b32 s{S_SPIN}, 0x8000")
    a.label(top)
    a.e(f"s_mov_b32 s{S_T0}, {WS_F}")
    for i, ad in enumerate(addrs):
        a.e(f"buffer_load_dwordx2 {vr(data+2*i,2)}, v{ad}, {sr(S_WS,4)}, s{S_T0} offen {SC1}")
    a.e("s_waitcnt vmcnt(0)", "s_mov_b64 s[6:7], 0")
    for i in range(len(addrs)):
        a.e(f"v_cmp_ne_u32 vcc, s{S_TAG}, v{data+2*i}", f"v_cmp_ne_u32 s[4:5], s{S_TAG+1}, v{data+2*i+1}",
            "s_or_b64 s[6:7], s[6:7], vcc", "s_or_b64 s[6:7], s[6:7], s[4:5]")
    a.e("s_cmp_eq_u64 s[6:7], 0", f"s_cbranch_scc1 {done}", f"s_sleep {sleep}" if sleep else "s_nop 0", f"s_sub_u32 s{S_SPIN}, s{S_SPIN}, 1",
        f"s_cmp_lg_u32 s{S_SPIN}, 0", f"s_cbranch_scc1 {top}")
    a.label(done)

def code_pref(a):
    a.e("s_getpc_b64 s[4:5]")
    a.label("L_pc")
    a.e(f"v_cmp_le_u32 vcc, 448, v0", "s_cbranch_vccz L_nocp")
    a.e(f"s_lshr_b32 s6, s2, 3", "s_lshl_b32 s6, s6, 11", f"v_and_b32 v{T}, 15, v0", f"v_lshlrev_b32 v{T}, 7, v{T}", f"v_add_u32 v{T}, s6, v{T}",
        f"v_min_u32 v{T}, L_code_end-L_pc-4, v{T}", f"global_load_dword v{V_DUM}, v{T}, s[4:5]")
    a.label("L_nocp")

def prologue(a):
    L = V_LANE
    A, B, C = T + 1, T + 2, T + 3
    a.e("s_load_dwordx4 s[76:79], s[0:1], 0", "s_load_dwordx8 s[80:87], s[0:1], 16", "s_load_dwordx8 s[88:95], s[0:1], 48", "s_load_dwordx2 s[96:97], s[0:1], 80")
    a.e(f"v_lshrrev_b32 v{V_T0}, 6, v0", f"v_and_b32 v{V_LANE}, 63, v0", f"v_readfirstlane_b32 s{S_W}, v{V_T0}")
    a.e(f"s_and_b32 s{S_RB}, s2, 1", f"s_lshl_b32 s{S_RB}, s{S_RB}, 3", f"s_bfe_u32 s{S_T0}, s2, 0x30003", f"s_add_u32 s{S_RB}, s{S_RB}, s{S_T0}",
        f"s_bfe_u32 s{S_J}, s2, 0x20001", f"s_lshl_b32 s{S_J}, s{S_J}, 2", f"s_lshr_b32 s{S_T0}, s2, 6", f"s_add_u32 s{S_J}, s{S_J}, s{S_T0}")
    a.e(f"s_lshl_b32 s{S_N}, s{S_J}, 1", f"s_sub_u32 s{S_N}, s{S_N}, 11", f"s_cmp_le_u32 s{S_J}, 12", f"s_cselect_b32 s{S_N}, s{S_J}, s{S_N}",
        f"s_lshl_b32 s{S_COL}, s{S_N}, 7", f"s_mul_i32 s{S_XOFF}, s{S_RB}, {128*896}")
    if O.rot:
        a.e(f"s_and_b32 s{S_T0}, s{S_J}, 3", f"s_lshl_b32 s{S_T0}, s{S_T0}, 1", f"s_and_b32 s{S_T1}, s{S_RB}, 7", f"s_add_u32 s{S_T0}, s{S_T0}, s{S_T1}",
            f"s_cmp_ge_u32 s{S_T0}, 7", f"s_cselect_b32 s{S_T1}, 7, 0", f"s_sub_u32 s{S_T0}, s{S_T0}, s{S_T1}", f"s_lshl_b32 s{S_T0}, s{S_T0}, 2",
            f"s_mov_b32 s4, {ROT7 & 0xffffffff:#x}", f"s_mov_b32 s5, {ROT7 >> 32:#x}", f"s_lshr_b64 s[4:5], s[4:5], s{S_T0}", f"s_mov_b32 s{S_CP}, s4")
    else:
        a.e(f"s_mov_b32 s{S_CP}, 0x6543210")
    a.e(f"s_mov_b32 s{S_X+2}, {2048*896:#x}", f"s_mov_b32 s{S_X+3}, 0x20000", f"s_mov_b32 s{S_WQ+2}, {448*2688:#x}", f"s_mov_b32 s{S_WQ+3}, 0x20000")
    a.e(f"v_lshrrev_b32 v{A}, 3, v{L}", f"v_and_b32 v{B}, 7, v{L}")
    a.e(f"s_lshl_b32 s{S_W2K}, s{S_W}, 11", f"s_lshl_b32 s{S_W4K}, s{S_W}, 12")
    a.e(f"v_bfe_u32 v{C}, v{L}, 4, 1", f"v_lshlrev_b32 v{C}, 2, v{C}", f"v_xor_b32 v{T+4}, v{C}, v{B}",
        f"s_lshl_b32 s{S_T0}, s{S_W}, 4", f"v_add_u32 v{T+5}, s{S_T0}, v{A}", f"v_mul_u32_u24 v{V_LW}, 2688, v{T+5}",
        f"v_lshl_add_u32 v{V_LW}, v{T+4}, 4, v{V_LW}")
    a.e(f"v_lshrrev_b32 v{C}, 4, v{L}", f"v_xor_b32 v{C}, v{C}, v{B}", f"v_add_u32 v{V_T0}, s{S_T0}, v{T+5}", f"v_mul_u32_u24 v{V_T0}, 896, v{V_T0}",
        f"v_lshl_add_u32 v{V_X0}, v{C}, 4, v{V_T0}", f"v_xor_b32 v{C}, 4, v{C}", f"v_lshl_add_u32 v{V_X1}, v{C}, 4, v{V_T0}",
        f"v_add_u32 v{V_X1}, {8*896}, v{V_X1}")
    a.e("s_waitcnt lgkmcnt(0)")
    a.e(f"s_mov_b32 s{S_X}, s76", f"s_and_b32 s{S_X+1}, s77, 0xffff", f"s_mov_b32 s{S_WQ}, s78", f"s_and_b32 s{S_WQ+1}, s79, 0xffff")
    stamp(a, 13)
    a.e(f"s_cmp_ge_u32 s{S_W}, 4", "s_cbranch_scc1 L_nold")
    for c in range(O.la0):
        dma_g0(a, c, 14 + c)
    a.label("L_nold")
    stamp(a, 0)
    if O.pref_code: code_pref(a)
    srd(a, S_WG, 84, 448 * 3584); srd(a, S_WU, 86, 448 * 3584)
    a.e(f"s_lshl_b32 s{S_W1K}, s{S_W}, 10", f"s_lshr_b32 s{S_CH}, s{S_W}, 2",
        f"s_and_b32 s{S_T0}, s{S_W}, 3", f"s_lshl_b32 s{S_TB}, s{S_RB}, 2", f"s_add_u32 s{S_TB}, s{S_TB}, s{S_T0}")
    a.e(f"v_mul_u32_u24 v{V_LWF}, 3584, v{T+5}", f"v_lshl_add_u32 v{V_LWF}, v{T+4}, 4, v{V_LWF}")
    a.e(f"s_lshl_b32 s{S_T0}, s{S_W}, 3", f"v_add_u32 v{V_T0}, s{S_T0}, v{A}")
    a.e(f"v_mul_u32_u24 v{V_WQ}, 2688, v{V_T0}", f"v_lshl_add_u32 v{V_WQ}, v{T+4}, 4, v{V_WQ}")
    a.e(f"v_mul_u32_u24 v{V_WF}, 3584, v{V_T0}", f"v_lshl_add_u32 v{V_WF}, v{T+4}, 4, v{V_WF}")
    a.e(f"v_lshlrev_b32 v{V_SH}, 4, v{L}")
    prologue2(a)
    a.e(f"v_xor_b32 v{V_TRX}, 64, v{V_TR+1}", f"v_xor_b32 v{V_TRX+1}, 64, v{V_TR+2}")
    if O.pref_f == 1: pref_weights(a, None, [(4, S_WG), (5, S_WU)], True)
    stamp(a, 1)

def koff(dst, p, mul, base):
    return [f"s_bfe_u32 s{dst}, s{S_CP}, {(4 << 16) | (4 * p):#x}", f"s_mul_i32 s{dst}, s{dst}, {mul}", f"s_add_u32 s{dst}, s{dst}, s{base}"]

def dma_g0(a, c, unit, parts="xw"):
    xs, ws = [], []
    if "x" in parts:
        xs = [(f"s_add_u32 m0, s{S_W4K}, {c*16384}", *koff(S_T0, c, 128, S_XOFF), f"buffer_load_dwordx4 v{V_X0}, {sr(S_X,4)}, s{S_T0} offen lds"),
              (f"s_add_u32 m0, s{S_W4K}, {c*16384+1024}", "s_nop 0", f"buffer_load_dwordx4 v{V_X1}, {sr(S_X,4)}, s{S_T0} offen lds"),
              (f"s_add_u32 m0, s{S_W4K}, {c*16384+2048}", f"s_add_u32 s{S_T0}, s{S_T0}, {16*896}", f"buffer_load_dwordx4 v{V_X0}, {sr(S_X,4)}, s{S_T0} offen lds"),
              (f"s_add_u32 m0, s{S_W4K}, {c*16384+3072}", "s_nop 0", f"buffer_load_dwordx4 v{V_X1}, {sr(S_X,4)}, s{S_T0} offen lds")]
    if "w" in parts:
        ws = [(f"s_add_u32 m0, s{S_W2K}, {unit*8192}", *koff(S_T1, c, 64 * 2688, S_COL), f"buffer_load_dwordx4 v{V_LW}, {sr(S_WQ,4)}, s{S_T1} offen lds"),
              (f"s_add_u32 m0, s{S_W2K}, {unit*8192+1024}", f"s_add_u32 s{S_T1}, s{S_T1}, {8*2688}", f"buffer_load_dwordx4 v{V_LW}, {sr(S_WQ,4)}, s{S_T1} offen lds")]
    for g_ in ws + xs: a.e(*g_)
    return len(xs) + len(ws)

class Vm2:
    def __init__(self): self.n = [0, 0]; self.lo_only = False
    def issue(self):
        self.n[0] += 1
        if self.lo_only: return (self.n[0], None)
        self.n[1] += 1; return tuple(self.n)
    def issue_lo(self, k): self.n[0] += k; return (self.n[0], 0)
    def wait(self, a, tickets):
        t = [max(x[i] for x in tickets) for i in range(2)]
        k = [min(63, self.n[i] - t[i]) if t[i] else 63 for i in range(2)]
        if k[0] == k[1]:
            a.e(f"s_waitcnt vmcnt({k[0]})")
        elif k[1] == 63:
            nx = uid("vw")
            a.e(f"s_cmp_ge_u32 s{S_W}, 4", f"s_cbranch_scc1 {nx}", f"s_waitcnt vmcnt({k[0]})")
            a.label(nx)
        elif abs(k[0] - k[1]) <= 2:
            a.e(f"s_waitcnt vmcnt({min(k)})")
        elif k[1] < k[0]:
            nx = uid("vw")
            a.e(f"s_waitcnt vmcnt({k[0]})", f"s_cmp_lt_u32 s{S_W}, 4", f"s_cbranch_scc1 {nx}", f"s_waitcnt vmcnt({k[1]})")
            a.label(nx)
        else:
            nx = uid("vw")
            a.e(f"s_waitcnt vmcnt({k[1]})", f"s_cmp_ge_u32 s{S_W}, 4", f"s_cbranch_scc1 {nx}", f"s_waitcnt vmcnt({k[0]})")
            a.label(nx)

def prologue2(a):
    L = V_LANE
    A, B, C = T + 1, T + 2, T + 3
    srd(a, S_WO, 80, 448 * 896); srd(a, S_WD, 88, 1792 * 896); srd(a, S_GW, 90, 896); srd(a, S_OUT, 92, 2048 * 896)
    srd(a, S_DBG, 94, 256); srd(a, S_WS, 96, WS_END); srd(a, S_KV, 96, WS_END)
    a.e(f"v_mov_b32 v{V_ZERO}, 0")
    for r_ in range(240, 251): a.e(f"v_mov_b32 v{r_}, 0")
    skip = uid("nn")
    a.e(f"s_or_b32 s{S_T0}, s2, s{S_W}", f"s_cmp_lg_u32 s{S_T0}, 0", f"s_cbranch_scc1 {skip}")
    a.e("s_memrealtime s[4:5]", "s_waitcnt lgkmcnt(0)", "s_or_b32 s4, s4, 1", f"v_mov_b32 v{V_NONCE}, s4",
        "s_mov_b64 exec, 1", f"buffer_store_dword v{V_NONCE}, v{V_ZERO}, {sr(S_DBG,4)}, 0 offen {SC1}", "s_mov_b64 exec, -1")
    a.label(skip)
    a.e(f"v_lshrrev_b32 v{A}, 5, v{L}", f"v_bfe_u32 v{B}, v{L}, 2, 2", f"v_lshl_add_u32 v{C}, v{A}, 3, v{B}",
        f"v_lshlrev_b32 v{V_TR}, 7, v{C}", f"v_lshrrev_b32 v{B}, 1, v{B}", f"v_xor_b32 v{B}, s{S_CH}, v{B}",
        f"v_lshl_add_u32 v{V_TR}, v{B}, 6, v{V_TR}", f"v_bfe_u32 v{B}, v{L}, 4, 1", f"v_lshl_add_u32 v{V_TR}, v{B}, 5, v{V_TR}",
        f"v_and_b32 v{B}, 3, v{L}", f"v_lshl_add_u32 v{V_TR}, v{B}, 3, v{V_TR}",
        f"v_add_u32 v{V_TR+1}, 0x10000, v{V_TR}", f"v_add_u32 v{V_TR+2}, 0x20000, v{V_TR}")
    a.e(f"v_and_b32 v{B}, 31, v{L}", f"s_and_b32 s{S_T0}, s{S_W}, 3", f"s_lshl_b32 s{S_T0}, s{S_T0}, 5",
        f"v_add_u32 v{C}, s{S_T0}, v{B}", f"v_lshlrev_b32 v{V_T0}, 7, v{C}", f"v_bfe_u32 v{V_GS}, v{L}, 1, 3",
        f"v_xor_b32 v{V_GS}, v{V_GS}, v{A}")
    for e in range(4):
        a.e(f"v_xor_b32 v{V_XR+e}, {2*e}, v{V_GS}", f"v_lshl_add_u32 v{V_XR+e}, v{V_XR+e}, 4, v{V_T0}")
    a.e(f"s_lshl_b32 s{S_T0}, s{S_TB}, 5", f"v_add_u32 v{C}, s{S_T0}, v{B}", f"v_lshlrev_b32 v{V_SQ}, 4, v{C}",
        f"v_lshl_add_u32 v{V_SQ}, v{A}, 15, v{V_SQ}", f"v_lshlrev_b32 v{V_GS}, 2, v{C}")
    a.e(f"v_mul_u32_u24 v{V_SV}, 7168, v{A}", f"v_lshl_add_u32 v{V_SV}, v{B}, 4, v{V_SV}")

def role_c(a):
    L = V_LANE
    A, B, C = 204, 205, 206
    a.e(f"v_lshrrev_b32 v{A}, 5, v{L}", f"v_and_b32 v{B}, 31, v{L}")
    a.e(f"s_and_b32 s{S_T0}, s2, 7", f"s_lshr_b32 s{S_T1}, s2, 3")
    a.e(f"s_and_b32 s{SC_HEAD}, s{S_T1}, 1", f"s_lshl_b32 s{SC_HEAD}, s{SC_HEAD}, 3", f"s_add_u32 s{SC_HEAD}, s{SC_HEAD}, s{S_T0}",
        f"s_lshr_b32 s{SC_QT}, s{S_T1}, 1", f"s_mul_i32 s{SC_O}, s{SC_HEAD}, 7", f"s_lshr_b32 s{SC_O}, s{SC_O}, 1")
    a.e(f"v_lshlrev_b32 v{C_VK}, 4, v{B}", f"v_lshl_add_u32 v{C_VK}, v{A}, 15, v{C_VK}")
    a.e(f"s_mul_i32 s{S_T0}, s{SC_HEAD}, 448", f"v_add_u32 v{C_VV}, s{S_T0}, v{V_SV}")
    a.e(f"s_mov_b32 s{SC_EX}, {EXEC_V:#x}", f"s_mov_b32 s{SC_EX+1}, {EXEC_V:#x}")
    a.e(f"s_add_u32 s4, s{SC_O}, 56", "s_lshl_b32 s4, s4, 15", f"s_lshl_b32 s5, s{S_W}, 13", "s_add_u32 s4, s4, s5",
        f"s_mov_b32 s{SC_K+1}, s4", f"v_add_u32 v{C_VK1}, s4, v{C_VK}", f"v_mov_b32 v{C_QA}, v{C_VK}", f"v_mov_b32 v{C_VK}, v{C_VK1}",
        f"v_add_u32 v{C_VK1}, {2*OCT}, v{C_VK1}")
    a.e(f"s_mul_i32 s4, s{S_W}, {16*V_TB}", f"s_add_u32 s4, s4, {WS_V}", f"v_add_u32 v{C_VV}, s4, v{C_VV}", f"v_add_u32 v{C_VV1}, 14336, v{C_VV}")
    if O.rotc:
        a.e(f"s_lshl_b32 s{SC_K}, s{SC_QT}, 9")
    else:
        a.e(f"s_mov_b32 s{SC_K}, 0")
    a.e(f"s_mul_i32 s{SC_V0}, s{SC_K}, 56")
    a.e(f"s_and_b32 s{S_T0}, s{SC_HEAD}, 1", f"v_cmp_le_u32 vcc, s{S_T0}, v{A}", f"v_cndmask_b32 v{C_MA}, 0, -1, vcc",
        f"v_cmp_ge_u32 vcc, s{S_T0}, v{A}", f"v_cndmask_b32 v{C_MB}, 0, -1, vcc")
    a.e(f"v_cmp_eq_u32 vcc, 28, v{B}", f"v_mov_b32 v{C_ONE}, 0x3f803f80", f"v_cndmask_b32 v{C_ONE}, 0, v{C_ONE}, vcc")
    a.e(f"s_add_u32 s4, s{SC_O}, 56", "s_lshr_b32 s4, s4, 2", f"s_add_u32 s5, s{SC_O}, 59", "s_lshr_b32 s5, s5, 2",
        f"s_mul_i32 s6, s{SC_HEAD}, 28", "s_add_u32 s7, s6, 27", "s_lshr_b32 s6, s6, 5", "s_lshr_b32 s7, s7, 5",
        "s_add_u32 s6, s6, 28", "s_add_u32 s7, s7, 28")
    a.e(f"v_mov_b32 v{C_PA}, s7", f"v_mov_b32 v{C}, s6", f"v_cmp_gt_u32 vcc, 48, v{L}", f"v_cndmask_b32 v{C_PA}, v{C_PA}, v{C}, vcc",
        f"v_mov_b32 v{C}, s5", f"v_cmp_gt_u32 vcc, 32, v{L}", f"v_cndmask_b32 v{C_PA}, v{C_PA}, v{C}, vcc",
        f"v_mov_b32 v{C}, s4", f"v_cmp_gt_u32 vcc, 16, v{L}", f"v_cndmask_b32 v{C_PA}, v{C_PA}, v{C}, vcc")
    a.e(f"v_and_b32 v{C}, 15, v{L}", f"v_lshl_add_u32 v{C_PA}, v{C_PA}, 6, v{C}", f"s_lshl_b32 s4, s{S_W}, 4",
        f"v_add_u32 v{C_PA}, s4, v{C_PA}", f"v_lshlrev_b32 v{C_PA}, 3, v{C_PA}")
    a.e(f"s_lshr_b32 s4, s{SC_O}, 2", f"s_add_u32 s5, s{SC_O}, 3", "s_lshr_b32 s5, s5, 2", f"s_lshl_b32 s6, s{SC_QT}, 2")
    a.e(f"v_and_b32 v{C}, 3, v{L}", f"v_add_u32 v{C}, s6, v{C}")
    a.e(f"v_mov_b32 v{C_PB}, s5", f"v_mov_b32 v{V_T0}, s4", f"v_cmp_gt_u32 vcc, 4, v{L}", f"v_cndmask_b32 v{C_PB}, v{C_PB}, v{V_T0}, vcc",
        f"v_lshl_add_u32 v{C_PB}, v{C_PB}, 6, v{C}", f"v_lshlrev_b32 v{C_PB}, 3, v{C_PB}")
    a.e(f"v_lshlrev_b32 v{C}, 9, v{C}", f"v_add_u32 v{C}, {F_H + 56*8}, v{C}", f"v_cmp_gt_u32 vcc, 8, v{L}",
        f"v_cndmask_b32 v{C_PB}, v{C}, v{C_PB}, vcc")

def role_d(a):
    L = V_LANE
    A, B, C = 204, 205, 206
    done = uid("rdone")
    a.e(f"s_cmp_lt_u32 s{S_W}, 4", f"s_cbranch_scc1 {done}")
    a.e(f"v_lshrrev_b32 v{A}, 5, v{L}", f"v_and_b32 v{B}, 31, v{L}")
    a.e(f"s_and_b32 s{S_T0}, s2, 7", f"s_lshr_b32 s{S_T1}, s2, 3")
    a.e(f"s_mul_i32 s{SD_RT}, s{S_T1}, 37", f"s_lshr_b32 s{SD_RT}, s{SD_RT}, 8",
        f"s_mul_i32 s{SD_CT}, s{SD_RT}, 7", f"s_sub_u32 s{SD_CT}, s{S_T1}, s{SD_CT}", f"s_lshl_b32 s{S_T0}, s{S_T0}, 2",
        f"s_add_u32 s{SD_RT}, s{SD_RT}, s{S_T0}", f"s_and_b32 s{S_T0}, s{S_W}, 3", f"s_mul_i32 s{SD_LDS}, s{S_T0}, {L_DREG}")
    a.e(f"v_lshrrev_b32 v{C}, 3, v{L}", f"v_mul_u32_u24 v{D_VW}, 896, v{C}", f"v_and_b32 v{C}, 7, v{L}", f"v_bfe_u32 v{V_T0}, v{L}, 4, 1",
        f"v_lshlrev_b32 v{V_T0}, 2, v{V_T0}", f"v_xor_b32 v{C}, v{C}, v{V_T0}", f"v_lshl_add_u32 v{D_VW}, v{C}, 4, v{D_VW}")
    a.e(f"v_bfe_u32 v{C}, v{L}, 2, 2", f"v_lshl_add_u32 v{V_T0}, v{A}, 2, v{C}", f"v_lshlrev_b32 v{D_TR}, 7, v{V_T0}",
        f"v_lshrrev_b32 v{C}, 1, v{C}", f"v_lshl_add_u32 v{D_TR}, v{C}, 6, v{D_TR}", f"v_bfe_u32 v{C}, v{L}, 4, 1",
        f"v_lshl_add_u32 v{D_TR}, v{C}, 5, v{D_TR}", f"v_and_b32 v{C}, 3, v{L}", f"v_lshl_add_u32 v{D_TR}, v{C}, 3, v{D_TR}",
        f"v_xor_b32 v{D_TR+1}, 64, v{D_TR}", f"v_add_u32 v{D_TR}, s{SD_LDS}, v{D_TR}", f"v_add_u32 v{D_TR+1}, s{SD_LDS}, v{D_TR+1}")
    if O.rotd:
        a.e(f"s_and_b32 s4, s{SD_RT}, 3", "s_lshl_b32 s4, s4, 1", f"s_add_u32 s6, s4, s{SD_CT}", "s_cmp_ge_u32 s6, 7", "s_cselect_b32 s4, 7, 0",
            "s_sub_u32 s6, s6, s4", "s_lshl_b32 s6, s6, 2", f"s_mov_b32 s4, {ROT7 & 0xffffffff:#x}", f"s_mov_b32 s5, {ROT7 >> 32:#x}",
            "s_lshr_b64 s[4:5], s[4:5], s6", f"s_mov_b32 s{SD_CP}, s4")
    else:
        a.e(f"s_mov_b32 s{SD_CP}, 0x6543210")
    a.e(f"s_mul_i32 s4, s{S_T0}, 14", f"v_add_u32 v{C}, s4, v{B}", f"v_cmp_gt_u32 vcc, 14, v{B}", f"v_cndmask_b32 v{C}, 56, v{C}, vcc",
        f"s_lshl_b32 s5, s{SD_RT}, 1", f"v_add_u32 v{V_T0}, s5, v{A}", f"v_lshl_add_u32 v{D_PH}, v{V_T0}, 6, v{C}",
        f"v_lshlrev_b32 v{D_PH}, 3, v{D_PH}", f"v_add_u32 v{D_PH}, {F_H}, v{D_PH}")
    a.e(f"s_lshl_b32 s4, s{S_T0}, 2", f"v_and_b32 v{C}, 3, v{L}", f"v_add_u32 v{C}, s4, v{C}", f"v_lshl_add_u32 v{D_PO}, v{V_T0}, 4, v{C}",
        f"v_lshlrev_b32 v{D_PO}, 3, v{D_PO}", f"v_add_u32 v{D_PO}, {F_O}, v{D_PO}")
    a.label(done)

def pref_weights(a, vm, which, force=False):
    if not O.pref_w and not force: return
    end = uid("pw")
    a.e(f"s_lshl_b32 s{S_T0}, s2, 13", f"v_lshlrev_b32 v{T}, 7, v{V_LANE}")
    for w, s in which:
        nx = uid("pwn")
        a.e(f"s_cmp_lg_u32 s{S_W}, {w}", f"s_cbranch_scc1 {nx}", f"buffer_load_dword v{V_DUM}, v{T}, {sr(s,4)}, s{S_T0} offen")
        a.label(nx)

def group_params(a, gi, kind, nreg):
    col, ob, fl = S_COL + gi, S_OB + gi, S_FL + gi
    if kind == "G":
        a.e(f"s_lshl_b32 s{fl}, s{S_TB}, 9", f"s_add_u32 s{fl}, s{fl}, {WS_F + F_H + 56*8}")
        return
    if kind == "S":
        a.e(f"s_mov_b32 s{col}, {14*128}", f"s_sub_u32 s{S_T1}, s{S_J}, 13", f"s_lshr_b32 s{S_T1}, s{S_T1}, 1", f"s_add_u32 s{S_T1}, s{S_T1}, 28")
        a.e(f"s_lshl_b32 s{ob}, s{S_T1}, 9", f"s_mul_i32 s{S_T0}, s{S_TB}, {V_TB}", f"s_add_u32 s{ob}, s{ob}, s{S_T0}",
            f"s_add_u32 s{ob}, s{ob}, {WS_V - 14*1024}")
        a.e(f"s_lshl_b32 s{fl}, s{S_T1}, 6", f"s_add_u32 s{fl}, s{fl}, s{S_TB}", f"s_lshl_b32 s{fl}, s{fl}, 3", f"s_add_u32 s{fl}, s{fl}, {WS_F + F_T}")
        a.e(f"s_lshl_b32 s{S_T0}, s{S_TB}, 9", f"s_add_u32 s{S_T0}, s{S_T0}, {WS_F + F_H + 56*8}", f"s_cmp_ge_u32 s{S_W}, 4",
            f"s_cselect_b32 s{fl}, s{S_T0}, s{fl}")
        return
    if False:
        pass
    else:
        a.e(f"s_lshl_b32 s{col}, s{nreg}, 7", f"s_lshl_b32 s{S_T1}, s{nreg}, 1")
        if gi: a.e(f"s_add_u32 s{S_T1}, s{S_T1}, s{S_CH}")
    if kind == "QK":
        a.e(f"s_lshl_b32 s{ob}, s{S_T1}, 17")
        a.e(f"s_cmp_lt_u32 s{nreg}, 7", f"s_cselect_b32 s{S_SC}, {f2u(QSCALE):#x}, 1.0")
    elif kind == "V":
        a.e(f"s_lshl_b32 s{ob}, s{S_T1}, 9", f"s_mul_i32 s{S_T0}, s{S_TB}, {V_TB}", f"s_add_u32 s{ob}, s{ob}, s{S_T0}",
            f"s_add_u32 s{ob}, s{ob}, {WS_V - 14*1024}")
    elif kind == "F":
        a.e(f"s_lshl_b32 s{ob}, s{S_T1}, 11", f"s_mul_i32 s{S_T0}, s{S_TB}, {HO_TB}", f"s_add_u32 s{ob}, s{ob}, s{S_T0}",
            f"s_add_u32 s{ob}, s{ob}, {WS_HO}")
    if kind == "F":
        a.e(f"s_lshl_b32 s{fl}, s{S_TB}, 6", f"s_add_u32 s{fl}, s{fl}, s{S_T1}", f"s_lshl_b32 s{fl}, s{fl}, 3", f"s_add_u32 s{fl}, s{fl}, {WS_F + F_H}")
    else:
        a.e(f"s_lshl_b32 s{fl}, s{S_T1}, 6", f"s_add_u32 s{fl}, s{fl}, s{S_TB}", f"s_lshl_b32 s{fl}, s{fl}, 3", f"s_add_u32 s{fl}, s{fl}, {WS_F + F_T}")

def epi_F(a, vm, ob):
    A0, A1 = ACC, ACC + 16
    for i in range(16):
        a.e(f"v_max_f32 v{A0+i}, 0, v{A0+i}")
    for i in range(16):
        a.e(f"v_mul_f32 v{A0+i}, v{A0+i}, v{A1+i}")
    for k in range(8):
        a.e(f"v_cvt_pk_bf16_f32 v{T+k}, v{A0+2*k}, v{A0+2*k+1}")
        if k == 3:
            a.e(f"buffer_store_dwordx4 {vr(T,4)}, v{V_SH}, {sr(S_WS,4)}, s{ob} offen {SC1}"); vm.issue()
    a.e(f"buffer_store_dwordx4 {vr(T+4,4)}, v{V_SH}, {sr(S_WS,4)}, s{ob} offen offset:1024 {SC1}")
    return vm.issue()

def epilogue(a, vm, gi, kind, A0=ACC):
    ob = S_OB + gi
    if kind == "QK":
        for i in range(16):
            a.e(f"v_mul_f32 v{A0+i}, s{S_SC}, v{A0+i}")
        for k in range(8):
            a.e(f"v_cvt_pk_bf16_f32 v{T+k}, v{A0+2*k}, v{A0+2*k+1}")
        for p in range(2):
            a.e(f"v_permlane32_swap_b32 v{T+4*p}, v{T+4*p+2}", f"v_permlane32_swap_b32 v{T+4*p+1}, v{T+4*p+3}")
            a.e(f"s_add_u32 s{S_T0}, s{ob}, {2*p*OCT}")
            a.e(f"buffer_store_dwordx4 {vr(T+4*p,4)}, v{V_SQ}, {sr(S_WS,4)}, s{S_T0} offen {SC1}"); t = vm.issue()
        return t
    if kind in ("V", "H"):
        for k in range(8):
            a.e(f"v_cvt_pk_bf16_f32 v{T+k}, v{A0+2*k}, v{A0+2*k+1}")
            if k == 3:
                a.e(f"buffer_store_dwordx4 {vr(T,4)}, v{V_SV}, {sr(S_WS,4)}, s{ob} offen {SC1}"); vm.issue()
        a.e(f"s_add_u32 s{S_T0}, s{ob}, 14336")
        a.e(f"buffer_store_dwordx4 {vr(T+4,4)}, v{V_SV}, {sr(S_WS,4)}, s{S_T0} offen {SC1}")
        return vm.issue()
    if kind == "F":
        return epi_F(a, vm, ob)
    a.e(f"v_mul_f32 v{T}, {f2u(-math.log2(math.e)):#x}, v{A0}", f"v_exp_f32 v{T}, v{T}", f"v_add_f32 v{T}, 1.0, v{T}",
        f"v_rcp_f32 v{T}, v{T}", f"s_mov_b32 s{S_T0}, {WS_G}", "s_nop 0")
    a.e(f"buffer_store_dword v{T}, v{V_GS}, {sr(S_WS,4)}, s{S_T0} offen {SC1}")
    return vm.issue()

def get_tag(a):
    ok, top = uid("tagok"), uid("tagspin")
    a.e(f"v_readfirstlane_b32 s{S_TAG}, v{V_NONCE}", f"s_cmp_lg_u32 s{S_TAG}, 0", f"s_cbranch_scc1 {ok}", f"s_mov_b32 s{S_SPIN}, 0x8000")
    a.label(top)
    a.e(f"buffer_load_dword v{V_NONCE}, v{V_ZERO}, {sr(S_DBG,4)}, 0 offen {SC1}", "s_waitcnt vmcnt(0)",
        f"v_readfirstlane_b32 s{S_TAG}, v{V_NONCE}", f"s_cmp_lg_u32 s{S_TAG}, 0", f"s_cbranch_scc1 {ok}", "s_sleep 2",
        f"s_sub_u32 s{S_SPIN}, s{S_SPIN}, 1", f"s_cmp_lg_u32 s{S_SPIN}, 0", f"s_cbranch_scc1 {top}")
    a.label(ok)
    a.e(f"s_xor_b32 s{S_TAG+1}, s{S_TAG}, {TAGX:#x}", f"v_mov_b32 v{V_FD}, s{S_TAG}", f"v_mov_b32 v{V_FD+1}, s{S_TAG+1}")

def ab_program(a, kinds, params, solo=None):
    vm, lg = Vm2(), Lg()
    stages = []
    for gi, kind in enumerate(kinds):
        if gi == 0: continue
        if kind == "F":
            for c in range(7):
                stages.append(dict(gi=gi, k0=4*c, nk=4, kind=kind, nu=2))
        elif kind == "S" and solo == "G":
            stages.append(dict(gi=gi, k0=0, nk=28, kind=kind, nu=1))
        else:
            for k0, nk in ((0, 8), (8, 8), (16, 8), (24, 4)):
                stages.append(dict(gi=gi, k0=k0, nk=nk, kind=kind, nu=nk // 4))
    mf = []
    for si, st in enumerate(stages):
        st["first"] = len(mf)
        for s in range(st["k0"], st["k0"] + st["nk"]):
            for tile in range(2 if st["kind"] == "F" else 1):
                mf.append(dict(si=si, s=s, tile=tile, kind=st["kind"], gi=st["gi"]))
    g0 = [dict(u=14 + c if c < 6 else 14) for c in range(7)]
    for c in range(O.la0):
        g0[c]["t"] = vm.issue_lo(6)
    free = []
    state = dict(next_dma=0, tag=False, nonce=None)
    pend = []
    def issue_dma(si, lo):
        st = stages[si]
        gi, kind = st["gi"], st["kind"]
        st["u"] = [free.pop(0) for _ in range(st["nu"])]
        u = st["u"]
        c = st["k0"] // 4
        if lo:
            if kind == "F":
                a.e(*koff(S_T0, c, 64 * 3584, S_COL + gi), f"s_add_u32 s{S_T1}, s{S_T0}, {8*3584}")
                for q, w in enumerate((S_WG, S_WU)):
                    a.e(f"s_add_u32 m0, s{S_W2K}, {u[q]*8192}", "s_nop 0", f"buffer_load_dwordx4 v{V_LWF}, {sr(w,4)}, s{S_T0} offen lds")
                    a.e(f"s_add_u32 m0, s{S_W2K}, {u[q]*8192+1024}", "s_nop 0", f"buffer_load_dwordx4 v{V_LWF}, {sr(w,4)}, s{S_T1} offen lds")
            else:
                for q in range(st["nu"]):
                    a.e(f"s_add_u32 m0, s{S_W2K}, {u[q]*8192}", *koff(S_T0, c + q, 64 * 2688, S_COL + gi), f"buffer_load_dwordx4 v{V_LW}, {sr(S_WQ,4)}, s{S_T0} offen lds")
                    a.e(f"s_add_u32 m0, s{S_W2K}, {u[q]*8192+1024}", f"s_add_u32 s{S_T0}, s{S_T0}, {8*2688}", f"buffer_load_dwordx4 v{V_LW}, {sr(S_WQ,4)}, s{S_T0} offen lds")
            st["t"] = vm.issue_lo(2 * st["nu"])
        elif kind == "F":
            a.e(f"s_add_u32 m0, s{S_W1K}, {u[0]*8192}", *koff(S_T0, c, 64 * 3584, S_COL + gi))
            a.e(f"buffer_load_dwordx4 v{V_WF}, {sr(S_WG,4)}, s{S_T0} offen lds"); vm.issue()
            a.e(f"s_add_u32 m0, s{S_W1K}, {u[1]*8192}", "s_nop 0")
            a.e(f"buffer_load_dwordx4 v{V_WF}, {sr(S_WU,4)}, s{S_T0} offen lds"); st["t"] = vm.issue()
        else:
            for q in range(st["nk"] // 4 if not (kind == "S" and solo == "G") else 0):
                a.e(f"s_add_u32 m0, s{S_W1K}, {u[q]*8192}", *koff(S_T0, c + q, 64 * 2688, S_COL + gi))
                a.e(f"buffer_load_dwordx4 v{V_WQ}, {sr(S_WQ,4)}, s{S_T0} offen lds"); st["t"] = vm.issue()
            if kind == "S" and solo == "G":
                state["gu"] = st["u"][0]
                a.e(f"s_and_b32 s{S_T0}, s{S_CP}, 15", f"s_lshl_b32 s{S_T0}, s{S_T0}, 7", f"v_add_u32 v{V_T0}, s{S_T0}, v{V_SH}",
                    f"v_subrev_u32 v207, 896, v{V_T0}", f"v_min_u32 v{V_T0}, v{V_T0}, v207")
                a.e(f"s_add_u32 m0, s{S_W1K}, {state['gu']*8192}", "s_nop 0")
                a.e(f"buffer_load_dwordx4 v{V_T0}, {sr(S_GW,4)}, 0 offen lds"); st["t"] = vm.issue()
    def fill(pos, lo=False, si=-9):
        if si >= 0 and stages[si]["kind"] == "S": pos += 8 if solo == "H" else 24
        while state["next_dma"] < len(stages):
            st = stages[state["next_dma"]]
            if len(free) < st["nu"] or (st["first"] - pos > O.la and state["next_dma"] > si + 2) or (lo and st["kind"] == "S"):
                break
            issue_dma(state["next_dma"], lo); state["next_dma"] += 1
    def xreads(c):
        for q in range(4):
            a.e(f"v_add_u32 v{V_XC+q}, {c*16384}, v{V_XR+q}")
        return [f"ds_read_b128 {vr(X+16*c+4*q,4)}, v{V_XC+q}" for q in range(4)]
    def g0_mfma(c, i):
        s_, t_ = 4 * c + i // 2, i % 2
        f = (FB0 if c % 2 == 0 else FR) + 4 * i
        acc = ACC + 16 * t_
        cin = "0" if s_ == 0 else vr(acc, 16)
        if kinds[0] == "V":
            return f"{MFMA} {vr(acc,16)}, {vr(X+4*s_,4)}, {vr(f,4)}, {cin}"
        return f"{MFMA} {vr(acc,16)}, {vr(f,4)}, {vr(X+4*s_,4)}, {cin}"
    params(a, range(len(kinds)))
    a.e(f"s_mov_b32 s{S_LOB}, s{S_OB+len(kinds)-1}", f"s_mov_b32 s{S_LFL}, s{S_FL+len(kinds)-1}")
    lc, lj = uid("g0c"), uid("g0j")
    a.e(f"s_cmp_ge_u32 s{S_W}, 4", f"s_cbranch_scc1 {lc}")
    for c in range(7):
        a.e(f"s_waitcnt vmcnt({vm.n[0] - g0[c]['t'][0]})", "s_barrier")
        if O.bars == 1: stamp(a, 16 + c)
        if c >= 2:
            if c != 2: free.append(g0[c-2]["u"])
            free.extend([2 * (c - 2), 2 * (c - 2) + 1])
        a.e(*xreads(c))
        for q in range(7):
            if "t" not in g0[q] and q <= c + O.la1 and (q < 6 or c >= 2):
                g0[q]["t"] = vm.issue_lo(dma_g0(a, q, g0[q]["u"]))
        if "t" in g0[6]: fill(8 * (c - 7), lo=True)
    a.e(f"s_branch {lj}")
    a.label(lc)
    for c in range(7):
        a.e("s_barrier")
        if O.bars == 1: stamp(a, 16 + c)
        if O.pref_f >= 2 and c == O.pref_f - 2: pref_weights(a, None, [(4, S_WG), (5, S_WU)], True)
        rd = xreads(c)
        for i in range(8):
            f = (FB0 if c % 2 == 0 else FR) + 4 * i
            for u in range(2):
                off = g0[c]["u"] * 8192 + (16 * (i // 2) + 4 * u) * 128
                base = (V_TR + off // 65536) if i % 2 else (V_TRX + off // 65536 - 1)
                rd.append(f"ds_read_b64_tr_b16 {vr(f+2*u,2)}, v{base} offset:{off % 65536}")
        if c == 0:
            a.e(*rd)
        else:
            new = 0
            for i in range(8):
                a.e(f"s_waitcnt lgkmcnt({min(15, 2 * (7 - i) + new)})", g0_mfma(c - 1, i))
                k = 3 if i < 4 else 2
                a.e(*rd[:k]); rd = rd[k:]; new += k
            assert not rd
    a.label(lj)
    rel = [[g0[5]["u"], 10, 11], [g0[6]["u"], 12, 13]]
    def bar(si, m):
        st = stages[si]
        due = [p for p in pend if p[0] <= si]
        tk = [st["t"]] + [p[1] for p in due] + ([state["nonce"]] if due and not state["tag"] else [])
        vm.wait(a, tk)
        a.e("s_barrier")
        if O.bars == 1 and si < 6: stamp(a, 23 + si)
        if O.bars == 2 and si < 13: stamp(a, 16 + si)
        free.extend(stages[si - 2]["u"] if si >= 2 else rel[si])
        fill(m - PD, si=si)
        for p in due:
            if not state["tag"]:
                get_tag(a); state["tag"] = True
            if p[2] == 0:
                nx = uid("p0")
                a.e(f"s_cmp_lt_u32 s{S_W}, 4", f"s_cbranch_scc1 {nx}", f"s_add_u32 s{S_T0}, s{S_FL}, 512")
                publish(a, f"s{S_FL}"); publish(a, f"s{S_T0}"); vm.n[1] += 2
                a.label(nx)
            elif kinds[p[2]] == "S":
                nx = uid("p0")
                a.e(f"s_cmp_ge_u32 s{S_W}, 4" if solo == "H" else f"s_cmp_lt_u32 s{S_W}, 4", f"s_cbranch_scc1 {nx}")
                publish(a, f"s{S_FL+p[2]}"); vm.n[solo == "G"] += 1
                a.label(nx)
            else:
                publish(a, f"s{S_FL+p[2]}"); vm.issue()
            pend.remove(p)
        if si == 0:
            a.e(f"buffer_load_dword v{V_NONCE}, v{V_ZERO}, {sr(S_DBG,4)}, 0 offen {SC1}"); state["nonce"] = vm.issue()
        if si == 3:
            role_d(a)
        if si == len(stages) - 1:
            u = [q for q in free if q >= 17][0]
            a.e(f"s_mov_b32 s{S_CNT}, {u*8192 + 4096}", f"v_mov_b32 v204, s{S_CNT}", f"ds_write_b32 v204, v{V_ZERO}", f"ds_write_b32 v204, v{V_ZERO} offset:4"); lg.issue(); lg.issue()
        if si == O.mall_at:
            pref_weights(a, vm, [(0, S_WD), (1, S_WO)])
        if si == len(stages) - O.poll_back:
            a.e(f"s_mov_b32 s{S_T0}, {WS_F}")
            a.e(f"buffer_load_dwordx2 {vr(V_PD,2)}, v{C_PA}, {sr(S_WS,4)}, s{S_T0} offen {SC1}"); vm.issue()
            a.e(f"buffer_load_dwordx2 {vr(V_PD+2,2)}, v{C_PB}, {sr(S_WS,4)}, s{S_T0} offen {SC1}"); state["poll"] = vm.issue()
    blocks = {}
    def reads(m, hi=False):
        e = mf[m]; st = stages[e["si"]]
        if m == st["first"]:
            if hi:
                labs = [l[:-1] for l in blocks[m] if l.endswith(":")]
                for l in blocks[m]:
                    for q in labs: l = re.sub(rf"\b{q}\b", q + "h", l)
                    a.lines.append(l)
            else:
                n0 = len(a.lines); bar(e["si"], m); blocks[m] = a.lines[n0:]
        f = FR + 4 * (m % NFR)
        if st["kind"] == "S" and hi != (solo == "G"):
            return
        if hi:
            for u in range(2):
                a.e(f"ds_read_b64 {vr(f+2*u,2)}, v{V_XC+3} offset:{32*e['s']+8*u}"); e["t"] = lg.issue()
        else:
            kk = e["s"] - st["k0"]
            unit = st["u"][e["tile"]] if st["kind"] == "F" else st["u"][kk // 4]
            for u in range(2):
                off = unit * 8192 + (16 * (kk % 4) + 4 * u) * 128
                a.e(f"ds_read_b64_tr_b16 {vr(f+2*u,2)}, v{(V_XC if st['kind'] == 'S' else V_TR) + off // 65536} offset:{off % 65536}"); e["t"] = lg.issue()
    for m in range(PD):
        reads(m)
    nx, ny = uid("e0"), uid("e0")
    a.e(f"s_cmp_ge_u32 s{S_W}, 4", f"s_cbranch_scc1 {ny}")
    role_c(a)
    a.e(f"s_branch {nx}")
    a.label(ny)
    for i in range(8):
        a.e(f"s_waitcnt lgkmcnt({min(15, 2 * (7 - i) + 2 * PD)})", g0_mfma(6, i))
    dummy = Vm()
    epilogue(a, dummy, 0, kinds[0], ACC)
    a.e(f"s_add_u32 s{S_OB}, s{S_OB}, {131072 if kinds[0] == 'QK' else 512}")
    epilogue(a, dummy, 0, kinds[0], ACC + 16)
    vm.n[1] += dummy.n
    pend.append((O.pubd, (0, vm.n[1]), 0))
    a.label(nx)
    stamp(a, 3)
    def mfma(m, hi=False):
        e = mf[m]
        if e["kind"] == "S" and hi != (solo == "G"): return
        lg.wait(a, e["t"])
        f = FR + 4 * (m % NFR)
        acc = ACC + 16 * e["tile"]
        cin = "0" if e["s"] == 0 else vr(acc, 16)
        xa = vr(X + 4 * e["s"], 4)
        if e["kind"] in ("V", "S") and not hi:
            a.e(f"{MFMA} {vr(acc,16)}, {xa}, {vr(f,4)}, {cin}")
        else:
            a.e(f"{MFMA} {vr(acc,16)}, {vr(f,4)}, {xa}, {cin}")
    m = 0
    while m < len(mf):
        e = mf[m]
        if e["kind"] == "S":
            m1 = m + 28
            lh, lj2 = uid("sh"), uid("sj")
            if solo == "H":
                a.e(f"s_sub_u32 s{S_T0}, s{S_J}, 13", f"s_lshl_b32 s{S_T0}, s{S_T0}, 5")
                for q in range(3): a.e(f"v_xor_b32 v{V_XC+q}, s{S_T0}, v{V_TR+q}")
            else:
                a.e(f"v_lshrrev_b32 v{V_XC+3}, 5, v{V_LANE}", f"v_lshlrev_b32 v{V_XC+3}, 4, v{V_XC+3}",
                    f"s_add_u32 s{S_T0}, s{S_W1K}, {state['gu']*8192}", f"v_add_u32 v{V_XC+3}, s{S_T0}, v{V_XC+3}")
            a.e(f"s_cmp_ge_u32 s{S_W}, 4", f"s_cbranch_scc1 {lh}")
            lg0 = lg.n
            epi = {}
            for hi in (False, True):
                lg.n = lg0
                if hi: a.label(lh)
                for q in range(m, m + PD): reads(q, hi)
                if not hi:
                    n0 = len(a.lines); state["epi"](); epi = a.lines[n0:]
                else:
                    a.lines.extend(epi)
                for q in range(m, m1):
                    mfma(q, hi)
                    if q + PD < m1: reads(q + PD, hi)
                if not hi: a.e(f"s_branch {lj2}")
            a.label(lj2)
            lg.n = lg0 + 200
            for q in range(m1, m1 + PD): reads(q)
            lj2 = uid("sj")
            d0 = Vm()
            a.e(f"s_cmp_ge_u32 s{S_W}, 4" if solo == "H" else f"s_cmp_lt_u32 s{S_W}, 4", f"s_cbranch_scc1 {lj2}", "s_nop 7")
            epilogue(a, d0, e["gi"], "V" if solo == "H" else "G")
            a.label(lj2)
            vm.n[solo == "G"] += d0.n
            pend.append((mf[m1]["si"] + O.pubd_s, (vm.n[0], 0) if solo == "H" else (0, vm.n[1]), e["gi"]))
            stamp(a, 3 + e["gi"])
            m = m1
            continue
        mfma(m)
        if m + PD < len(mf) and mf[m + PD]["kind"] != "S":
            reads(m + PD)
        if O.early and m == len(mf) - O.hook_back:
            early_hook(a, vm.n[0] - state["poll"][0])
        if m + 1 < len(mf) and mf[m + 1]["gi"] != e["gi"]:
            def do_epi(e=e, m=m):
                t = epilogue(a, vm, e["gi"], e["kind"])
                pend.append((mf[m + 1]["si"] + O.pubd, t, e["gi"]))
                stamp(a, 3 + e["gi"])
            if mf[m + 1]["kind"] == "S": state["epi"] = do_epi
            else: do_epi()
        m += 1
    assert not pend and state["tag"]
    assert kinds[-1] == "F"

def c_adv(a):
    a.e(f"s_add_u32 s{SC_K}, s{SC_K}, 512", f"s_and_b32 s{SC_K}, s{SC_K}, 8191", f"s_mul_i32 s{SC_V0}, s{SC_K}, 56")

def c_loads(a, buf, imm=0):
    for w in range(4):
        c_load1(a, buf, 0, w, masked=(w == 3))

def c_smfma(a, i, half):
    kt, qs = (i // 4) % 4, i % 4
    S = CS + 16 * (i % 2)
    a.e(f"{MFMA} {vr(S,16)}, {vr(CKV+16*kt+4*half,4)}, {vr(CQ+8*qs+4*half,4)}, {'0' if half == 0 else vr(S,16)}")
def c_pv(a, i, half):
    i %= 16
    kt, qs = i // 4, i % 4
    Oq = CO + 16 * qs
    a.e(f"{MFMA} {vr(Oq,16)}, {vr(CKV+16*kt+8+4*half,4)}, {vr(CP+8*(i%2)+4*half,4)}, {vr(Oq,16)}")

def c_load1(a, buf, imm, which, masked=False):
    kb, vb = CKV + 16 * buf, CKV + 16 * buf + 8
    if which < 2:
        a.e(f"buffer_load_dwordx4 {vr(kb+4*which,4)}, v{C_VK1 if which else C_VK}, {sr(S_KV,4)}, s{SC_K} offen {SC1}")
    else:
        a.e(f"s_mov_b64 exec, {sr(SC_EX,2)}")
        a.e(f"buffer_load_dwordx4 {vr(vb+4*(which-2),4)}, v{C_VV1 if which == 3 else C_VV}, {sr(S_KV,4)}, s{SC_V0} offen {SC1}")
        a.e("s_mov_b64 exec, -1")
        if which == 3: c_adv(a)

def c_step(a, i):
    S, P = CS + 16 * (i % 2), CP + 8 * (i % 2)
    ex = lambda k: a.e(f"v_exp_f32 v{S+k}, v{S+k}")
    cv = lambda k: a.e(f"v_cvt_pk_bf16_f32 v{P+k}, v{S+2*k}, v{S+2*k+1}")
    kt = i // 4
    def mem():
        if i == 4:
            a.e(f"s_cmp_eq_u32 s{SC_IT}, 1", f"s_cselect_b32 s{S_KV+2}, 0, s{S_KV+2}")
        if O.noload:
            pass
        elif O.spread:
            c_load1(a, (kt + 3) % 4, 512 * (kt + 3), i % 4)
        elif i % 4 == 0:
            c_loads(a, (kt + 3) % 4, 512 * (kt + 3))
    def wt():
        if O.delay_d and i == O.d_go[1]:
            sk = uid("go")
            a.e(f"s_cmp_lg_u32 s{SC_IT}, {O.d_go[0]}", f"s_cbranch_scc1 {sk}", f"v_mov_b32 v{C_T+4}, s{S_CNT}", f"ds_write_b32 v{C_T+4}, v{C_T+4} offset:4")
            a.label(sk)
        if i % 4 == 3:
            a.e(f"s_waitcnt vmcnt({7 if O.spread else 8})")
            if i == 3:
                sk = uid("pub")
                a.e(f"s_cmp_lg_u32 s{SC_IT}, 4", f"s_cbranch_scc1 {sk}")
                a.e("s_mov_b64 exec, 1", f"buffer_store_dwordx2 {vr(C_T,2)}, v{V_ZERO}, {sr(S_WS,4)}, s{S_LFL} offen {SC1}", "s_mov_b64 exec, -1")
                a.label(sk)
    if O.pack == 0:
        wt()
        c_smfma(a, i + 1, 0)
        for k in range(4): ex(k)
        c_smfma(a, i + 1, 1)
        ex(4); ex(5); cv(0); cv(1); ex(6); ex(7)
        c_pv(a, i - 1, 0)
        ex(8); ex(9); cv(2); cv(3); ex(10); ex(11)
        c_pv(a, i - 1, 1)
        mem()
        for k in range(12, 16): ex(k)
        cv(4); cv(5); cv(6); cv(7)
    elif O.pack == 1:
        c_pv(a, i - 1, 0)
        ex(0); ex(1); ex(2)
        c_pv(a, i - 1, 1)
        ex(3); ex(4); ex(5)
        wt()
        c_smfma(a, i + 1, 0)
        ex(6); ex(7); cv(0); cv(1)
        c_smfma(a, i + 1, 1)
        mem()
        ex(8); ex(9); cv(2); ex(10); ex(11); cv(3); ex(12); ex(13); cv(4); ex(14); ex(15); cv(5); cv(6); cv(7)
    elif O.pack == 3:
        sub = Asm(); keep = a.lines; a.lines = sub.lines; mem(); a.lines = keep
        ml = sub.lines
        grp = []
        k = 0
        while k < len(ml):
            if "s_mov_b64 exec, s[" in ml[k]: grp.append(ml[k:k+3]); k += 3
            elif "s_cmp_eq" in ml[k]: grp.append(ml[k:k+2]); k += 2
            else: grp.append([ml[k]]); k += 1
        def nx():
            if grp: a.lines.extend(grp.pop(0))
        c_pv(a, i - 1, 0)
        ex(0); ex(1); ex(2)
        c_pv(a, i - 1, 1)
        ex(3); ex(4); ex(5)
        wt()
        c_smfma(a, i + 1, 0)
        ex(6); ex(7); cv(0); cv(1)
        c_smfma(a, i + 1, 1)
        ex(8); nx(); ex(9); nx(); cv(2); ex(10); nx(); ex(11); nx(); cv(3); ex(12); nx(); ex(13); cv(4); ex(14); ex(15); cv(5); cv(6); cv(7)
        assert not grp
    elif O.pack == 2:
        c_pv(a, i - 1, 0)
        ex(0); ex(1)
        c_pv(a, i - 1, 1)
        ex(2); ex(3); cv(0)
        wt()
        c_smfma(a, i + 1, 0)
        ex(4); ex(5); cv(1)
        c_smfma(a, i + 1, 1)
        mem()
        ex(6); ex(7); cv(2); ex(8); ex(9); cv(3); ex(10); ex(11); cv(4); ex(12); ex(13); cv(5); ex(14); ex(15); cv(6); cv(7)

def vinit(a, b):
    for k in range(8):
        a.e(f"v_mov_b32 v{CKV+16*b+8+k}, v{C_ONE}")

def first_loads(a):
    vinit(a, 0)
    c_loads(a, 0, 0)
    a.e(f"s_lshl_b32 s4, s{SC_O}, 15", f"s_lshl_b32 s5, s{SC_QT}, 11", "s_add_u32 s4, s4, s5")
    for i in range(4):
        a.e(f"s_add_u32 s5, s{S_W}, {i}", "s_and_b32 s5, s5, 3", "s_lshl_b32 s5, s5, 9", "s_add_u32 s5, s5, s4", f"s_add_u32 s6, s5, {2*OCT}")
        a.e(f"buffer_load_dwordx4 {vr(CQ+8*i,4)}, v{C_QA}, {sr(S_WS,4)}, s5 offen {SC1}")
        a.e(f"buffer_load_dwordx4 {vr(CQ+8*i+4,4)}, v{C_QA}, {sr(S_WS,4)}, s6 offen {SC1}")
    a.e(f"s_lshl_b32 s4, s{SC_QT}, 2", f"s_add_u32 s4, s4, s{S_W}", "s_lshl_b32 s4, s4, 7", f"s_add_u32 s4, s4, {WS_G}",
        f"v_and_b32 v{C_G}, 31, v{V_LANE}", f"v_lshlrev_b32 v{C_G}, 2, v{C_G}")
    a.e(f"buffer_load_dword v{C_G}, v{C_G}, {sr(S_WS,4)}, s4 offen {SC1}")

def early_hook(a, k):
    sk = uid("eh")
    a.e(f"s_mov_b32 s{S_EARLY}, 0", f"s_cmp_ge_u32 s{S_W}, 4", f"s_cbranch_scc1 {sk}", f"s_waitcnt vmcnt({k})")
    poll_check(a, V_PD, sk); poll_check(a, V_PD + 2, sk)
    first_loads(a)
    a.e(f"s_mov_b32 s{S_EARLY}, 1")
    a.label(sk)

def attention(a):
    L, TT = V_LANE, C_T
    vm = Vm()
    spin, go, go2 = uid("aspin"), uid("ago"), uid("ago")
    if O.prio_attn: a.e(f"s_setprio {O.prio_attn}")
    if O.early:
        a.e(f"s_cmp_eq_u32 s{S_EARLY}, 0", f"s_cbranch_scc1 {spin}")
    else:
        a.e("s_waitcnt vmcnt(0)")
        poll_check(a, V_PD, spin); poll_check(a, V_PD + 2, spin)
        a.label(go2)
        first_loads(a)
    a.label(go)
    stamp(a, 8)
    a.e(f"v_and_b32 v{TT+2}, 31, v{L}", f"s_lshl_b32 s{S_TB}, s{SC_QT}, 2", f"s_add_u32 s{S_TB}, s{S_TB}, s{S_W}")
    epi_F(a, vm, S_LOB)
    a.e(f"v_mov_b32 v{TT}, v{V_FD}", f"v_mov_b32 v{TT+1}, v{V_FD+1}")
    for b in range(1, 4): vinit(a, b)
    c_loads(a, 1, 512)
    for i in range(64):
        a.e(f"v_mov_b32 v{CO+i}, 0")
    for i in range(8):
        a.e(f"v_mov_b32 v{CP+8+i}, 0")
    c_loads(a, 2, 1024)
    a.e(f"s_mov_b32 s{SC_IT}, 4")
    a.e("s_waitcnt vmcnt(10)")
    for qs in range(4):
        a.e(f"v_and_b32 v{CQ+8*qs}, v{CQ+8*qs}, v{C_MA}", f"v_and_b32 v{CQ+8*qs+1}, v{CQ+8*qs+1}, v{C_MA}",
            f"v_and_b32 v{CQ+8*qs+6}, v{CQ+8*qs+6}, v{C_MB}", f"v_and_b32 v{CQ+8*qs+7}, v{CQ+8*qs+7}, v{C_MB}")
    stamp(a, 9)
    c_smfma(a, 0, 0); c_smfma(a, 0, 1)
    a.e("s_nop 7")
    a.raw(".p2align 3")
    a.label("L_c_loop")
    for i in range(16):
        c_step(a, i)
    if O.stamp == 1 and O.bars == 3:
        a.e("s_memtime s[6:7]", "s_waitcnt lgkmcnt(0)", "s_sub_u32 s6, s6, s100", f"s_add_u32 m0, s{SC_IT}, 15", "s_nop 0", f"v_writelane_b32 v255, s6, m0")
    a.e(f"s_sub_u32 s{SC_IT}, s{SC_IT}, 1", f"s_cmp_lg_u32 s{SC_IT}, 0", "s_cbranch_scc1 L_c_loop")
    stamp(a, 10)
    c_pv(a, 15, 0); c_pv(a, 15, 1)
    for i in range(1, 4):
        a.e(f"s_add_u32 s{S_T1}, s{S_W}, {i}", f"s_and_b32 s{S_T1}, s{S_T1}, 3", f"s_mul_i32 s{S_T1}, s{S_T1}, 12288",
            f"s_add_u32 s{S_T1}, s{S_T1}, {L_XCH + (i-1)*4096}", f"v_add_u32 v{TT+4+i}, s{S_T1}, v{V_SH}")
    for i in range(1, 4):
        for q in range(4):
            a.e(f"ds_write_b128 v{TT+4+i}, {vr(CO+16*i+4*q,4)} offset:{q*1024}")
    a.e(f"v_mov_b32 v{TT+5}, s{S_CNT}", f"v_mov_b32 v{TT+6}, 1", "s_waitcnt lgkmcnt(0)", "s_mov_b64 exec, 1",
        f"ds_add_u32 v{TT+5}, v{TT+6}", "s_mov_b64 exec, -1", f"s_mov_b32 s{S_SPIN}, 0x100000")
    top, dn = uid("xs"), uid("xd")
    a.label(top)
    a.e(f"ds_read_b32 v{TT+6}, v{TT+5}", "s_waitcnt lgkmcnt(0)", f"v_readfirstlane_b32 s{S_T1}, v{TT+6}", f"s_cmp_ge_u32 s{S_T1}, 4",
        f"s_cbranch_scc1 {dn}", f"s_sub_u32 s{S_SPIN}, s{S_SPIN}, 1", f"s_cmp_lg_u32 s{S_SPIN}, 0", f"s_cbranch_scc1 {top}")
    a.label(dn)
    stamp(a, 11)
    a.e(f"s_mul_i32 s{S_T1}, s{S_W}, 12288", f"s_add_u32 s{S_T1}, s{S_T1}, {L_XCH}", f"v_add_u32 v{TT+4}, s{S_T1}, v{V_SH}")
    for i in range(1, 4):
        for q in range(4):
            a.e(f"ds_read_b128 {vr(CO+16*i+4*q,4)}, v{TT+4} offset:{(i-1)*4096+q*1024}")
    a.e(f"s_mul_i32 s{S_T0}, s{S_TB}, {HO_TB}", f"s_lshl_b32 s{S_T1}, s{SC_HEAD}, 11", f"s_add_u32 s{S_T0}, s{S_T0}, s{S_T1}",
        f"s_add_u32 s{S_T0}, s{S_T0}, {WS_HO + 112*1024}")
    a.e(f"s_lshl_b32 s{S_LFL}, s{S_TB}, 4", f"s_add_u32 s{S_LFL}, s{S_LFL}, s{SC_HEAD}", f"s_lshl_b32 s{S_LFL}, s{S_LFL}, 3",
        f"s_add_u32 s{S_LFL}, s{S_LFL}, {WS_F + F_O}")
    a.e("s_waitcnt lgkmcnt(0)")
    for i in range(16):
        a.e(f"v_add_f32 v{CO+i}, v{CO+i}, v{CO+16+i}", f"v_add_f32 v{CO+32+i}, v{CO+32+i}, v{CO+48+i}")
    for i in range(16):
        a.e(f"v_add_f32 v{CO+i}, v{CO+i}, v{CO+32+i}")
    a.e(f"v_mov_b32 v{TT+5}, v{CO+12}", f"v_mov_b32 v{TT+6}, v{CO+12}", f"v_permlane32_swap_b32 v{TT+5}, v{TT+6}")
    a.e(f"v_rcp_f32 v{TT+6}, v{TT+6}", f"v_mul_f32 v{TT+6}, v{TT+6}, v{C_G}")
    for i in range(16):
        a.e(f"v_mul_f32 v{CO+i}, v{CO+i}, v{TT+6}")
    for k in range(8):
        a.e(f"v_cvt_pk_bf16_f32 v{CP+k}, v{CO+2*k}, v{CO+2*k+1}")
        if k == 3:
            a.e(f"buffer_store_dwordx4 {vr(CP,4)}, v{V_SH}, {sr(S_WS,4)}, s{S_T0} offen {SC1}")
    a.e("s_mov_b32 exec_lo, 0", f"v_mov_b32 v{CP+6}, 0", f"v_mov_b32 v{CP+7}, 0", "s_mov_b32 exec_lo, -1")
    a.e(f"buffer_store_dwordx4 {vr(CP+4,4)}, v{V_SH}, {sr(S_WS,4)}, s{S_T0} offen offset:1024 {SC1}")
    a.e("s_waitcnt vmcnt(0)", "s_mov_b64 exec, 1")
    a.e(f"buffer_store_dwordx2 {vr(TT,2)}, v{V_ZERO}, {sr(S_WS,4)}, s{S_LFL} offen {SC1}")
    stamp(a, 12)
    stamp_end(a)
    a.e("s_endpgm")
    a.label(spin)
    poll_spin(a, [C_PA, C_PB], V_PD)
    if O.early:
        first_loads(a)
        a.e(f"s_branch {go}")
    else:
        a.e(f"s_branch {go2}")

def dphase(a):
    L, TT = V_LANE, D_T
    vm, lg = Vm(), Lg()
    RW, RB = O.rw, O.rb
    ts = epi_F(a, vm, S_LOB)
    fin = uid("dfin")
    a.e(f"s_cmp_ge_u32 s2, 224", f"s_cbranch_scc1 {fin}")
    a.e(f"s_and_b32 s{S_W}, s{S_W}, 3")
    a.e(f"s_mul_i32 s{SD_WB}, s{S_W}, {28*16*896}", f"s_lshl_b32 s{S_T0}, s{SD_CT}, 7", f"s_add_u32 s{SD_WB}, s{SD_WB}, s{S_T0}")
    a.e(f"s_mul_i32 s{SD_BB}, s{SD_RT}, {2*HO_TB}", f"s_mul_i32 s{S_T0}, s{S_W}, {28*1024}", f"s_add_u32 s{SD_BB}, s{SD_BB}, s{S_T0}",
        f"s_add_u32 s{SD_BB}, s{SD_BB}, {WS_HO}")
    NK = 36
    wt, bt = {}, {}
    pace = [O.d_pace >= 0]
    def wload(n):
        if n == 28:
            a.e(f"s_mul_i32 s{SD_W}, s{S_W}, {112*896}", f"s_lshl_b32 s{S_T0}, s{SD_CT}, 7", f"s_add_u32 s{SD_W}, s{SD_W}, s{S_T0}")
        elif n < 28 and n % 4 == 0:
            a.e(f"s_bfe_u32 s{SD_W}, s{SD_CP}, {(4 << 16) | n:#x}", f"s_mul_i32 s{SD_W}, s{SD_W}, {64*896}", f"s_add_u32 s{SD_W}, s{SD_W}, s{SD_WB}")
        row = 16 * (n % 4) if n < 28 else 28 * ((n - 28) // 2) + 16 * (n % 2)
        w = S_WD if n < 28 else S_WO
        slot = n % RW
        a.e(f"s_add_u32 m0, s{SD_LDS}, {slot*2048}", f"s_add_u32 s{S_T0}, s{SD_W}, {row*896}")
        a.e(f"buffer_load_dwordx4 v{D_VW}, {sr(w,4)}, s{S_T0} offen lds"); vm.issue()
        a.e(f"s_add_u32 m0, s{SD_LDS}, {slot*2048+1024}", f"s_add_u32 s{S_T0}, s{S_T0}, {8*896}")
        a.e(f"buffer_load_dwordx4 v{D_VW}, {sr(w,4)}, s{S_T0} offen lds"); wt[n] = vm.issue()
        if pace[0]: a.e(f"s_waitcnt vmcnt({O.d_pace})")
    def bload(n):
        if n == 28:
            a.e(f"s_mul_i32 s{SD_B0}, s{SD_RT}, {2*HO_TB}", f"s_mul_i32 s{S_T0}, s{S_W}, {8*1024}", f"s_add_u32 s{SD_B0}, s{SD_B0}, s{S_T0}",
                f"s_add_u32 s{SD_B0}, s{SD_B0}, {WS_HO + 112*1024}", f"s_add_u32 s{SD_B1}, s{SD_B0}, {HO_TB}")
        elif n == 32:
            a.e(f"s_add_u32 s{SD_B0}, s{SD_B0}, 4096", f"s_add_u32 s{SD_B1}, s{SD_B1}, 4096")
        elif n % 4 == 0:
            a.e(f"s_bfe_u32 s{SD_B0}, s{SD_CP}, {(4 << 16) | n:#x}", f"s_lshl_b32 s{SD_B0}, s{SD_B0}, 12", f"s_add_u32 s{SD_B0}, s{SD_B0}, s{SD_BB}",
                f"s_add_u32 s{SD_B1}, s{SD_B0}, {HO_TB}")
        slot = n % RB
        a.e(f"buffer_load_dwordx4 {vr(DB+8*slot,4)}, v{V_SH}, {sr(S_WS,4)}, s{SD_B0} offen offset:{(n%4)*1024} {SC1}"); vm.issue()
        a.e(f"buffer_load_dwordx4 {vr(DB+8*slot+4,4)}, v{V_SH}, {sr(S_WS,4)}, s{SD_B1} offen offset:{(n%4)*1024} {SC1}"); bt[n] = vm.issue()
        if pace[0]: a.e(f"s_waitcnt vmcnt({O.d_pace})")
    lt = {}
    def areads(n):
        vm.wait(a, wt[n])
        slot = n % RW
        for nb in range(2):
            for u in range(2):
                a.e(f"ds_read_b64_tr_b16 {vr(DA+8*(n%2)+4*nb+2*u,2)}, v{D_TR+nb} offset:{slot*2048+u*1024}"); lt[(n, nb)] = lg.issue()
    for n in range(O.d_first):
        wload(n)
    vm.wait(a, ts)
    publish(a, f"s{S_LFL}"); vm.issue()
    for n in range(O.d_first, RW):
        wload(n)
    stamp(a, 8)
    poll_spin(a, [D_PH], V_PD)
    stamp(a, 9)
    a.e(f"buffer_load_dwordx2 {vr(V_PD,2)}, v{D_PO}, {sr(S_WS,4)}, s{S_T0} offen {SC1}"); vm.issue()
    if O.h_touch:
        a.e(f"v_lshrrev_b32 v{TT+3}, 4, v{L}", f"v_mul_u32_u24 v{TT+3}, 7168, v{TT+3}", f"v_bfe_u32 v{TT+4}, v{L}, 3, 1",
            f"v_mul_u32_u24 v{TT+4}, {HO_TB}, v{TT+4}", f"v_add_u32 v{TT+3}, v{TT+3}, v{TT+4}", f"v_and_b32 v{TT+4}, 7, v{L}",
            f"v_lshl_add_u32 v{TT+3}, v{TT+4}, 7, v{TT+3}", f"s_mul_i32 s{S_T0}, s{S_W}, 28", f"s_add_u32 s{S_T0}, s{S_T0}, s{SD_CT}",
            f"s_lshl_b32 s{S_T0}, s{S_T0}, 10", f"s_mul_i32 s{S_T1}, s{SD_RT}, {2*HO_TB}", f"s_add_u32 s{S_T0}, s{S_T0}, s{S_T1}",
            f"s_add_u32 s{S_T0}, s{S_T0}, {WS_HO}", f"buffer_load_dword v{TT+5}, v{TT+3}, {sr(S_WS,4)}, s{S_T0} offen {SC1}"); vm.issue()
    a.e(f"v_and_b32 v{TT+1}, 31, v{L}", f"v_lshlrev_b32 v{TT+2}, 2, v{TT+1}", f"s_lshl_b32 s{S_T0}, s{SD_RT}, 8", f"s_add_u32 s{S_T0}, s{S_T0}, {WS_G}")
    a.e(f"buffer_load_dword v{D_G}, v{TT+2}, {sr(S_WS,4)}, s{S_T0} offen {SC1}"); vm.issue()
    a.e(f"buffer_load_dword v{D_G+1}, v{TT+2}, {sr(S_WS,4)}, s{S_T0} offen offset:128 {SC1}"); vm.issue()
    for n in range(RB):
        bload(n)
    def gowait():
        pace[0] = False
        if O.delay_d:
            top, dn = uid("dg"), uid("dg")
            a.e(f"v_mov_b32 v{TT+3}, s{S_CNT}", f"s_mov_b32 s{S_SPIN}, 0x40000")
            a.label(top)
            a.e(f"ds_read_b32 v{TT+4}, v{TT+3} offset:4", "s_waitcnt lgkmcnt(0)", f"v_readfirstlane_b32 s{S_T0}, v{TT+4}", f"s_cmp_lg_u32 s{S_T0}, 0",
                f"s_cbranch_scc1 {dn}", f"s_sleep {O.dsleep}", f"s_sub_u32 s{S_SPIN}, s{S_SPIN}, 1", f"s_cmp_lg_u32 s{S_SPIN}, 0", f"s_cbranch_scc1 {top}")
            a.label(dn)
            stamp(a, 15)
    if O.d_pre == 0: gowait()
    areads(0)
    for n in range(NK):
        if n == O.d_pre and n > 0:
            gowait()
        if n == 28:
            stamp(a, 10)
            poll_spin(a, [D_PO], V_PD, sleep=O.o_sleep)
            stamp(a, 11)
            for k in range(28, NK):
                bload(k)
            a.e(f"v_sub_f32 v{D_G}, 1.0, v{D_G}", f"v_sub_f32 v{D_G+1}, 1.0, v{D_G+1}")
            for nb in range(2):
                for tb in range(2):
                    for i in range(16):
                        r = DACC + 32 * nb + 16 * tb + i
                        a.e(f"v_mul_f32 v{r}, v{r}, v{D_G+tb}")
        if n + 1 < NK:
            areads(n + 1)
        vm.wait(a, bt[n])
        slot = n % RB
        for nb in range(2):
            lg.wait(a, lt[(n, nb)])
            for tb in range(2):
                acc = DACC + 32 * nb + 16 * tb
                a.e(f"{MFMA} {vr(acc,16)}, {vr(DA+8*(n%2)+4*nb,4)}, {vr(DB+8*slot+4*tb,4)}, {'0' if n == 0 else vr(acc,16)}")
        if n + RW < NK:
            wload(n + RW)
        if n + RB < 28:
            bload(n + RB)
    stamp(a, 12)
    a.e(f"v_lshrrev_b32 v{TT}, 5, v{L}", f"v_mul_u32_u24 v{TT+2}, 272, v{TT+1}", f"v_lshl_add_u32 v{TT+2}, v{TT}, 4, v{TT+2}",
        f"v_add_u32 v{TT+2}, s{SD_LDS}, v{TT+2}")
    for nb in range(2):
        for tb in range(2):
            for g in range(4):
                a.e(f"ds_write_b128 v{TT+2}, {vr(DACC+32*nb+16*tb+4*g,4)} offset:{tb*32*272 + nb*128 + g*32}")
    a.e(f"v_and_b32 v{TT+4}, 255, v0", f"v_lshrrev_b32 v{TT}, 3, v{TT+4}", f"v_and_b32 v{TT+1}, 7, v0", f"v_mul_u32_u24 v{TT+5}, 272, v{TT}",
        f"v_lshl_add_u32 v{TT+5}, v{TT+1}, 5, v{TT+5}")
    a.e(f"v_mul_u32_u24 v{TT+3}, 896, v{TT}", f"v_lshl_add_u32 v{TT+3}, v{TT+1}, 4, v{TT+3}")
    a.e(f"s_mul_i32 s{S_T0}, s{SD_RT}, {64*896}", f"s_lshl_b32 s{S_T1}, s{SD_CT}, 7", f"s_add_u32 s{S_T0}, s{S_T0}, s{S_T1}",
        f"s_add_u32 s{S_T1}, s{S_T0}, {32*896}")
    a.e(f"v_add_u32 v{TT+6}, {2*L_DREG}, v{TT+5}")
    a.e("s_waitcnt lgkmcnt(0)", "s_barrier")
    for p in range(2):
        for w in range(4):
            for q in range(2):
                a.e(f"ds_read_b128 {vr(DACC+32*p+8*w+4*q,4)}, v{TT+5+w//2} offset:{(w%2)*L_DREG + p*32*272 + q*16}")
    for p in range(2):
        a.e(f"s_waitcnt lgkmcnt({8 if p == 0 else 0})")
        b = DACC + 32 * p
        for i in range(8):
            a.e(f"v_add_f32 v{b+i}, v{b+i}, v{b+8+i}", f"v_add_f32 v{b+16+i}, v{b+16+i}, v{b+24+i}")
        for i in range(8):
            a.e(f"v_add_f32 v{b+i}, v{b+i}, v{b+16+i}")
        for k in range(4):
            a.e(f"v_cvt_pk_bf16_f32 v{b+8+k}, v{b+2*k}, v{b+2*k+1}")
        a.e(f"buffer_store_dwordx4 {vr(b+8,4)}, v{TT+3}, {sr(S_OUT,4)}, s{S_T0 if p == 0 else S_T1} offen")
    if O.stamp: a.e(f"s_add_u32 s{S_W}, s{S_W}, 4")
    stamp_end(a)
    a.e("s_endpgm")
    a.label(fin)
    a.e("s_waitcnt vmcnt(0)")
    publish(a, f"s{S_LFL}")
    stamp_end(a)
    a.e("s_endpgm")

def gen(a):
    K = NAME + "_kernel"
    a.label(K)
    a.e("s_cmp_ge_u32 s2, 256", "s_cbranch_scc1 L_exit")
    stamp_start(a)
    prologue(a)
    N = S_N
    a.e(f"s_cmp_eq_u32 s{S_J}, 12", "s_cbranch_scc1 L_B", f"s_cmp_eq_u32 s{S_J}, 14", "s_cbranch_scc1 L_C",
        f"s_cmp_gt_u32 s{S_J}, 12", "s_cbranch_scc1 L_D")
    def paramsA(a, gis):
        nf = 0
        for gi, k in enumerate(O.order_A):
            if gi in gis:
                if k == "QK": a.e(f"s_mov_b32 s{N}, s{S_J}")
                else: a.e(f"s_lshl_b32 s{N}, s{S_J}, 1", f"s_add_u32 s{N}, s{N}, {nf}")
                group_params(a, gi, k, N)
            if k == "F": nf += 1
    ab_program(a, O.order_A, paramsA)
    a.label("L_tail")
    a.e("s_waitcnt lgkmcnt(0)", "s_barrier")
    stamp(a, 7)
    a.e(f"s_cmp_ge_u32 s{S_W}, 4", "s_cbranch_scc1 L_dphase")
    attention(a)
    a.label("L_dphase")
    a.e("s_nop 7", "s_nop 7")
    dphase(a)
    for lab, kinds in (("C", ["V", "V", "S", "F"]), ("D", ["V", "V", "S", "F"])):
        a.label(f"L_{lab}")
        def params(a, gis, kinds=kinds):
            for gi in gis:
                k = kinds[gi]
                if k == "V": a.e(f"s_lshl_b32 s{N}, s{S_J}, 1", f"s_sub_u32 s{N}, s{N}, {11 - gi}")
                if k == "F": a.e(f"s_add_u32 s{N}, s{S_J}, 12")
                group_params(a, gi, k, N)
        ab_program(a, kinds, params, solo="G" if lab == "C" else "H")
        a.e("s_branch L_tail")
    a.label("L_B")
    kb, nb = ["QK", "QK", "F"], [12, 13, 24]
    def paramsB(a, gis):
        for gi in gis:
            a.e(f"s_mov_b32 s{N}, {nb[gi]}"); group_params(a, gi, kb[gi], N)
    ab_program(a, kb, paramsB)
    a.e("s_branch L_tail")
    a.label("L_exit")
    a.e("s_endpgm")
    a.label("L_code_end")

def main(out):
    head = open("cdna_kernels/" + NAME + ".s.ref").read().split("; Override launch")[0]
    K = NAME + "_kernel"
    txt = head + "; @launch grid=(256,1,1) block=(512,1,1) lds=163840\n"
    txt += '.amdgcn_target "amdgcn-amd-amdhsa--gfx950"\n.text\n'
    a = Asm()
    gen(a)
    lines = fix_hazards(a.lines)
    check_loop(lines, "L_c_loop")
    txt += f".globl {K}\n.p2align 8\n.type {K},@function\n" + "\n".join(lines) + "\n"
    txt += f""".section .rodata,"a"
.p2align 6
.amdhsa_kernel {K}
  .amdhsa_next_free_vgpr 256
  .amdhsa_next_free_sgpr 102
  .amdhsa_accum_offset 256
  .amdhsa_group_segment_fixed_size 0
  .amdhsa_kernarg_size 88
  .amdhsa_user_sgpr_count 2
  .amdhsa_user_sgpr_kernarg_segment_ptr 1
  .amdhsa_system_sgpr_workgroup_id_x 1
.end_amdhsa_kernel
"""
    open(out, "w").write(txt)

if __name__ == "__main__":
    args = sys.argv[1:]
    out = "cdna_kernels/" + NAME + ".s"
    for x in args:
        if "=" in x:
            k, v = x.split("=", 1)
            setattr(O, k, eval(v))
        else:
            out = x
    main(out)
```

```python
import sys, math, struct, re
from asmlib import *

NAME = "gated_mix__mha_block__glu_gated_reglu__prompt"
WS_QK, WS_HO, WS_G, WS_F, WS_END, WS_V, WS_ALL = 0, 0x540000, 0xE40000, 0xE50000, 0xE60000, 0x1000000, 0x1200000
F_T, F_H, F_O = 0, 0x6000, 0xE000
HO_TB = 144 * 1024
V_TB = 57 * 512
V_PAD = 4 * 448 * 16
OCT = 32768
QSCALE = (28 ** -0.5) * math.log2(math.e)
TAGX = 0x5bd1e995
def f2u(x): return struct.unpack("<I", struct.pack("<f", x))[0]

class Opt:
    stamp = False
    bars = False
    diag = None
    pubd_s = 2
    pubd = 3
    prio_attn = 1
    pref_code = 1
    pref_w = True
    mall_at = 5
    pack = 6
    spread = 1
    poll_back = 2
    pref_f = 0
    la1 = 3
    xlast = False
    dsplit = 0
    ftouch = -1
    la0 = 2
    hsplit = True
    la = 36
    rot = True
    rotc = True
    rotd = True
    early = True
    hook_back = 5
    delay_d = True
    rw = 13
    rb = 16
    d_pre = 4
    d_go = (1, 5)
    d_first = 0
    o_sleep = 0
    ldm = 1
    wt_early = True
    prio_d = 0
    prio_ld = 0
    peel = False
    poison = False
    wo_touch = False
    wo2 = True
    map48 = 2
    outf = ''
    d_il = True
    o_poll = 99
    o_pre = 99
    o_chk = 99
    o_early = 24
    red8 = False
    force_fb = False
    d_pace = 3
    noload = False
    dsleep = 4
    nod = False
    h_touch = False
    order_A = ["QK", "F", "F"]
O = Opt()

S_X, S_WQ, S_WG, S_WU, S_WS, S_WD, S_WO, S_OUT, S_GW, S_KV, S_DBG = 8, 12, 16, 20, 24, 28, 32, 36, 40, 44, 48
S_RB, S_J, S_W, S_W1K, S_T0, S_T1, S_XOFF, S_TB, S_CH, S_W2K = 56, 57, 58, 59, 60, 61, 62, 63, 64, 65
S_COL, S_OB, S_SC, S_N = 66, 70, 74, 7
S_TAG, S_FL, S_SPIN, S_LOB, S_LFL = 76, 78, 52, 53, 54
SC_HEAD, SC_QT, SC_K, SC_V0, SC_V1, SC_IT, SC_O, SC_EX = 82, 83, 84, 86, 87, 88, 89, 92
SD_RT, SD_CT, SD_B0, SD_B1, SD_W, SD_LDS, SD_CP, SD_WB, SD_BB = 82, 83, 84, 85, 86, 87, 88, 89, 90
MFMA = "v_mfma_f32_32x32x16_bf16"
SC1 = "sc1"

X, ACC, FR, T = 16, 128, 160, 192
V_LANE, V_WQ, V_WF, V_X0, V_X1, V_TR, V_SQ, V_SV, V_SH, V_T0, V_GS = 1, 2, 3, 4, 5, 6, 9, 10, 11, 12, 13
V_ZERO, V_T56 = 14, 15
V_XR, V_XC = 208, 212
V_LWF, V_LW, V_TRX, FB0 = 201, 202, 204, 216
S_W4K = 55
S_CP = 75
ROT7 = 0x0065432106543210
V_PD, V_NONCE, V_FD, V_DUM = 216, 200, 222, 203
CQ, CKV, CO, CS, CP = 16, 48, 128, 192, 224
C_VK, C_VV, C_PA, C_PB, C_MA, C_MB, C_G, C_T = 240, 241, 242, 243, 244, 245, 246, 112
C_ONE, C_VK1, C_VV1, C_QA = 247, 248, 249, 250
DACC, DB, DA = 16, 80, 224
D_VW, D_TR, D_PH, D_PO, D_G, D_T = 240, 242, 244, 245, 246, 208
PD, NUNIT, NFR = 4, 20, 8
L_DREG = 22528
L_XCH = 4 * L_DREG
def set_rw():
    global L_DREG, L_XCH
    L_DREG = max(17408, O.rw * 2048); L_XCH = 4 * L_DREG
    assert L_XCH + 49152 <= 19 * 8192
S_EARLY, SC_BIG, S_OST, S_OFL = 91, 87, 94, 95
S_CNT = 3
EXEC_V = 0x0FFFFFFF

def srd(a, dst, src, nbytes):
    a.e(f"s_mov_b32 s{dst}, s{src}", f"s_and_b32 s{dst+1}, s{src+1}, 0xffff",
        f"s_mov_b32 s{dst+2}, {nbytes:#x}", f"s_mov_b32 s{dst+3}, 0x20000")

_uid = [0]
def uid(p):
    _uid[0] += 1
    return f"L_{p}{_uid[0]}"

def stamp_start(a):
    if O.stamp:
        a.e("s_memrealtime s[98:99]", "s_memtime s[100:101]")
def stamp(a, idx):
    if O.stamp == 1:
        a.e("s_memtime s[6:7]", "s_memrealtime s[4:5]", "s_waitcnt lgkmcnt(0)", "s_sub_u32 s6, s6, s100", f"v_writelane_b32 v255, s6, {idx}",
            f"v_writelane_b32 v255, s4, {32+idx}")
def stamp_end(a):
    if O.diag:
        idx, wg, wv = O.diag
        sk, top = uid("dg"), uid("dg")
        a.e("s_waitcnt vmcnt(0)", "s_mov_b64 exec, -1", f"s_cmp_lg_u32 s{S_W}, {wv}", f"s_cbranch_scc1 {sk}")
        if wg >= 0: a.e(f"s_cmp_lg_u32 s2, {wg}", f"s_cbranch_scc1 {sk}")
        if idx == -1: a.e("s_mov_b32 s6, s98")
        elif idx == -2: a.e("s_memrealtime s[6:7]", "s_waitcnt lgkmcnt(0)")
        elif idx == -3: a.e(f"s_add_u32 s6, s98, 500", f"s_mov_b32 s98, s{S_TAG}")
        else: a.e(f"v_readlane_b32 s6, v255, {32+idx}", "s_nop 3")
        a.e("s_sub_u32 s6, s6, s98", "s_mul_i32 s6, s6, 10", "s_add_u32 s6, s6, 6000")
        a.label(top)
        a.e("s_memrealtime s[4:5]", "s_waitcnt lgkmcnt(0)", "s_sub_u32 s4, s4, s98", "s_cmp_lt_u32 s4, s6", f"s_cbranch_scc1 {top}")
        a.label(sk)
        return
    if O.stamp:
        a.e("s_waitcnt vmcnt(0)", "s_memrealtime s[4:5]", "s_memtime s[6:7]", "s_waitcnt lgkmcnt(0)", "s_sub_u32 s6, s6, s100")
        a.e("v_writelane_b32 v255, s6, 29", "v_writelane_b32 v255, s98, 30", "v_writelane_b32 v255, s4, 31")
        a.e("s_mov_b64 exec, -1", "s_lshl_b32 s4, s2, 11", f"s_lshl_b32 s5, s{S_W}, 8", "s_add_u32 s4, s4, s5", f"s_add_u32 s4, s4, {WS_END}")
        a.e(f"v_lshlrev_b32 v254, 2, v{V_LANE}")
        a.e(f"buffer_store_dword v255, v254, {sr(S_WS,4)}, s4 offen")

class Cnt:
    def __init__(self, name, mx): self.n = 0; self.name = name; self.mx = mx
    def issue(self): self.n += 1; return self.n
    def wait(self, a, ticket):
        k = self.n - ticket
        a.e(f"s_waitcnt {self.name}({min(k, self.mx)})")
def Vm(): return Cnt("vmcnt", 63)
def Lg(): return Cnt("lgkmcnt", 15)

def publish(a, soff):
    a.e("s_mov_b64 exec, 1", f"buffer_store_dwordx2 {vr(V_FD,2)}, v{V_ZERO}, {sr(S_WS,4)}, {soff} offen {SC1}", "s_mov_b64 exec, -1")

def poll_check(a, data, fail_label):
    a.e(f"v_cmp_ne_u32 vcc, s{S_TAG}, v{data}", f"v_cmp_ne_u32 s[4:5], s{S_TAG+1}, v{data+1}", "s_or_b64 vcc, vcc, s[4:5]",
        f"s_cbranch_vccnz {fail_label}")

def poll_spin(a, addrs, data, sleep=2):
    top, done = uid("spin"), uid("spind")
    a.e(f"s_mov_b32 s{S_SPIN}, 0x8000")
    a.label(top)
    a.e(f"s_mov_b32 s{S_T0}, {WS_F}")
    for i, ad in enumerate(addrs):
        a.e(f"buffer_load_dwordx2 {vr(data+2*i,2)}, v{ad}, {sr(S_WS,4)}, s{S_T0} offen {SC1}")
    a.e("s_waitcnt vmcnt(0)", "s_mov_b64 s[6:7], 0")
    for i in range(len(addrs)):
        a.e(f"v_cmp_ne_u32 vcc, s{S_TAG}, v{data+2*i}", f"v_cmp_ne_u32 s[4:5], s{S_TAG+1}, v{data+2*i+1}",
            "s_or_b64 s[6:7], s[6:7], vcc", "s_or_b64 s[6:7], s[6:7], s[4:5]")
    a.e("s_cmp_eq_u64 s[6:7], 0", f"s_cbranch_scc1 {done}", f"s_sleep {sleep}" if sleep else "s_nop 0", f"s_sub_u32 s{S_SPIN}, s{S_SPIN}, 1",
        f"s_cmp_lg_u32 s{S_SPIN}, 0", f"s_cbranch_scc1 {top}")
    a.label(done)

def code_pref(a):
    a.e("s_getpc_b64 s[4:5]")
    a.label("L_pc")
    a.e(f"v_cmp_le_u32 vcc, 448, v0", "s_cbranch_vccz L_nocp")
    a.e(f"s_lshr_b32 s6, s2, 3", "s_lshl_b32 s6, s6, 11", f"v_and_b32 v{T}, 15, v0", f"v_lshlrev_b32 v{T}, 7, v{T}", f"v_add_u32 v{T}, s6, v{T}",
        f"v_min_u32 v{T}, L_code_end-L_pc-4, v{T}", f"global_load_dword v{V_DUM}, v{T}, s[4:5]")
    a.label("L_nocp")

def prologue(a):
    L = V_LANE
    A, B, C = T + 1, T + 2, T + 3
    a.e("s_load_dwordx4 s[76:79], s[0:1], 0")
    a.e(f"v_lshrrev_b32 v{V_T0}, 6, v0", f"v_and_b32 v{V_LANE}, 63, v0", f"v_readfirstlane_b32 s{S_W}, v{V_T0}")
    if O.map48 == 1:
        a.e(f"s_bfe_u32 s{S_RB}, s2, 0x20000", f"s_lshl_b32 s{S_RB}, s{S_RB}, 2", f"s_bfe_u32 s{S_T0}, s2, 0x20003", f"s_add_u32 s{S_RB}, s{S_RB}, s{S_T0}",
            f"s_bfe_u32 s{S_J}, s2, 0x10002", f"s_lshr_b32 s{S_T0}, s2, 5", f"s_lshl_b32 s{S_T0}, s{S_T0}, 1", f"s_add_u32 s{S_J}, s{S_J}, s{S_T0}")
    elif O.map48 == 2:
        a.e(f"s_and_b32 s{S_RB}, s2, 1", f"s_lshl_b32 s{S_RB}, s{S_RB}, 3", f"s_bfe_u32 s{S_T0}, s2, 0x30003", f"s_add_u32 s{S_RB}, s{S_RB}, s{S_T0}",
            f"s_bfe_u32 s{S_J}, s2, 0x20001", f"s_lshr_b32 s{S_T0}, s2, 6", f"s_lshl_b32 s{S_T0}, s{S_T0}, 2", f"s_add_u32 s{S_J}, s{S_J}, s{S_T0}")
    else:
        a.e(f"s_and_b32 s{S_RB}, s2, 1", f"s_lshl_b32 s{S_RB}, s{S_RB}, 3", f"s_bfe_u32 s{S_T0}, s2, 0x30003", f"s_add_u32 s{S_RB}, s{S_RB}, s{S_T0}",
            f"s_bfe_u32 s{S_J}, s2, 0x20001", f"s_lshl_b32 s{S_J}, s{S_J}, 2", f"s_lshr_b32 s{S_T0}, s2, 6", f"s_add_u32 s{S_J}, s{S_J}, s{S_T0}")
    a.e(f"s_lshl_b32 s{S_N}, s{S_J}, 1", f"s_sub_u32 s{S_N}, s{S_N}, 11", f"s_cmp_le_u32 s{S_J}, 12", f"s_cselect_b32 s{S_N}, s{S_J}, s{S_N}",
        f"s_lshl_b32 s{S_COL}, s{S_N}, 7", f"s_mul_i32 s{S_XOFF}, s{S_RB}, {128*896}")
    if O.rot == 2 or O.rot == 4 or O.rot == 3:
        tab = {2: 0x0404 << 0, 4: 0x5420, 3: 0x5050}[O.rot]
        tab = {2: 0x4040, 4: 0x5420, 3: 0x3030}[O.rot]
        a.e(f"s_add_u32 s{S_T0}, s{S_J}, s{S_RB}", f"s_and_b32 s{S_T0}, s{S_T0}, 3", f"s_lshl_b32 s{S_T0}, s{S_T0}, 2",
            f"s_lshr_b32 s{S_T0}, {tab:#x}, s{S_T0}", f"s_and_b32 s{S_T0}, s{S_T0}, 15", f"s_lshl_b32 s{S_T0}, s{S_T0}, 2",
            f"s_mov_b32 s4, {ROT7 & 0xffffffff:#x}", f"s_mov_b32 s5, {ROT7 >> 32:#x}", f"s_lshr_b64 s[4:5], s[4:5], s{S_T0}", f"s_mov_b32 s{S_CP}, s4")
    elif O.rot:
        if O.map48 == 1:
            a.e(f"s_and_b32 s{S_T0}, s{S_RB}, 3", f"s_lshl_b32 s{S_T0}, s{S_T0}, 1", f"s_lshr_b32 s{S_T1}, s{S_J}, 1")
        elif O.map48 == 2:
            a.e(f"s_lshr_b32 s{S_T0}, s{S_J}, 2", f"s_lshl_b32 s{S_T0}, s{S_T0}, 1", f"s_and_b32 s{S_T1}, s{S_RB}, 7")
        else:
            a.e(f"s_and_b32 s{S_T0}, s{S_J}, 3", f"s_lshl_b32 s{S_T0}, s{S_T0}, 1", f"s_and_b32 s{S_T1}, s{S_RB}, 7")
        a.e(f"s_add_u32 s{S_T0}, s{S_T0}, s{S_T1}",
            f"s_cmp_ge_u32 s{S_T0}, 7", f"s_cselect_b32 s{S_T1}, 7, 0", f"s_sub_u32 s{S_T0}, s{S_T0}, s{S_T1}", f"s_lshl_b32 s{S_T0}, s{S_T0}, 2",
            f"s_mov_b32 s4, {ROT7 & 0xffffffff:#x}", f"s_mov_b32 s5, {ROT7 >> 32:#x}", f"s_lshr_b64 s[4:5], s[4:5], s{S_T0}", f"s_mov_b32 s{S_CP}, s4")
    else:
        a.e(f"s_mov_b32 s{S_CP}, 0x6543210")
    a.e(f"s_mov_b32 s{S_X+2}, {2048*896:#x}", f"s_mov_b32 s{S_X+3}, 0x20000", f"s_mov_b32 s{S_WQ+2}, {448*2688:#x}", f"s_mov_b32 s{S_WQ+3}, 0x20000")
    a.e(f"v_lshrrev_b32 v{A}, 3, v{L}", f"v_and_b32 v{B}, 7, v{L}")
    a.e(f"s_lshl_b32 s{S_W2K}, s{S_W}, 11", f"s_lshl_b32 s{S_W4K}, s{S_W}, 12")
    a.e(f"v_bfe_u32 v{C}, v{L}, 4, 1", f"v_lshlrev_b32 v{C}, 2, v{C}", f"v_xor_b32 v{T+4}, v{C}, v{B}",
        f"s_lshl_b32 s{S_T0}, s{S_W}, 4", f"v_add_u32 v{T+5}, s{S_T0}, v{A}", f"v_mul_u32_u24 v{V_LW}, 2688, v{T+5}",
        f"v_lshl_add_u32 v{V_LW}, v{T+4}, 4, v{V_LW}")
    a.e(f"v_lshrrev_b32 v{C}, 4, v{L}", f"v_xor_b32 v{C}, v{C}, v{B}", f"v_add_u32 v{V_T0}, s{S_T0}, v{T+5}", f"v_mul_u32_u24 v{V_T0}, 896, v{V_T0}",
        f"v_lshl_add_u32 v{V_X0}, v{C}, 4, v{V_T0}", f"v_xor_b32 v{C}, 4, v{C}", f"v_lshl_add_u32 v{V_X1}, v{C}, 4, v{V_T0}",
        f"v_add_u32 v{V_X1}, {8*896}, v{V_X1}")
    a.e("s_waitcnt lgkmcnt(0)")
    a.e(f"s_mov_b32 s{S_X}, s76", f"s_and_b32 s{S_X+1}, s77, 0xffff", f"s_mov_b32 s{S_WQ}, s78", f"s_and_b32 s{S_WQ+1}, s79, 0xffff")
    stamp(a, 13)
    a.e("s_load_dwordx8 s[80:87], s[0:1], 16", "s_load_dwordx8 s[88:95], s[0:1], 48", "s_load_dwordx2 s[96:97], s[0:1], 80")
    a.e(f"s_cmp_ge_u32 s{S_W}, 4", "s_cbranch_scc1 L_nold")
    for c in range(O.la0):
        dma_g0(a, c, 14 + c)
    a.label("L_nold")
    stamp(a, 0)
    if O.pref_code: code_pref(a)
    a.e("s_waitcnt lgkmcnt(0)")
    srd(a, S_WG, 84, 448 * 3584); srd(a, S_WU, 86, 448 * 3584)
    a.e(f"s_lshl_b32 s{S_W1K}, s{S_W}, 10", f"s_lshr_b32 s{S_CH}, s{S_W}, 2",
        f"s_and_b32 s{S_T0}, s{S_W}, 3", f"s_lshl_b32 s{S_TB}, s{S_RB}, 2", f"s_add_u32 s{S_TB}, s{S_TB}, s{S_T0}")
    a.e(f"v_mul_u32_u24 v{V_LWF}, 3584, v{T+5}", f"v_lshl_add_u32 v{V_LWF}, v{T+4}, 4, v{V_LWF}")
    a.e(f"s_lshl_b32 s{S_T0}, s{S_W}, 3", f"v_add_u32 v{V_T0}, s{S_T0}, v{A}")
    a.e(f"v_mul_u32_u24 v{V_WQ}, 2688, v{V_T0}", f"v_lshl_add_u32 v{V_WQ}, v{T+4}, 4, v{V_WQ}")
    a.e(f"v_mul_u32_u24 v{V_WF}, 3584, v{V_T0}", f"v_lshl_add_u32 v{V_WF}, v{T+4}, 4, v{V_WF}")
    a.e(f"v_lshlrev_b32 v{V_SH}, 4, v{L}")
    prologue2(a)
    a.e(f"v_xor_b32 v{V_TRX}, 64, v{V_TR+1}", f"v_xor_b32 v{V_TRX+1}, 64, v{V_TR+2}")
    if O.pref_f == 1: pref_weights(a, None, [(4, S_WG), (5, S_WU)], True)
    stamp(a, 1)

def koff(dst, p, mul, base):
    return [f"s_bfe_u32 s{dst}, s{S_CP}, {(4 << 16) | (4 * p):#x}", f"s_mul_i32 s{dst}, s{dst}, {mul}", f"s_add_u32 s{dst}, s{dst}, s{base}"]

def dma_g0(a, c, unit, parts="xw"):
    xs, ws = [], []
    if "x" in parts:
        xs = [(f"s_add_u32 m0, s{S_W4K}, {c*16384}", *koff(S_T0, c, 128, S_XOFF), f"buffer_load_dwordx4 v{V_X0}, {sr(S_X,4)}, s{S_T0} offen lds"),
              (f"s_add_u32 m0, s{S_W4K}, {c*16384+1024}", "s_nop 0", f"buffer_load_dwordx4 v{V_X1}, {sr(S_X,4)}, s{S_T0} offen lds"),
              (f"s_add_u32 m0, s{S_W4K}, {c*16384+2048}", f"s_add_u32 s{S_T0}, s{S_T0}, {16*896}", f"buffer_load_dwordx4 v{V_X0}, {sr(S_X,4)}, s{S_T0} offen lds"),
              (f"s_add_u32 m0, s{S_W4K}, {c*16384+3072}", "s_nop 0", f"buffer_load_dwordx4 v{V_X1}, {sr(S_X,4)}, s{S_T0} offen lds")]
    if "w" in parts:
        ws = [(f"s_add_u32 m0, s{S_W2K}, {unit*8192}", *koff(S_T1, c, 64 * 2688, S_COL), f"buffer_load_dwordx4 v{V_LW}, {sr(S_WQ,4)}, s{S_T1} offen lds"),
              (f"s_add_u32 m0, s{S_W2K}, {unit*8192+1024}", f"s_add_u32 s{S_T1}, s{S_T1}, {8*2688}", f"buffer_load_dwordx4 v{V_LW}, {sr(S_WQ,4)}, s{S_T1} offen lds")]
    for g_ in ws + xs: a.e(*g_)
    return len(xs) + len(ws)

class Vm2:
    def __init__(self): self.n = [0, 0]; self.lo_only = False
    def issue(self):
        self.n[0] += 1
        if self.lo_only: return (self.n[0], None)
        self.n[1] += 1; return tuple(self.n)
    def issue_lo(self, k): self.n[0] += k; return (self.n[0], 0)
    def wait(self, a, tickets):
        t = [max(x[i] for x in tickets) for i in range(2)]
        k = [min(63, self.n[i] - t[i]) if t[i] else 63 for i in range(2)]
        if k[0] == k[1]:
            a.e(f"s_waitcnt vmcnt({k[0]})")
        elif k[1] == 63:
            nx = uid("vw")
            a.e(f"s_cmp_ge_u32 s{S_W}, 4", f"s_cbranch_scc1 {nx}", f"s_waitcnt vmcnt({k[0]})")
            a.label(nx)
        elif abs(k[0] - k[1]) <= 2:
            a.e(f"s_waitcnt vmcnt({min(k)})")
        elif k[1] < k[0]:
            nx = uid("vw")
            a.e(f"s_waitcnt vmcnt({k[0]})", f"s_cmp_lt_u32 s{S_W}, 4", f"s_cbranch_scc1 {nx}", f"s_waitcnt vmcnt({k[1]})")
            a.label(nx)
        else:
            nx = uid("vw")
            a.e(f"s_waitcnt vmcnt({k[1]})", f"s_cmp_ge_u32 s{S_W}, 4", f"s_cbranch_scc1 {nx}", f"s_waitcnt vmcnt({k[0]})")
            a.label(nx)

def prologue2(a):
    L = V_LANE
    A, B, C = T + 1, T + 2, T + 3
    srd(a, S_WO, 80, 448 * 896); srd(a, S_WD, 88, 1792 * 896); srd(a, S_GW, 90, 896); srd(a, S_OUT, 92, 2048 * 896)
    srd(a, S_DBG, 94, 256); srd(a, S_WS, 96, WS_ALL); srd(a, S_KV, 96, WS_ALL)
    a.e(f"v_mov_b32 v{V_ZERO}, 0")
    for r_ in range(240, 251): a.e(f"v_mov_b32 v{r_}, 0")
    skip = uid("nn")
    a.e(f"s_or_b32 s{S_T0}, s2, s{S_W}", f"s_cmp_lg_u32 s{S_T0}, 0", f"s_cbranch_scc1 {skip}")
    a.e("s_memrealtime s[4:5]", "s_waitcnt lgkmcnt(0)", "s_or_b32 s4, s4, 1", f"v_mov_b32 v{V_NONCE}, s4",
        "s_mov_b64 exec, 1", f"buffer_store_dword v{V_NONCE}, v{V_ZERO}, {sr(S_DBG,4)}, 0 offen {SC1}", "s_mov_b64 exec, -1")
    a.label(skip)
    a.e(f"v_lshrrev_b32 v{A}, 5, v{L}", f"v_bfe_u32 v{B}, v{L}, 2, 2", f"v_lshl_add_u32 v{C}, v{A}, 3, v{B}",
        f"v_lshlrev_b32 v{V_TR}, 7, v{C}", f"v_lshrrev_b32 v{B}, 1, v{B}", f"v_xor_b32 v{B}, s{S_CH}, v{B}",
        f"v_lshl_add_u32 v{V_TR}, v{B}, 6, v{V_TR}", f"v_bfe_u32 v{B}, v{L}, 4, 1", f"v_lshl_add_u32 v{V_TR}, v{B}, 5, v{V_TR}",
        f"v_and_b32 v{B}, 3, v{L}", f"v_lshl_add_u32 v{V_TR}, v{B}, 3, v{V_TR}",
        f"v_add_u32 v{V_TR+1}, 0x10000, v{V_TR}", f"v_add_u32 v{V_TR+2}, 0x20000, v{V_TR}")
    a.e(f"v_and_b32 v{B}, 31, v{L}", f"s_and_b32 s{S_T0}, s{S_W}, 3", f"s_lshl_b32 s{S_T0}, s{S_T0}, 5",
        f"v_add_u32 v{C}, s{S_T0}, v{B}", f"v_lshlrev_b32 v{V_T0}, 7, v{C}", f"v_bfe_u32 v{V_GS}, v{L}, 1, 3",
        f"v_xor_b32 v{V_GS}, v{V_GS}, v{A}")
    for e in range(4):
        a.e(f"v_xor_b32 v{V_XR+e}, {2*e}, v{V_GS}", f"v_lshl_add_u32 v{V_XR+e}, v{V_XR+e}, 4, v{V_T0}")
    a.e(f"s_lshl_b32 s{S_T0}, s{S_TB}, 5", f"v_add_u32 v{C}, s{S_T0}, v{B}", f"v_lshlrev_b32 v{V_SQ}, 4, v{C}",
        f"v_lshl_add_u32 v{V_SQ}, v{A}, 15, v{V_SQ}", f"v_lshlrev_b32 v{V_GS}, 2, v{C}")
    a.e(f"v_mul_u32_u24 v{V_SV}, 7168, v{A}", f"v_lshl_add_u32 v{V_SV}, v{B}, 4, v{V_SV}")

def role_c(a):
    L = V_LANE
    A, B, C = 204, 205, 206
    a.e(f"v_lshrrev_b32 v{A}, 5, v{L}", f"v_and_b32 v{B}, 31, v{L}")
    a.e(f"s_and_b32 s{S_T0}, s2, 7", f"s_lshr_b32 s{S_T1}, s2, 3")
    a.e(f"s_and_b32 s{SC_HEAD}, s{S_T1}, 1", f"s_lshl_b32 s{SC_HEAD}, s{SC_HEAD}, 3", f"s_add_u32 s{SC_HEAD}, s{SC_HEAD}, s{S_T0}",
        f"s_lshr_b32 s{SC_QT}, s{S_T1}, 1", f"s_mul_i32 s{SC_O}, s{SC_HEAD}, 7", f"s_lshr_b32 s{SC_O}, s{SC_O}, 1")
    a.e(f"v_lshlrev_b32 v{C_VK}, 4, v{B}", f"v_lshl_add_u32 v{C_VK}, v{A}, 15, v{C_VK}")
    a.e(f"s_mul_i32 s{S_T0}, s{SC_HEAD}, 448", f"v_add_u32 v{C_VV}, s{S_T0}, v{V_SV}")
    a.e(f"s_mov_b32 s{SC_BIG}, {f2u(2.0**30):#x}")
    a.e(f"s_add_u32 s4, s{SC_O}, 56", "s_lshl_b32 s4, s4, 15", f"s_lshl_b32 s5, s{S_W}, 13", "s_add_u32 s4, s4, s5",
        f"s_mov_b32 s{SC_K+1}, s4", f"v_add_u32 v{C_VK1}, s4, v{C_VK}", f"v_mov_b32 v{C_QA}, v{C_VK}", f"v_mov_b32 v{C_VK}, v{C_VK1}",
        f"v_add_u32 v{C_VK1}, {2*OCT}, v{C_VK1}")
    a.e(f"v_add_u32 v{C_VV1}, 14336, v{C_VV}", f"v_lshlrev_b32 v{C}, 4, v{B}", f"v_add_u32 v{C}, {V_PAD - 28*16}, v{C}", f"v_cmp_gt_u32 vcc, 28, v{B}",
        f"v_cndmask_b32 v{C_VV}, v{C}, v{C_VV}, vcc", f"v_cndmask_b32 v{C_VV1}, v{C}, v{C_VV1}, vcc")
    a.e(f"s_mul_i32 s4, s{S_W}, {16*V_TB}", f"s_add_u32 s4, s4, {WS_V}", f"v_add_u32 v{C_VV}, s4, v{C_VV}", f"v_add_u32 v{C_VV1}, s4, v{C_VV1}")
    if O.rotc:
        a.e(f"s_lshl_b32 s{SC_K}, s{SC_QT}, 9")
    else:
        a.e(f"s_mov_b32 s{SC_K}, 0")
    a.e(f"s_mul_i32 s{SC_V0}, s{SC_K}, 57")
    a.e(f"s_and_b32 s{S_T0}, s{SC_HEAD}, 1", f"v_cmp_le_u32 vcc, s{S_T0}, v{A}", f"v_cndmask_b32 v{C_MA}, 0, -1, vcc",
        f"v_cmp_ge_u32 vcc, s{S_T0}, v{A}", f"v_cndmask_b32 v{C_MB}, 0, -1, vcc")
    a.e(f"s_add_u32 s4, s{SC_O}, 56", "s_lshr_b32 s4, s4, 2", f"s_add_u32 s5, s{SC_O}, 59", "s_lshr_b32 s5, s5, 2",
        f"s_mul_i32 s6, s{SC_HEAD}, 28", "s_add_u32 s7, s6, 27", "s_lshr_b32 s6, s6, 5", "s_lshr_b32 s7, s7, 5",
        "s_add_u32 s6, s6, 28", "s_add_u32 s7, s7, 28")
    a.e(f"v_mov_b32 v{C_PA}, s7", f"v_mov_b32 v{C}, s6", f"v_cmp_gt_u32 vcc, 48, v{L}", f"v_cndmask_b32 v{C_PA}, v{C_PA}, v{C}, vcc",
        f"v_mov_b32 v{C}, s5", f"v_cmp_gt_u32 vcc, 32, v{L}", f"v_cndmask_b32 v{C_PA}, v{C_PA}, v{C}, vcc",
        f"v_mov_b32 v{C}, s4", f"v_cmp_gt_u32 vcc, 16, v{L}", f"v_cndmask_b32 v{C_PA}, v{C_PA}, v{C}, vcc")
    a.e(f"v_and_b32 v{C}, 15, v{L}", f"v_lshl_add_u32 v{C_PA}, v{C_PA}, 6, v{C}", f"s_lshl_b32 s4, s{S_W}, 4",
        f"v_add_u32 v{C_PA}, s4, v{C_PA}", f"v_lshlrev_b32 v{C_PA}, 3, v{C_PA}")
    a.e(f"s_lshr_b32 s4, s{SC_O}, 2", f"s_add_u32 s5, s{SC_O}, 3", "s_lshr_b32 s5, s5, 2", f"s_lshl_b32 s6, s{SC_QT}, 2")
    a.e(f"v_and_b32 v{C}, 3, v{L}", f"v_add_u32 v{C}, s6, v{C}")
    a.e(f"v_mov_b32 v{C_PB}, s5", f"v_mov_b32 v{V_T0}, s4", f"v_cmp_gt_u32 vcc, 4, v{L}", f"v_cndmask_b32 v{C_PB}, v{C_PB}, v{V_T0}, vcc",
        f"v_lshl_add_u32 v{C_PB}, v{C_PB}, 6, v{C}", f"v_lshlrev_b32 v{C_PB}, 3, v{C_PB}")
    a.e(f"v_lshlrev_b32 v{C}, 9, v{C}", f"v_add_u32 v{C}, {F_H + 56*8}, v{C}", f"v_cmp_gt_u32 vcc, 8, v{L}",
        f"v_cndmask_b32 v{C_PB}, v{C}, v{C_PB}, vcc")

def role_d(a):
    L = V_LANE
    A, B, C = 204, 205, 206
    done = uid("rdone")
    a.e(f"s_cmp_lt_u32 s{S_W}, 4", f"s_cbranch_scc1 {done}")
    a.e(f"v_lshrrev_b32 v{A}, 5, v{L}", f"v_and_b32 v{B}, 31, v{L}")
    a.e(f"s_and_b32 s{S_T0}, s2, 7", f"s_lshr_b32 s{S_T1}, s2, 3")
    a.e(f"s_mul_i32 s{SD_RT}, s{S_T1}, 37", f"s_lshr_b32 s{SD_RT}, s{SD_RT}, 8",
        f"s_mul_i32 s{SD_CT}, s{SD_RT}, 7", f"s_sub_u32 s{SD_CT}, s{S_T1}, s{SD_CT}", f"s_lshl_b32 s{S_T0}, s{S_T0}, 2",
        f"s_add_u32 s{SD_RT}, s{SD_RT}, s{S_T0}", f"s_and_b32 s{S_T0}, s{S_W}, 3", f"s_mul_i32 s{SD_LDS}, s{S_T0}, {L_DREG}")
    a.e(f"v_lshrrev_b32 v{C}, 3, v{L}", f"v_mul_u32_u24 v{D_VW}, 896, v{C}", f"v_and_b32 v{C}, 7, v{L}", f"v_bfe_u32 v{V_T0}, v{L}, 4, 1",
        f"v_lshlrev_b32 v{V_T0}, 2, v{V_T0}", f"v_xor_b32 v{C}, v{C}, v{V_T0}", f"v_lshl_add_u32 v{D_VW}, v{C}, 4, v{D_VW}")
    a.e(f"v_bfe_u32 v{C}, v{L}, 2, 2", f"v_lshl_add_u32 v{V_T0}, v{A}, 2, v{C}", f"v_lshlrev_b32 v{D_TR}, 7, v{V_T0}",
        f"v_lshrrev_b32 v{C}, 1, v{C}", f"v_lshl_add_u32 v{D_TR}, v{C}, 6, v{D_TR}", f"v_bfe_u32 v{C}, v{L}, 4, 1",
        f"v_lshl_add_u32 v{D_TR}, v{C}, 5, v{D_TR}", f"v_and_b32 v{C}, 3, v{L}", f"v_lshl_add_u32 v{D_TR}, v{C}, 3, v{D_TR}",
        f"v_xor_b32 v{D_TR+1}, 64, v{D_TR}", f"v_add_u32 v{D_TR}, s{SD_LDS}, v{D_TR}", f"v_add_u32 v{D_TR+1}, s{SD_LDS}, v{D_TR+1}")
    if O.rotd:
        a.e(f"s_and_b32 s4, s{SD_RT}, 3", "s_lshl_b32 s4, s4, 1", f"s_add_u32 s6, s4, s{SD_CT}", "s_cmp_ge_u32 s6, 7", "s_cselect_b32 s4, 7, 0",
            "s_sub_u32 s6, s6, s4", "s_lshl_b32 s6, s6, 2", f"s_mov_b32 s4, {ROT7 & 0xffffffff:#x}", f"s_mov_b32 s5, {ROT7 >> 32:#x}",
            "s_lshr_b64 s[4:5], s[4:5], s6", f"s_mov_b32 s{SD_CP}, s4")
    else:
        a.e(f"s_mov_b32 s{SD_CP}, 0x6543210")
    a.e(f"s_mul_i32 s4, s{S_T0}, 14", f"v_add_u32 v{C}, s4, v{B}", f"v_cmp_gt_u32 vcc, 14, v{B}", f"v_cndmask_b32 v{C}, 56, v{C}, vcc",
        f"s_lshl_b32 s5, s{SD_RT}, 1", f"v_add_u32 v{V_T0}, s5, v{A}", f"v_lshl_add_u32 v{D_PH}, v{V_T0}, 6, v{C}",
        f"v_lshlrev_b32 v{D_PH}, 3, v{D_PH}", f"v_add_u32 v{D_PH}, {F_H}, v{D_PH}")
    a.e(f"s_lshl_b32 s4, s{S_T0}, 2", f"v_and_b32 v{C}, 3, v{L}", f"v_add_u32 v{C}, s4, v{C}", f"v_lshl_add_u32 v{D_PO}, v{V_T0}, 4, v{C}",
        f"v_lshlrev_b32 v{D_PO}, 3, v{D_PO}", f"v_add_u32 v{D_PO}, {F_O}, v{D_PO}")
    a.label(done)

def pref_weights(a, vm, which, force=False):
    if not O.pref_w and not force: return
    end = uid("pw")
    a.e(f"s_lshl_b32 s{S_T0}, s2, 13", f"v_lshlrev_b32 v{T}, 7, v{V_LANE}")
    for w, s in which:
        nx = uid("pwn")
        a.e(f"s_cmp_lg_u32 s{S_W}, {w}", f"s_cbranch_scc1 {nx}", f"buffer_load_dword v{V_DUM}, v{T}, {sr(s,4)}, s{S_T0} offen")
        a.label(nx)

def group_params(a, gi, kind, nreg):
    col, ob, fl = S_COL + gi, S_OB + gi, S_FL + gi
    if kind == "G":
        a.e(f"s_lshl_b32 s{fl}, s{S_TB}, 9", f"s_add_u32 s{fl}, s{fl}, {WS_F + F_H + 56*8}")
        return
    if kind == "S":
        a.e(f"s_mov_b32 s{col}, {14*128}", f"s_sub_u32 s{S_T1}, s{S_J}, 13", f"s_lshr_b32 s{S_T1}, s{S_T1}, 1", f"s_add_u32 s{S_T1}, s{S_T1}, 28")
        a.e(f"s_lshl_b32 s{ob}, s{S_T1}, 9", f"s_mul_i32 s{S_T0}, s{S_TB}, {V_TB}", f"s_add_u32 s{ob}, s{ob}, s{S_T0}",
            f"s_add_u32 s{ob}, s{ob}, {WS_V - 14*1024}")
        a.e(f"s_lshl_b32 s{fl}, s{S_T1}, 6", f"s_add_u32 s{fl}, s{fl}, s{S_TB}", f"s_lshl_b32 s{fl}, s{fl}, 3", f"s_add_u32 s{fl}, s{fl}, {WS_F + F_T}")
        a.e(f"s_lshl_b32 s{S_T0}, s{S_TB}, 9", f"s_add_u32 s{S_T0}, s{S_T0}, {WS_F + F_H + 56*8}", f"s_cmp_ge_u32 s{S_W}, 4",
            f"s_cselect_b32 s{fl}, s{S_T0}, s{fl}")
        return
    if False:
        pass
    else:
        a.e(f"s_lshl_b32 s{col}, s{nreg}, 7", f"s_lshl_b32 s{S_T1}, s{nreg}, 1")
        if gi: a.e(f"s_add_u32 s{S_T1}, s{S_T1}, s{S_CH}")
    if kind == "QK":
        a.e(f"s_lshl_b32 s{ob}, s{S_T1}, 17")
        a.e(f"s_cmp_lt_u32 s{nreg}, 7", f"s_cselect_b32 s{S_SC}, {f2u(QSCALE):#x}, 1.0")
    elif kind == "V":
        a.e(f"s_lshl_b32 s{ob}, s{S_T1}, 9", f"s_mul_i32 s{S_T0}, s{S_TB}, {V_TB}", f"s_add_u32 s{ob}, s{ob}, s{S_T0}",
            f"s_add_u32 s{ob}, s{ob}, {WS_V - 14*1024}")
    elif kind == "F":
        a.e(f"s_lshl_b32 s{ob}, s{S_T1}, 11", f"s_mul_i32 s{S_T0}, s{S_TB}, {HO_TB}", f"s_add_u32 s{ob}, s{ob}, s{S_T0}",
            f"s_add_u32 s{ob}, s{ob}, {WS_HO}")
    if kind == "F":
        a.e(f"s_lshl_b32 s{fl}, s{S_TB}, 6", f"s_add_u32 s{fl}, s{fl}, s{S_T1}", f"s_lshl_b32 s{fl}, s{fl}, 3", f"s_add_u32 s{fl}, s{fl}, {WS_F + F_H}")
    else:
        a.e(f"s_lshl_b32 s{fl}, s{S_T1}, 6", f"s_add_u32 s{fl}, s{fl}, s{S_TB}", f"s_lshl_b32 s{fl}, s{fl}, 3", f"s_add_u32 s{fl}, s{fl}, {WS_F + F_T}")

def epi_F(a, vm, ob, T=T):
    A0, A1 = ACC, ACC + 16
    for i in range(16):
        a.e(f"v_max_f32 v{A0+i}, 0, v{A0+i}")
    for i in range(16):
        a.e(f"v_mul_f32 v{A0+i}, v{A0+i}, v{A1+i}")
    for k in range(8):
        a.e(f"v_cvt_pk_bf16_f32 v{T+k}, v{A0+2*k}, v{A0+2*k+1}")
        if k == 3:
            a.e(f"buffer_store_dwordx4 {vr(T,4)}, v{V_SH}, {sr(S_WS,4)}, s{ob} offen {SC1}"); vm.issue()
    a.e(f"buffer_store_dwordx4 {vr(T+4,4)}, v{V_SH}, {sr(S_WS,4)}, s{ob} offen offset:1024 {SC1}")
    return vm.issue()

def epilogue(a, vm, gi, kind, A0=ACC):
    ob = S_OB + gi
    if kind == "QK":
        for i in range(16):
            a.e(f"v_mul_f32 v{A0+i}, s{S_SC}, v{A0+i}")
        for k in range(8):
            a.e(f"v_cvt_pk_bf16_f32 v{T+k}, v{A0+2*k}, v{A0+2*k+1}")
        for p in range(2):
            a.e(f"v_permlane32_swap_b32 v{T+4*p}, v{T+4*p+2}", f"v_permlane32_swap_b32 v{T+4*p+1}, v{T+4*p+3}")
            a.e(f"s_add_u32 s{S_T0}, s{ob}, {2*p*OCT}")
            a.e(f"buffer_store_dwordx4 {vr(T+4*p,4)}, v{V_SQ}, {sr(S_WS,4)}, s{S_T0} offen {SC1}"); t = vm.issue()
        return t
    if kind in ("V", "H"):
        for k in range(8):
            a.e(f"v_cvt_pk_bf16_f32 v{T+k}, v{A0+2*k}, v{A0+2*k+1}")
            if k == 3:
                a.e(f"buffer_store_dwordx4 {vr(T,4)}, v{V_SV}, {sr(S_WS,4)}, s{ob} offen {SC1}"); vm.issue()
        a.e(f"s_add_u32 s{S_T0}, s{ob}, 14336")
        a.e(f"buffer_store_dwordx4 {vr(T+4,4)}, v{V_SV}, {sr(S_WS,4)}, s{S_T0} offen {SC1}"); vm.issue()
        a.e(f"v_cmp_gt_u32 vcc, 4, v{V_LANE}", f"v_mov_b32 v{V_T0}, 0x3f803f80", f"v_lshlrev_b32 v207, 2, v{V_LANE}", f"s_mul_i32 s{S_T0}, s{S_TB}, {V_TB}",
            f"v_cndmask_b32 v{V_T0}, 0, v{V_T0}, vcc", f"s_add_u32 s{S_T0}, s{S_T0}, {WS_V + V_PAD}", "s_mov_b64 exec, 0xffff",
            f"buffer_store_dword v{V_T0}, v207, {sr(S_WS,4)}, s{S_T0} offen {SC1}", "s_mov_b64 exec, -1")
        return vm.issue()
    if kind == "F":
        return epi_F(a, vm, ob)
    a.e(f"v_mul_f32 v{T}, {f2u(-math.log2(math.e)):#x}, v{A0}", f"v_exp_f32 v{T}, v{T}", f"v_add_f32 v{T}, 1.0, v{T}",
        f"v_rcp_f32 v{T}, v{T}", f"s_mov_b32 s{S_T0}, {WS_G}", "s_nop 0")
    a.e(f"buffer_store_dword v{T}, v{V_GS}, {sr(S_WS,4)}, s{S_T0} offen {SC1}")
    return vm.issue()

def get_tag(a):
    ok, top = uid("tagok"), uid("tagspin")
    a.e(f"v_readfirstlane_b32 s{S_TAG}, v{V_NONCE}", f"s_cmp_lg_u32 s{S_TAG}, 0", f"s_cbranch_scc1 {ok}", f"s_mov_b32 s{S_SPIN}, 0x8000")
    a.label(top)
    a.e(f"buffer_load_dword v{V_NONCE}, v{V_ZERO}, {sr(S_DBG,4)}, 0 offen {SC1}", "s_waitcnt vmcnt(0)",
        f"v_readfirstlane_b32 s{S_TAG}, v{V_NONCE}", f"s_cmp_lg_u32 s{S_TAG}, 0", f"s_cbranch_scc1 {ok}", "s_sleep 2",
        f"s_sub_u32 s{S_SPIN}, s{S_SPIN}, 1", f"s_cmp_lg_u32 s{S_SPIN}, 0", f"s_cbranch_scc1 {top}")
    a.label(ok)
    a.e(f"s_xor_b32 s{S_TAG+1}, s{S_TAG}, {TAGX:#x}", f"v_mov_b32 v{V_FD}, s{S_TAG}", f"v_mov_b32 v{V_FD+1}, s{S_TAG+1}")

def ab_program(a, kinds, params, solo=None):
    vm, lg = Vm2(), Lg()
    stages = []
    for gi, kind in enumerate(kinds):
        if gi == 0: continue
        if kind == "F":
            for c in range(7):
                stages.append(dict(gi=gi, k0=4*c, nk=4, kind=kind, nu=2))
        elif kind == "S" and solo == "G":
            stages.append(dict(gi=gi, k0=0, nk=28, kind=kind, nu=1))
        else:
            for k0, nk in ((0, 8), (8, 8), (16, 8), (24, 4)):
                stages.append(dict(gi=gi, k0=k0, nk=nk, kind=kind, nu=nk // 4))
    mf = []
    for si, st in enumerate(stages):
        st["first"] = len(mf)
        for s in range(st["k0"], st["k0"] + st["nk"]):
            for tile in range(2 if st["kind"] == "F" else 1):
                mf.append(dict(si=si, s=s, tile=tile, kind=st["kind"], gi=st["gi"]))
    g0 = [dict(u=14 + c if c < 6 else 14) for c in range(7)]
    for c in range(O.la0):
        g0[c]["t"] = vm.issue_lo(6)
    free = []
    state = dict(next_dma=0, tag=False, nonce=None)
    pend, dq = [], []
    def issue_dma(si, lo):
        st = stages[si]
        gi, kind = st["gi"], st["kind"]
        if si >= len(stages) - 2 and 19 in free[:st["nu"]] and len(free) > st["nu"]:
            free.remove(19); free.append(19)
        st["u"] = [free.pop(0) for _ in range(st["nu"])]
        u = st["u"]
        c = st["k0"] // 4
        if lo:
            if kind == "F":
                a.e(*koff(S_T0, c, 64 * 3584, S_COL + gi), f"s_add_u32 s{S_T1}, s{S_T0}, {8*3584}")
                for q, w in enumerate((S_WG, S_WU)):
                    a.e(f"s_add_u32 m0, s{S_W2K}, {u[q]*8192}", "s_nop 0", f"buffer_load_dwordx4 v{V_LWF}, {sr(w,4)}, s{S_T0} offen lds")
                    a.e(f"s_add_u32 m0, s{S_W2K}, {u[q]*8192+1024}", "s_nop 0", f"buffer_load_dwordx4 v{V_LWF}, {sr(w,4)}, s{S_T1} offen lds")
            else:
                for q in range(st["nu"]):
                    a.e(f"s_add_u32 m0, s{S_W2K}, {u[q]*8192}", *koff(S_T0, c + q, 64 * 2688, S_COL + gi), f"buffer_load_dwordx4 v{V_LW}, {sr(S_WQ,4)}, s{S_T0} offen lds")
                    a.e(f"s_add_u32 m0, s{S_W2K}, {u[q]*8192+1024}", f"s_add_u32 s{S_T0}, s{S_T0}, {8*2688}", f"buffer_load_dwordx4 v{V_LW}, {sr(S_WQ,4)}, s{S_T0} offen lds")
            st["t"] = vm.issue_lo(2 * st["nu"])
        elif kind == "F":
            a.e(f"s_add_u32 m0, s{S_W1K}, {u[0]*8192}", *koff(96, c, 64 * 3584, S_COL + gi))
            a.e(f"buffer_load_dwordx4 v{V_WF}, {sr(S_WG,4)}, s96 offen lds"); vm.issue()
            a.e(f"s_add_u32 m0, s{S_W1K}, {u[1]*8192}", "s_nop 0")
            a.e(f"buffer_load_dwordx4 v{V_WF}, {sr(S_WU,4)}, s96 offen lds"); st["t"] = vm.issue()
        else:
            for q in range(st["nk"] // 4 if not (kind == "S" and solo == "G") else 0):
                a.e(f"s_add_u32 m0, s{S_W1K}, {u[q]*8192}", *koff(S_T0, c + q, 64 * 2688, S_COL + gi))
                a.e(f"buffer_load_dwordx4 v{V_WQ}, {sr(S_WQ,4)}, s{S_T0} offen lds"); st["t"] = vm.issue()
            if kind == "S" and solo == "G":
                state["gu"] = st["u"][0]
                a.e(f"s_and_b32 s{S_T0}, s{S_CP}, 15", f"s_lshl_b32 s{S_T0}, s{S_T0}, 7", f"v_add_u32 v{V_T0}, s{S_T0}, v{V_SH}",
                    f"v_subrev_u32 v207, 896, v{V_T0}", f"v_min_u32 v{V_T0}, v{V_T0}, v207")
                a.e(f"s_add_u32 m0, s{S_W1K}, {state['gu']*8192}", "s_nop 0")
                a.e(f"buffer_load_dwordx4 v{V_T0}, {sr(S_GW,4)}, 0 offen lds"); st["t"] = vm.issue()
    def fill(pos, lo=False, si=-9):
        if si >= 0 and stages[si]["kind"] == "S": pos += 8 if solo == "H" else 24
        while state["next_dma"] < len(stages):
            st = stages[state["next_dma"]]
            if len(free) < st["nu"] or (st["first"] - pos > O.la and state["next_dma"] > si + 2) or (lo and st["kind"] == "S"):
                break
            issue_dma(state["next_dma"], lo); state["next_dma"] += 1
    def xreads(c):
        for q in range(4):
            a.e(f"v_add_u32 v{V_XC+q}, {c*16384}, v{V_XR+q}")
        return [f"ds_read_b128 {vr(X+16*c+4*q,4)}, v{V_XC+q}" for q in range(4)]
    def g0_mfma(c, i):
        s_, t_ = 4 * c + i // 2, i % 2
        f = (FB0 if c % 2 == 0 else FR) + 4 * i
        acc = ACC + 16 * t_
        cin = "0" if s_ == 0 else vr(acc, 16)
        if kinds[0] == "V":
            return f"{MFMA} {vr(acc,16)}, {vr(X+4*s_,4)}, {vr(f,4)}, {cin}"
        return f"{MFMA} {vr(acc,16)}, {vr(f,4)}, {vr(X+4*s_,4)}, {cin}"
    params(a, range(len(kinds)))
    a.e(f"s_mov_b32 s{S_LOB}, s{S_OB+len(kinds)-1}", f"s_mov_b32 s{S_LFL}, s{S_FL+len(kinds)-1}")
    lc, lj = uid("g0c"), uid("g0j")
    a.e(f"s_cmp_ge_u32 s{S_W}, 4", f"s_cbranch_scc1 {lc}")
    if O.prio_ld: a.e(f"s_setprio {O.prio_ld}")
    for c in range(7):
        a.e(f"s_waitcnt vmcnt({vm.n[0] - g0[c]['t'][0]}) lgkmcnt(4)", "s_barrier")
        if O.bars == 1: stamp(a, 16 + c)
        if c >= 2:
            if c != 2: free.append(g0[c-2]["u"])
            free.extend([2 * (c - 2), 2 * (c - 2) + 1])
        if not O.xlast: a.e(*xreads(c))
        for q in range(7):
            if "t" not in g0[q] and q <= c + O.la1 and (q < 6 or c >= 2):
                g0[q]["t"] = vm.issue_lo(dma_g0(a, q, g0[q]["u"]))
        if "t" in g0[6]: fill(8 * (c - 7), lo=True)
        if O.xlast: a.e(*xreads(c))
    if O.prio_ld: a.e("s_setprio 0")
    a.e(f"s_branch {lj}")
    a.label(lc)
    def ftouch():
        a.e(f"s_and_b32 s{S_T0}, s{S_RB}, 7", f"s_lshl_b32 s{S_T0}, s{S_T0}, 3", f"v_lshrrev_b32 v{T}, 3, v{V_LANE}", f"v_min_u32 v{T}, 6, v{T}",
            f"v_lshlrev_b32 v{T}, 6, v{T}", f"v_and_b32 v{T+1}, 7, v{V_LANE}", f"v_add3_u32 v{T}, v{T}, v{T+1}, s{S_T0}")
        for wv, (sd, stride, gi) in enumerate([(S_WG, 3584, 1), (S_WU, 3584, 1)] if kinds[1] == "F" else [(S_WQ, 2688, 1)]):
            nx = uid("ft")
            a.e(f"s_cmp_lg_u32 s{S_W}, {5+wv}", f"s_cbranch_scc1 {nx}", f"v_mul_u32_u24 v{T}, {stride}, v{T}",
                f"buffer_load_dword v{V_DUM}, v{T}, {sr(sd,4)}, s{S_COL+gi} offen")
            a.label(nx)
    if O.ftouch == -2: ftouch()
    for c in range(7):
        a.e("s_barrier")
        if O.ftouch == c: ftouch()
        if O.bars == 1: stamp(a, 16 + c)
        if O.pref_f >= 2 and c == O.pref_f - 2: pref_weights(a, None, [(4, S_WG), (5, S_WU)], True)
        rd = xreads(c)
        for i in range(8):
            f = (FB0 if c % 2 == 0 else FR) + 4 * i
            for u in range(2):
                off = g0[c]["u"] * 8192 + (16 * (i // 2) + 4 * u) * 128
                base = (V_TR + off // 65536) if i % 2 else (V_TRX + off // 65536 - 1)
                rd.append(f"ds_read_b64_tr_b16 {vr(f+2*u,2)}, v{base} offset:{off % 65536}")
        if c == 0:
            a.e(*rd)
        else:
            new = 0
            for i in range(8):
                a.e(f"s_waitcnt lgkmcnt({min(15, 2 * (7 - i) + new)})", g0_mfma(c - 1, i))
                k = 3 if i < 4 else 2
                a.e(*rd[:k]); rd = rd[k:]; new += k
            assert not rd
    a.label(lj)
    rel = [[g0[5]["u"], 10, 11], [g0[6]["u"], 12, 13]]
    def bar(si, m):
        st = stages[si]
        due = [p for p in pend if p[0] <= si]
        tk = [st["t"]] + [p[1] for p in due] + ([state["nonce"]] if due and not state["tag"] else [])
        vm.wait(a, tk)
        a.e("s_barrier")
        if O.bars == 1 and si < 6: stamp(a, 23 + si)
        if O.bars == 2 and si < 13: stamp(a, 16 + si)
        free.extend(stages[si - 2]["u"] if si >= 2 else rel[si])
        if O.dsplit and stages[si]["kind"] != "S" and si + 1 < len(stages) and stages[si + 1]["kind"] != "S":
            sub = Asm(); keep = a.lines; a.lines = sub.lines
            n0, d0 = list(vm.n), state["next_dma"]
            fill(m - PD, si=si)
            a.lines = keep
            vm.n = n0
            cur, k = [], 0
            for l in sub.lines:
                cur.append(l)
                if "buffer_load" in l:
                    dq.append([min(m + k * O.dsplit, stages[si + 1]["first"] - 1), cur, None]); cur = []; k += 1
            idx = len(dq) - k
            for q in range(d0, state["next_dma"]):
                idx += stages[q]["nu"]
                dq[idx - 1][2] = q
        else:
            fill(m - PD, si=si)
        for p in due:
            if not state["tag"]:
                get_tag(a); state["tag"] = True
            if p[2] == 0:
                nx = uid("p0")
                a.e(f"s_cmp_lt_u32 s{S_W}, 4", f"s_cbranch_scc1 {nx}", f"s_add_u32 s{S_T0}, s{S_FL}, 512")
                publish(a, f"s{S_FL}"); publish(a, f"s{S_T0}"); vm.n[1] += 2
                a.label(nx)
            elif kinds[p[2]] == "S":
                nx = uid("p0")
                a.e(f"s_cmp_ge_u32 s{S_W}, 4" if solo == "H" else f"s_cmp_lt_u32 s{S_W}, 4", f"s_cbranch_scc1 {nx}")
                publish(a, f"s{S_FL+p[2]}"); vm.n[solo == "G"] += 1
                a.label(nx)
            else:
                publish(a, f"s{S_FL+p[2]}"); vm.issue()
            pend.remove(p)
        if si == 0:
            a.e(f"buffer_load_dword v{V_NONCE}, v{V_ZERO}, {sr(S_DBG,4)}, 0 offen {SC1}"); state["nonce"] = vm.issue()
        if si == 3:
            role_d(a)
        if si == len(stages) - 1:
            u = [q for q in free if q * 8192 >= L_XCH + 49152][0]
            a.e(f"s_mov_b32 s{S_CNT}, {u*8192 + 4096}", f"v_mov_b32 v204, s{S_CNT}", f"ds_write_b32 v204, v{V_ZERO}", f"ds_write_b32 v204, v{V_ZERO} offset:4"); lg.issue(); lg.issue()
        if si == O.mall_at:
            pref_weights(a, vm, [(0, S_WD), (1, S_WO)])
        if si == len(stages) - O.poll_back:
            a.e(f"s_mov_b32 s{S_T0}, {WS_F}")
            a.e(f"buffer_load_dwordx2 {vr(V_PD,2)}, v{C_PA}, {sr(S_WS,4)}, s{S_T0} offen {SC1}"); vm.issue()
            a.e(f"buffer_load_dwordx2 {vr(V_PD+2,2)}, v{C_PB}, {sr(S_WS,4)}, s{S_T0} offen {SC1}"); state["poll"] = vm.issue()
    blocks = {}
    def flush_dq(m):
        while dq and dq[0][0] <= m:
            _, ls, q = dq.pop(0)
            a.lines.extend(ls); t = vm.issue()
            if q is not None: stages[q]["t"] = t
    def reads(m, hi=False):
        e = mf[m]; st = stages[e["si"]]
        if m == st["first"]:
            if hi:
                labs = [l[:-1] for l in blocks[m] if l.endswith(":")]
                for l in blocks[m]:
                    for q in labs: l = re.sub(rf"\b{q}\b", q + "h", l)
                    a.lines.append(l)
            else:
                n0 = len(a.lines); bar(e["si"], m); blocks[m] = a.lines[n0:]
        f = FR + 4 * (m % NFR)
        if st["kind"] == "S" and hi != (solo == "G"):
            return
        if hi:
            for u in range(2):
                a.e(f"ds_read_b64 {vr(f+2*u,2)}, v{V_XC+3} offset:{32*e['s']+8*u}"); e["t"] = lg.issue()
        else:
            kk = e["s"] - st["k0"]
            unit = st["u"][e["tile"]] if st["kind"] == "F" else st["u"][kk // 4]
            for u in range(2):
                off = unit * 8192 + (16 * (kk % 4) + 4 * u) * 128
                a.e(f"ds_read_b64_tr_b16 {vr(f+2*u,2)}, v{(V_XC if st['kind'] == 'S' else V_TR) + off // 65536} offset:{off % 65536}"); e["t"] = lg.issue()
        flush_dq(m)
    for m in range(PD):
        reads(m)
    nx, ny = uid("e0"), uid("e0")
    a.e(f"s_cmp_ge_u32 s{S_W}, 4", f"s_cbranch_scc1 {ny}")
    role_c(a)
    a.e(f"s_branch {nx}")
    a.label(ny)
    for i in range(8):
        a.e(f"s_waitcnt lgkmcnt({min(15, 2 * (7 - i) + 2 * PD)})", g0_mfma(6, i))
    dummy = Vm()
    epilogue(a, dummy, 0, kinds[0], ACC)
    a.e(f"s_add_u32 s{S_OB}, s{S_OB}, {131072 if kinds[0] == 'QK' else 512}")
    epilogue(a, dummy, 0, kinds[0], ACC + 16)
    vm.n[1] += dummy.n
    pend.append((O.pubd, (0, vm.n[1]), 0))
    a.label(nx)
    stamp(a, 3)
    def mfma(m, hi=False):
        e = mf[m]
        if e["kind"] == "S" and hi != (solo == "G"): return
        lg.wait(a, e["t"])
        f = FR + 4 * (m % NFR)
        acc = ACC + 16 * e["tile"]
        cin = "0" if e["s"] == 0 else vr(acc, 16)
        xa = vr(X + 4 * e["s"], 4)
        if e["kind"] in ("V", "S") and not hi:
            a.e(f"{MFMA} {vr(acc,16)}, {xa}, {vr(f,4)}, {cin}")
        else:
            a.e(f"{MFMA} {vr(acc,16)}, {vr(f,4)}, {xa}, {cin}")
    m = 0
    while m < len(mf):
        e = mf[m]
        if e["kind"] == "S":
            m1 = m + 28
            lh, lj2 = uid("sh"), uid("sj")
            if solo == "H":
                a.e(f"s_sub_u32 s{S_T0}, s{S_J}, 13", f"s_lshl_b32 s{S_T0}, s{S_T0}, 5")
                for q in range(3): a.e(f"v_xor_b32 v{V_XC+q}, s{S_T0}, v{V_TR+q}")
            else:
                a.e(f"v_lshrrev_b32 v{V_XC+3}, 5, v{V_LANE}", f"v_lshlrev_b32 v{V_XC+3}, 4, v{V_XC+3}",
                    f"s_add_u32 s{S_T0}, s{S_W1K}, {state['gu']*8192}", f"v_add_u32 v{V_XC+3}, s{S_T0}, v{V_XC+3}")
            a.e(f"s_cmp_ge_u32 s{S_W}, 4", f"s_cbranch_scc1 {lh}")
            lg0 = lg.n
            epi = {}
            for hi in (False, True):
                lg.n = lg0
                if hi: a.label(lh)
                for q in range(m, m + PD): reads(q, hi)
                if not hi:
                    n0 = len(a.lines); state["epi"](); epi = a.lines[n0:]
                else:
                    a.lines.extend(epi)
                for q in range(m, m1):
                    mfma(q, hi)
                    if q + PD < m1: reads(q + PD, hi)
                if not hi: a.e(f"s_branch {lj2}")
            a.label(lj2)
            lg.n = lg0 + 200
            for q in range(m1, m1 + PD): reads(q)
            lj2 = uid("sj")
            d0 = Vm()
            a.e(f"s_cmp_ge_u32 s{S_W}, 4" if solo == "H" else f"s_cmp_lt_u32 s{S_W}, 4", f"s_cbranch_scc1 {lj2}", "s_nop 7")
            epilogue(a, d0, e["gi"], "V" if solo == "H" else "G")
            a.label(lj2)
            vm.n[solo == "G"] += d0.n
            pend.append((mf[m1]["si"] + O.pubd_s, (vm.n[0], 0) if solo == "H" else (0, vm.n[1]), e["gi"]))
            stamp(a, 3 + e["gi"])
            m = m1
            continue
        mfma(m)
        if m + PD < len(mf) and mf[m + PD]["kind"] != "S":
            reads(m + PD)
        if O.early and m == len(mf) - O.hook_back:
            early_hook(a, vm.n[0] - state["poll"][0])
        if m + 1 < len(mf) and mf[m + 1]["gi"] != e["gi"]:
            def do_epi(e=e, m=m):
                t = epilogue(a, vm, e["gi"], e["kind"])
                pend.append((mf[m + 1]["si"] + O.pubd, t, e["gi"]))
                stamp(a, 3 + e["gi"])
            if mf[m + 1]["kind"] == "S": state["epi"] = do_epi
            else: do_epi()
        m += 1
    assert not pend and state["tag"]
    assert kinds[-1] == "F"

def c_adv(a):
    a.e(f"s_add_u32 s{SC_K}, s{SC_K}, 512", f"s_and_b32 s{SC_K}, s{SC_K}, 8191", f"s_mul_i32 s{SC_V0}, s{SC_K}, 57")

def c_loads(a, buf, imm=0):
    for w in range(4):
        c_load1(a, buf, 0, w, masked=(w == 3))

def c_smfma(a, i, half):
    kt, qs = (i // 4) % 4, i % 4
    S = CS + 16 * (i % 2)
    a.e(f"{MFMA} {vr(S,16)}, {vr(CKV+16*kt+4*half,4)}, {vr(CQ+8*qs+4*half,4)}, {'0' if half == 0 else vr(S,16)}")
def c_pv(a, i, half, first=False):
    if first and i < 0: return
    i %= 16
    kt, qs = i // 4, i % 4
    Oq = CO + 16 * qs
    a.e(f"{MFMA} {vr(Oq,16)}, {vr(CKV+16*kt+8+4*half,4)}, {vr(CP+8*(i%2)+4*half,4)}, {'0' if first and half == 0 else vr(Oq,16)}")

def c_load1(a, buf, imm, which, masked=False):
    kb, vb = CKV + 16 * buf, CKV + 16 * buf + 8
    if which < 2:
        a.e(f"buffer_load_dwordx4 {vr(kb+4*which,4)}, v{C_VK1 if which else C_VK}, {sr(S_KV,4)}, s{SC_K} offen {SC1}")
    else:
        a.e(f"buffer_load_dwordx4 {vr(vb+4*(which-2),4)}, v{C_VV1 if which == 3 else C_VV}, {sr(S_KV,4)}, s{SC_V0} offen {SC1}")
        if which == 3: c_adv(a)

def c_step(a, i, first=False, extra=None):
    S, P = CS + 16 * (i % 2), CP + 8 * (i % 2)
    ex = lambda k: a.e(f"v_exp_f32 v{S+k}, v{S+k}")
    cv = lambda k: a.e(f"v_cvt_pk_bf16_f32 v{P+k}, v{S+2*k}, v{S+2*k+1}")
    kt = i // 4
    def mem():
        if i == 4:
            a.e(f"s_cmp_eq_u32 s{SC_IT}, 1", f"s_cselect_b32 s{S_KV+2}, 0, s{S_KV+2}")
        if O.noload:
            pass
        elif O.spread:
            c_load1(a, (kt + 3) % 4, 512 * (kt + 3), i % 4)
        elif i % 4 == 0:
            c_loads(a, (kt + 3) % 4, 512 * (kt + 3))
    def wt():
        if O.delay_d and i == O.d_go[1]:
            sk = uid("go")
            a.e(f"s_cmp_lg_u32 s{SC_IT}, {O.d_go[0]}", f"s_cbranch_scc1 {sk}", f"ds_write_b32 v{C_T+15}, v{C_T+15} offset:4")
            a.label(sk)
        if first and i == 3:
            a.e("s_waitcnt vmcnt(3)", "s_mov_b64 exec, 1", f"buffer_store_dwordx2 {vr(C_T,2)}, v{V_ZERO}, {sr(S_WS,4)}, s{S_LFL} offen {SC1}", "s_mov_b64 exec, -1")
        elif i % 4 == 3:
            a.e(f"s_waitcnt vmcnt({7 if O.spread and O.pack != 6 else 8})")
            if i == 3 and not O.peel:
                sk = uid("pub")
                a.e(f"s_cmp_lg_u32 s{SC_IT}, 4", f"s_cbranch_scc1 {sk}")
                a.e("s_mov_b64 exec, 1", f"buffer_store_dwordx2 {vr(C_T,2)}, v{V_ZERO}, {sr(S_WS,4)}, s{S_LFL} offen {SC1}")
                if O.poison: a.e(f"buffer_store_dwordx2 {vr(C_T,2)}, v{V_ZERO}, {sr(S_WS,4)}, s{S_OFL} offen {SC1}")
                a.e("s_mov_b64 exec, -1")
                a.label(sk)
    if O.pack == 0:
        wt()
        c_smfma(a, i + 1, 0)
        for k in range(4): ex(k)
        c_smfma(a, i + 1, 1)
        ex(4); ex(5); cv(0); cv(1); ex(6); ex(7)
        c_pv(a, i - 1, 0)
        ex(8); ex(9); cv(2); cv(3); ex(10); ex(11)
        c_pv(a, i - 1, 1)
        mem()
        for k in range(12, 16): ex(k)
        cv(4); cv(5); cv(6); cv(7)
    elif O.pack == 1:
        c_pv(a, i - 1, 0, first)
        ex(0); ex(1); ex(2)
        c_pv(a, i - 1, 1, first)
        ex(3); ex(4); ex(5)
        wt()
        c_smfma(a, i + 1, 0)
        ex(6); ex(7); cv(0); cv(1)
        c_smfma(a, i + 1, 1)
        mem()
        if extra: extra()
        ex(8); ex(9); cv(2); ex(10); ex(11); cv(3); ex(12); ex(13); cv(4); ex(14); ex(15); cv(5); cv(6); cv(7)
    elif O.pack == 6:
        buf = (kt + 3) % 4
        kb, vb = CKV + 16 * buf, CKV + 16 * buf + 8
        sl = [[], [], [], []]
        if i == 4:
            sl[0].append(f"s_cmp_eq_u32 s{SC_IT}, 1"); sl[1].append(f"s_cselect_b32 s{S_KV+2}, 0, s{S_KV+2}")
        ld = [f"buffer_load_dwordx4 {vr(kb,4)}, v{C_VK}, {sr(S_KV,4)}, s{SC_K} offen {SC1}", f"buffer_load_dwordx4 {vr(kb+4,4)}, v{C_VK1}, {sr(S_KV,4)}, s{SC_K} offen {SC1}",
              f"buffer_load_dwordx4 {vr(vb,4)}, v{C_VV}, {sr(S_KV,4)}, s{SC_V0} offen {SC1}", f"buffer_load_dwordx4 {vr(vb+4,4)}, v{C_VV1}, {sr(S_KV,4)}, s{SC_V0} offen {SC1}"]
        if O.ldm == 0:
            if i % 4 == 0: sl[3] += ld[:2]
            if i % 4 == 1: sl[3] += ld[2:]
        elif i % 4 == 1:
            for q in range(4): sl[q].append(ld[q])
        if i % 4 == 2:
            sl[0].append(f"s_add_u32 s{SC_K}, s{SC_K}, 512"); sl[1].append(f"s_and_b32 s{SC_K}, s{SC_K}, 8191"); sl[2].append(f"s_mul_i32 s{SC_V0}, s{SC_K}, 57")
        if i == 15 and O.wt_early:
            sl[2].append(f"s_sub_u32 s{SC_IT}, s{SC_IT}, 1"); sl[3].append(f"s_cmp_lg_u32 s{SC_IT}, 0")
        em = lambda k: [a.e(l) for l in sl[k]]
        c_pv(a, i - 1, 0); em(0)
        ex(0); ex(1); ex(2)
        c_pv(a, i - 1, 1); em(1)
        if O.wt_early: wt()
        ex(3); ex(4); ex(5)
        if not O.wt_early: wt()
        c_smfma(a, i + 1, 0); em(2)
        ex(6); ex(7); cv(0); cv(1)
        c_smfma(a, i + 1, 1); em(3)
        ex(8); ex(9); cv(2); ex(10); ex(11); cv(3); ex(12); ex(13); cv(4); ex(14); ex(15); cv(5); cv(6); cv(7)
    elif O.pack == 4:
        c_pv(a, i - 1, 0)
        ex(0); ex(1); ex(2)
        c_pv(a, i - 1, 1)
        ex(3); ex(4); cv(0); ex(5); cv(1); ex(6); ex(7); cv(2); cv(3)
        wt()
        c_smfma(a, i + 1, 0)
        ex(8); ex(9); ex(10)
        c_smfma(a, i + 1, 1)
        mem()
        ex(11); ex(12); cv(4); ex(13); cv(5); ex(14); ex(15); cv(6); cv(7)
    elif O.pack == 5:
        c_pv(a, i - 1, 0)
        ex(0); ex(1); ex(2)
        c_pv(a, i - 1, 1)
        ex(3); ex(4); cv(0); ex(5); cv(1); ex(6); ex(7); ex(8); cv(2); cv(3)
        wt()
        c_smfma(a, i + 1, 0)
        ex(9); ex(10); ex(11)
        c_smfma(a, i + 1, 1)
        mem()
        ex(12); cv(4); ex(13); cv(5); ex(14); ex(15); cv(6); cv(7)
    elif O.pack == 3:
        sub = Asm(); keep = a.lines; a.lines = sub.lines; mem(); a.lines = keep
        ml = sub.lines
        grp = []
        k = 0
        while k < len(ml):
            if "s_mov_b64 exec, s[" in ml[k]: grp.append(ml[k:k+3]); k += 3
            elif "s_cmp_eq" in ml[k]: grp.append(ml[k:k+2]); k += 2
            else: grp.append([ml[k]]); k += 1
        def nx():
            if grp: a.lines.extend(grp.pop(0))
        c_pv(a, i - 1, 0)
        ex(0); ex(1); ex(2)
        c_pv(a, i - 1, 1)
        ex(3); ex(4); ex(5)
        wt()
        c_smfma(a, i + 1, 0)
        ex(6); ex(7); cv(0); cv(1)
        c_smfma(a, i + 1, 1)
        ex(8); nx(); ex(9); nx(); cv(2); ex(10); nx(); ex(11); nx(); cv(3); ex(12); nx(); ex(13); cv(4); ex(14); ex(15); cv(5); cv(6); cv(7)
        assert not grp
    elif O.pack == 2:
        c_pv(a, i - 1, 0)
        ex(0); ex(1)
        c_pv(a, i - 1, 1)
        ex(2); ex(3); cv(0)
        wt()
        c_smfma(a, i + 1, 0)
        ex(4); ex(5); cv(1)
        c_smfma(a, i + 1, 1)
        mem()
        ex(6); ex(7); cv(2); ex(8); ex(9); cv(3); ex(10); ex(11); cv(4); ex(12); ex(13); cv(5); ex(14); ex(15); cv(6); cv(7)

def vinit(a, b):
    if b == 3:
        for k in range(8):
            a.e(f"v_mov_b32 v{CKV+16*b+8+k}, 0")

def first_loads(a):
    vinit(a, 0)
    c_loads(a, 0, 0)
    a.e(f"s_lshl_b32 s4, s{SC_O}, 15", f"s_lshl_b32 s5, s{SC_QT}, 11", "s_add_u32 s4, s4, s5")
    for i in range(4):
        a.e(f"s_add_u32 s5, s{S_W}, {i+1}", "s_and_b32 s5, s5, 3", "s_lshl_b32 s5, s5, 9", "s_add_u32 s5, s5, s4", f"s_add_u32 s6, s5, {2*OCT}")
        a.e(f"buffer_load_dwordx4 {vr(CQ+8*i,4)}, v{C_QA}, {sr(S_WS,4)}, s5 offen {SC1}")
        a.e(f"buffer_load_dwordx4 {vr(CQ+8*i+4,4)}, v{C_QA}, {sr(S_WS,4)}, s6 offen {SC1}")
    a.e(f"s_lshl_b32 s4, s{SC_QT}, 2", f"s_add_u32 s4, s4, s{S_W}", "s_lshl_b32 s4, s4, 7", f"s_add_u32 s4, s4, {WS_G}",
        f"v_and_b32 v{C_G}, 31, v{V_LANE}", f"v_lshlrev_b32 v{C_G}, 2, v{C_G}")
    a.e(f"buffer_load_dword v{C_G}, v{C_G}, {sr(S_WS,4)}, s4 offen {SC1}")

def early_hook(a, k):
    sk = uid("eh")
    a.e(f"s_mov_b32 s{S_EARLY}, 0", f"s_cmp_ge_u32 s{S_W}, 4", f"s_cbranch_scc1 {sk}")
    if O.peel:
        for b in range(1, 4): vinit(a, b)
    a.e(f"s_waitcnt vmcnt({k})")
    poll_check(a, V_PD, sk); poll_check(a, V_PD + 2, sk)
    first_loads(a)
    a.e(f"s_mov_b32 s{S_EARLY}, 1")
    a.label(sk)

def fallback(a):
    TT = C_T
    KB, VB, M, VA = CKV, CKV + 8, TT + 7, TT + 10
    SK, SK1, SV, SV1, SN = 4, 5, 6, 7, SC_IT
    def kbase():
        a.e(f"s_add_u32 s{SK}, s{SC_O}, 56", f"s_lshl_b32 s{SK}, s{SK}, 15", f"s_add_u32 s{SK1}, s{SK}, {2*OCT}", f"s_mov_b32 s{SN}, 64")
    def kload():
        a.e(f"buffer_load_dwordx4 {vr(KB,4)}, v{C_QA}, {sr(S_WS,4)}, s{SK} offen {SC1}", f"buffer_load_dwordx4 {vr(KB+4,4)}, v{C_QA}, {sr(S_WS,4)}, s{SK1} offen {SC1}",
            f"s_add_u32 s{SK}, s{SK}, 512", f"s_add_u32 s{SK1}, s{SK1}, 512")
    def scores():
        a.e("s_waitcnt vmcnt(0)", f"{MFMA} {vr(CS,16)}, {vr(KB,4)}, {vr(CQ+24,4)}, 0", f"{MFMA} {vr(CS,16)}, {vr(KB+4,4)}, {vr(CQ+28,4)}, {vr(CS,16)}")
    a.label("L_fallback")
    a.e(f"v_mov_b32 v{M}, 0xff800000")
    kbase()
    a.label("L_fb1")
    kload(); scores()
    for i in range(8):
        a.e(f"v_max3_f32 v{M}, v{M}, v{CS+2*i}, v{CS+2*i+1}")
    a.e(f"s_sub_u32 s{SN}, s{SN}, 1", f"s_cmp_lg_u32 s{SN}, 0", "s_cbranch_scc1 L_fb1")
    a.e(f"v_mov_b32 v{M+1}, v{M}", f"v_permlane32_swap_b32 v{M}, v{M+1}", f"v_max_f32 v{M}, v{M}, v{M+1}")
    for i in range(16):
        a.e(f"v_mov_b32 v{CO+i}, 0")
    kbase()
    a.e(f"s_mul_i32 s{SV}, s{S_W}, {16*V_TB}", f"v_subrev_u32 v{VA}, s{SV}, v{C_VV}", f"v_subrev_u32 v{VA+1}, s{SV}, v{C_VV1}", f"s_mov_b32 s{SV}, 0")
    a.label("L_fb2")
    kload()
    a.e(f"buffer_load_dwordx4 {vr(VB,4)}, v{VA}, {sr(S_WS,4)}, s{SV} offen {SC1}",
        f"buffer_load_dwordx4 {vr(VB+4,4)}, v{VA+1}, {sr(S_WS,4)}, s{SV} offen {SC1}", f"s_add_u32 s{SV}, s{SV}, {V_TB}")
    scores()
    for i in range(16):
        a.e(f"v_sub_f32 v{CS+i}, v{CS+i}, v{M}")
    for i in range(16):
        a.e(f"v_exp_f32 v{CS+i}, v{CS+i}")
    for k in range(8):
        a.e(f"v_cvt_pk_bf16_f32 v{CP+k}, v{CS+2*k}, v{CS+2*k+1}")
    a.e(f"{MFMA} {vr(CO,16)}, {vr(VB,4)}, {vr(CP,4)}, {vr(CO,16)}", f"{MFMA} {vr(CO,16)}, {vr(VB+4,4)}, {vr(CP+4,4)}, {vr(CO,16)}")
    a.e("s_nop 7", "s_nop 7", f"s_sub_u32 s{SN}, s{SN}, 1", f"s_cmp_lg_u32 s{SN}, 0", "s_cbranch_scc1 L_fb2")
    a.e(f"v_mov_b32 v{TT+5}, v{CO+12}", f"v_mov_b32 v{TT+6}, v{CO+12}", f"v_permlane32_swap_b32 v{TT+5}, v{TT+6}", f"s_mov_b32 s{SN}, 1", "s_nop 1", "s_branch L_fb_done")

def attention(a):
    L, TT = V_LANE, C_T
    vm = Vm()
    spin, go, go2 = uid("aspin"), uid("ago"), uid("ago")
    if O.prio_attn: a.e(f"s_setprio {O.prio_attn}")
    if O.early:
        a.e(f"s_cmp_eq_u32 s{S_EARLY}, 0", f"s_cbranch_scc1 {spin}")
    else:
        a.e("s_waitcnt vmcnt(0)")
        poll_check(a, V_PD, spin); poll_check(a, V_PD + 2, spin)
        a.label(go2)
        first_loads(a)
    a.label(go)
    stamp(a, 8)
    if O.peel:
        assert O.pack == 1 and O.spread and O.early and not O.poison
        a.e(f"v_mov_b32 v{TT}, v{V_FD}", f"v_mov_b32 v{TT+1}, v{V_FD+1}")
        c_loads(a, 1)
        od, dn = uid("qm"), uid("qm")
        a.e(f"s_bitcmp1_b32 s{SC_HEAD}, 0", "s_waitcnt vmcnt(4)", f"s_cbranch_scc1 {od}")
        for qs in range(4): a.e(f"v_and_b32 v{CQ+8*qs+6}, v{CQ+8*qs+6}, v{C_MB}", f"v_and_b32 v{CQ+8*qs+7}, v{CQ+8*qs+7}, v{C_MB}")
        a.e(f"s_branch {dn}")
        a.label(od)
        for qs in range(4): a.e(f"v_and_b32 v{CQ+8*qs}, v{CQ+8*qs}, v{C_MA}", f"v_and_b32 v{CQ+8*qs+1}, v{CQ+8*qs+1}, v{C_MA}")
        a.label(dn)
        a.e("s_nop 1")
        c_smfma(a, 0, 0); c_smfma(a, 0, 1)
        c_loads(a, 2)
        epi_F(a, vm, S_LOB, CP)
        for i in range(16): a.e(f"v_mov_b32 v{CO+48+i}, 0")
        stamp(a, 9)
        def x0():
            a.e(f"s_lshl_b32 s{S_TB}, s{SC_QT}, 2", f"s_add_u32 s{S_TB}, s{S_TB}, s{S_W}", f"s_mov_b32 s{SC_IT}, 4")
            a.e(f"s_mul_i32 s{S_OST}, s{S_TB}, {HO_TB}", f"s_lshl_b32 s{S_T1}, s{SC_HEAD}, 11", f"s_add_u32 s{S_OST}, s{S_OST}, s{S_T1}",
                f"s_add_u32 s{S_OST}, s{S_OST}, {WS_HO + 112*1024}")
            a.e(f"s_lshl_b32 s{S_OFL}, s{S_TB}, 4", f"s_add_u32 s{S_OFL}, s{S_OFL}, s{SC_HEAD}", f"s_lshl_b32 s{S_OFL}, s{S_OFL}, 3",
                f"s_add_u32 s{S_OFL}, s{S_OFL}, {WS_F + F_O}")
        def x1():
            for i in range(3):
                a.e(f"s_add_u32 s{S_T1}, s{S_W}, {i+1}", f"s_and_b32 s{S_T1}, s{S_T1}, 3", f"s_mul_i32 s{S_T1}, s{S_T1}, 12288",
                    f"s_add_u32 s{S_T1}, s{S_T1}, {L_XCH + i*4096}", f"v_add_u32 v{TT+11+i}, s{S_T1}, v{V_SH}")
            a.e(f"s_mul_i32 s{S_T1}, s{S_W}, 12288", f"s_add_u32 s{S_T1}, s{S_T1}, {L_XCH}", f"v_add_u32 v{TT+14}, s{S_T1}, v{V_SH}", f"v_mov_b32 v{TT+15}, s{S_CNT}")
        for i in range(4):
            c_step(a, i, first=True, extra=[x0, x1, None, None][i])
        a.raw(".p2align 3")
        a.label("L_c_loop")
        for i in range(4, 16):
            c_step(a, i)
        a.e(f"s_sub_u32 s{SC_IT}, s{SC_IT}, 1", f"s_cmp_eq_u32 s{SC_IT}, 0", "s_cbranch_scc1 L_c_out")
        for i in range(4):
            c_step(a, i)
        a.e("s_branch L_c_loop")
        a.label("L_c_out")
    else:
        a.e(f"v_and_b32 v{TT+2}, 31, v{L}", f"s_lshl_b32 s{S_TB}, s{SC_QT}, 2", f"s_add_u32 s{S_TB}, s{S_TB}, s{S_W}")
        epi_F(a, vm, S_LOB)
        a.e(f"v_mov_b32 v{TT}, v{V_FD}", f"v_mov_b32 v{TT+1}, v{V_FD+1}")
        a.e(f"s_mul_i32 s{S_OST}, s{S_TB}, {HO_TB}", f"s_lshl_b32 s{S_T1}, s{SC_HEAD}, 11", f"s_add_u32 s{S_OST}, s{S_OST}, s{S_T1}",
            f"s_add_u32 s{S_OST}, s{S_OST}, {WS_HO + 112*1024}")
        a.e(f"s_lshl_b32 s{S_OFL}, s{S_TB}, 4", f"s_add_u32 s{S_OFL}, s{S_OFL}, s{SC_HEAD}", f"s_lshl_b32 s{S_OFL}, s{S_OFL}, 3",
            f"s_add_u32 s{S_OFL}, s{S_OFL}, {WS_F + F_O}")
        if O.poison:
            for k in range(4): a.e(f"v_mov_b32 v{CP+k}, -1")
            a.e(f"buffer_store_dwordx4 {vr(CP,4)}, v{V_SH}, {sr(S_WS,4)}, s{S_OST} offen {SC1}",
                f"buffer_store_dwordx4 {vr(CP,4)}, v{V_SH}, {sr(S_WS,4)}, s{S_OST} offen offset:1024 {SC1}")
        for b in range(1, 4): vinit(a, b)
        c_loads(a, 1, 512)
        for i in range(64):
            a.e(f"v_mov_b32 v{CO+i}, 0")
        for i in range(8):
            a.e(f"v_mov_b32 v{CP+8+i}, 0")
        c_loads(a, 2, 1024)
        for i in range(3):
            a.e(f"s_add_u32 s{S_T1}, s{S_W}, {i+1}", f"s_and_b32 s{S_T1}, s{S_T1}, 3", f"s_mul_i32 s{S_T1}, s{S_T1}, 12288",
                f"s_add_u32 s{S_T1}, s{S_T1}, {L_XCH + i*4096}", f"v_add_u32 v{TT+11+i}, s{S_T1}, v{V_SH}")
        a.e(f"s_mul_i32 s{S_T1}, s{S_W}, 12288", f"s_add_u32 s{S_T1}, s{S_T1}, {L_XCH}", f"v_add_u32 v{TT+14}, s{S_T1}, v{V_SH}", f"v_mov_b32 v{TT+15}, s{S_CNT}")
        a.e(f"s_mov_b32 s{SC_IT}, 4")
        a.e(f"s_waitcnt vmcnt({12 if O.poison else 10})")
        for qs in range(4):
            a.e(f"v_and_b32 v{CQ+8*qs}, v{CQ+8*qs}, v{C_MA}", f"v_and_b32 v{CQ+8*qs+1}, v{CQ+8*qs+1}, v{C_MA}",
                f"v_and_b32 v{CQ+8*qs+6}, v{CQ+8*qs+6}, v{C_MB}", f"v_and_b32 v{CQ+8*qs+7}, v{CQ+8*qs+7}, v{C_MB}")
        stamp(a, 9)
        c_smfma(a, 0, 0); c_smfma(a, 0, 1)
        a.e("s_nop 7")
        a.raw(".p2align 3")
        a.label("L_c_loop")
        for i in range(16):
            c_step(a, i)
        if O.stamp == 1 and O.bars == 3:
            a.e("s_memtime s[6:7]", "s_waitcnt lgkmcnt(0)", "s_sub_u32 s6, s6, s100", f"s_add_u32 m0, s{SC_IT}, 15", "s_nop 0", f"v_writelane_b32 v255, s6, m0")
        if not (O.wt_early and O.pack == 6): a.e(f"s_sub_u32 s{SC_IT}, s{SC_IT}, 1", f"s_cmp_lg_u32 s{SC_IT}, 0")
        a.e("s_cbranch_scc1 L_c_loop")
    stamp(a, 10)
    for i in range(3):
        if i < 2: c_pv(a, 15, i)
        for q in range(4):
            a.e(f"ds_write_b128 v{TT+11+i}, {vr(CO+16*i+4*q,4)} offset:{q*1024}")
    a.e(f"v_mov_b32 v{TT+6}, 1", "s_waitcnt lgkmcnt(0)", "s_mov_b64 exec, 1",
        f"ds_add_u32 v{TT+15}, v{TT+6}", "s_mov_b64 exec, -1", f"s_mov_b32 s{S_SPIN}, 0x100000")
    top, dn = uid("xs"), uid("xd")
    a.label(top)
    a.e(f"ds_read_b32 v{TT+6}, v{TT+15}", "s_waitcnt lgkmcnt(0)", f"v_readfirstlane_b32 s{S_T1}, v{TT+6}", f"s_cmp_ge_u32 s{S_T1}, 4",
        f"s_cbranch_scc1 {dn}", f"s_sub_u32 s{S_SPIN}, s{S_SPIN}, 1", f"s_cmp_lg_u32 s{S_SPIN}, 0", f"s_cbranch_scc1 {top}")
    a.label(dn)
    stamp(a, 11)
    for i in range(3):
        for q in range(4):
            a.e(f"ds_read_b128 {vr(CO+16*i+4*q,4)}, v{TT+14} offset:{i*4096+q*1024}")
    a.e("s_waitcnt lgkmcnt(8)")
    for i in range(16):
        a.e(f"v_add_f32 v{CO+i}, v{CO+i}, v{CO+48+i}")
    a.e("s_waitcnt lgkmcnt(4)")
    for i in range(16):
        a.e(f"v_add_f32 v{CO+i}, v{CO+i}, v{CO+16+i}")
    a.e("s_waitcnt lgkmcnt(0)")
    for i in range(16):
        a.e(f"v_add_f32 v{CO+i}, v{CO+i}, v{CO+32+i}")
    def check():
        a.e(f"v_pk_mul_f32 {vr(TT+8,2)}, {vr(CO,2)}, 0 op_sel_hi:[1,0]", f"v_pk_mul_f32 {vr(TT+10,2)}, {vr(CO+2,2)}, 0 op_sel_hi:[1,0]")
        for i in range(2, 8):
            r = TT + 8 + 2 * (i % 2)
            a.e(f"v_pk_fma_f32 {vr(r,2)}, {vr(CO+2*i,2)}, 0, {vr(r,2)} op_sel_hi:[1,0,1]")
        a.e(f"v_cmp_nle_f32 vcc, {f2u(2.0**-30):#x}, v{TT+6}", f"v_cmp_nge_f32 s[4:5], s{SC_BIG}, v{TT+6}", f"v_pk_add_f32 {vr(TT+8,2)}, {vr(TT+8,2)}, {vr(TT+10,2)}",
            "s_or_b64 vcc, vcc, s[4:5]", f"v_cmp_u_f32 s[6:7], v{TT+8}, v{TT+9}", "s_or_b64 vcc, vcc, s[6:7]")
        if O.force_fb: a.e("s_mov_b64 vcc, -1")
        if not O.poison: a.e(f"s_cmp_lg_u32 s{SC_IT}, 0", "s_cselect_b64 vcc, 0, vcc")
        a.e("s_cbranch_vccnz L_fallback")
    a.e(f"v_mov_b32 v{TT+5}, v{CO+12}", f"v_mov_b32 v{TT+6}, v{CO+12}", f"s_mov_b32 s{SC_IT}, 0", f"v_permlane32_swap_b32 v{TT+5}, v{TT+6}")
    if O.poison: check()
    a.label("L_fb_done")
    a.e(f"v_rcp_f32 v{TT+5}, v{TT+6}", f"v_mul_f32 v{TT+5}, v{TT+5}, v{C_G}")
    def fin(k):
        a.e(f"v_cvt_pk_bf16_f32 v{CP+k}, v{CO+16+2*k}, v{CO+17+2*k}")
        if O.poison: a.e(f"v_min_u32 v{CP+k}, -2, v{CP+k}")
    for k in range(8):
        a.e(f"v_mul_f32 v{CO+16+2*k}, v{CO+2*k}, v{TT+5}", f"v_mul_f32 v{CO+17+2*k}, v{CO+2*k+1}, v{TT+5}")
        if k: fin(k - 1)
        if k == 4:
            a.e(f"buffer_store_dwordx4 {vr(CP,4)}, v{V_SH}, {sr(S_WS,4)}, s{S_OST} offen {SC1}")
    fin(7)
    a.e("s_mov_b32 exec_lo, 0", f"v_mov_b32 v{CP+6}, 0", f"v_mov_b32 v{CP+7}, 0", "s_mov_b32 exec_lo, -1")
    a.e(f"buffer_store_dwordx4 {vr(CP+4,4)}, v{V_SH}, {sr(S_WS,4)}, s{S_OST} offen offset:1024 {SC1}")
    if not O.poison:
        check()
        a.e("s_waitcnt vmcnt(0)", "s_mov_b64 exec, 1")
        a.e(f"buffer_store_dwordx2 {vr(TT,2)}, v{V_ZERO}, {sr(S_WS,4)}, s{S_OFL} offen {SC1}")
    stamp(a, 12)
    if O.red8:
        sk = uid("r8")
        a.e("s_mov_b64 exec, -1", "s_setprio 0", "s_cmp_ge_u32 s2, 224", f"s_cbranch_scc1 {sk}")
        a.e("s_and_b32 s4, s2, 7", "s_lshr_b32 s5, s2, 3", "s_mul_i32 s6, s5, 37", "s_lshr_b32 s6, s6, 8", "s_mul_i32 s7, s6, 7", "s_sub_u32 s7, s5, s7",
            "s_lshl_b32 s4, s4, 2", "s_add_u32 s6, s6, s4")
        red_addr(a, TT, 6, 7)
        a.e("s_barrier")
        red_pass(a, TT, [0])
        a.label(sk)
    stamp_end(a)
    a.e("s_endpgm")
    fallback(a)
    a.label(spin)
    poll_spin(a, [C_PA, C_PB], V_PD)
    if O.early:
        first_loads(a)
        a.e(f"s_branch {go}")
    else:
        a.e(f"s_branch {go2}")

def red_addr(a, TT, rt, ct):
    a.e(f"v_and_b32 v{TT+4}, 255, v0", f"v_lshrrev_b32 v{TT}, 3, v{TT+4}", f"v_and_b32 v{TT+1}, 7, v0", f"v_mul_u32_u24 v{TT+5}, 272, v{TT}",
        f"v_lshl_add_u32 v{TT+5}, v{TT+1}, 5, v{TT+5}")
    a.e(f"v_mul_u32_u24 v{TT+3}, 896, v{TT}", f"v_lshl_add_u32 v{TT+3}, v{TT+1}, 4, v{TT+3}")
    a.e(f"s_mul_i32 s{S_T0}, s{rt}, {64*896}", f"s_lshl_b32 s{S_T1}, s{ct}, 7", f"s_add_u32 s{S_T0}, s{S_T0}, s{S_T1}",
        f"s_add_u32 s{S_T1}, s{S_T0}, {32*896}")
    a.e(f"v_add_u32 v{TT+6}, {2*L_DREG}, v{TT+5}")

def red_pass(a, TT, ps):
    for p in ps:
        for w in range(4):
            for q in range(2):
                a.e(f"ds_read_b128 {vr(DACC+32*p+8*w+4*q,4)}, v{TT+5+w//2} offset:{(w%2)*L_DREG + p*32*272 + q*16}")
    for p in ps:
        b = DACC + 32 * p
        left = 8 * (len(ps) - 1 - ps.index(p))
        a.e(f"s_waitcnt lgkmcnt({left + 4})")
        for i in range(8):
            a.e(f"v_add_f32 v{b+i}, v{b+i}, v{b+8+i}")
        a.e(f"s_waitcnt lgkmcnt({left})")
        for i in range(8):
            a.e(f"v_add_f32 v{b+16+i}, v{b+16+i}, v{b+24+i}")
        for i in range(8):
            a.e(f"v_add_f32 v{b+i}, v{b+i}, v{b+16+i}")
        for k in range(4):
            a.e(f"v_cvt_pk_bf16_f32 v{b+8+k}, v{b+2*k}, v{b+2*k+1}")
        a.e(f"buffer_store_dwordx4 {vr(b+8,4)}, v{TT+3}, {sr(S_OUT,4)}, s{S_T0 if p == 0 else S_T1} offen {O.outf}")

def dphase(a):
    L, TT = V_LANE, D_T
    vm, lg = Vm(), Lg()
    RW, RB = O.rw, O.rb
    ts = epi_F(a, vm, S_LOB)
    fin = uid("dfin")
    a.e(f"s_cmp_ge_u32 s2, 224", f"s_cbranch_scc1 {fin}")
    a.e(f"s_and_b32 s{S_W}, s{S_W}, 3")
    a.e(f"s_mul_i32 s{SD_WB}, s{S_W}, {28*16*896}", f"s_lshl_b32 s{S_T0}, s{SD_CT}, 7", f"s_add_u32 s{SD_WB}, s{SD_WB}, s{S_T0}")
    a.e(f"s_mul_i32 s{SD_BB}, s{SD_RT}, {2*HO_TB}", f"s_mul_i32 s{S_T0}, s{S_W}, {28*1024}", f"s_add_u32 s{SD_BB}, s{SD_BB}, s{S_T0}",
        f"s_add_u32 s{SD_BB}, s{SD_BB}, {WS_HO}")
    NK = 36
    wt, bt = {}, {}
    pace = [O.d_pace >= 0]
    def wload(n):
        if n == 28:
            a.e(f"s_mul_i32 s{SD_W}, s{S_W}, {112*896}", f"s_lshl_b32 s{S_T0}, s{SD_CT}, 7", f"s_add_u32 s{SD_W}, s{SD_W}, s{S_T0}")
        elif n < 28 and n % 4 == 0:
            a.e(f"s_bfe_u32 s{SD_W}, s{SD_CP}, {(4 << 16) | n:#x}", f"s_mul_i32 s{SD_W}, s{SD_W}, {64*896}", f"s_add_u32 s{SD_W}, s{SD_W}, s{SD_WB}")
        row = 16 * (n % 4) if n < 28 else 28 * ((n - 28) // 2) + 16 * (n % 2)
        w = S_WD if n < 28 else S_WO
        slot = n % RW
        a.e(f"s_add_u32 m0, s{SD_LDS}, {slot*2048}", f"s_add_u32 s{S_T0}, s{SD_W}, {row*896}")
        a.e(f"buffer_load_dwordx4 v{D_VW}, {sr(w,4)}, s{S_T0} offen lds"); vm.issue()
        a.e(f"s_add_u32 m0, s{SD_LDS}, {slot*2048+1024}", f"s_add_u32 s{S_T0}, s{S_T0}, {8*896}")
        a.e(f"buffer_load_dwordx4 v{D_VW}, {sr(w,4)}, s{S_T0} offen lds"); wt[n] = vm.issue()
        if pace[0]: a.e(f"s_waitcnt vmcnt({O.d_pace})")
    def bload(n):
        if n == 28:
            a.e(f"s_mul_i32 s{SD_B0}, s{SD_RT}, {2*HO_TB}", f"s_mul_i32 s{S_T0}, s{S_W}, {8*1024}", f"s_add_u32 s{SD_B0}, s{SD_B0}, s{S_T0}",
                f"s_add_u32 s{SD_B0}, s{SD_B0}, {WS_HO + 112*1024}", f"s_add_u32 s{SD_B1}, s{SD_B0}, {HO_TB}")
        elif n == 32:
            a.e(f"s_add_u32 s{SD_B0}, s{SD_B0}, 4096", f"s_add_u32 s{SD_B1}, s{SD_B1}, 4096")
        elif n % 4 == 0:
            a.e(f"s_bfe_u32 s{SD_B0}, s{SD_CP}, {(4 << 16) | n:#x}", f"s_lshl_b32 s{SD_B0}, s{SD_B0}, 12", f"s_add_u32 s{SD_B0}, s{SD_B0}, s{SD_BB}",
                f"s_add_u32 s{SD_B1}, s{SD_B0}, {HO_TB}")
        slot = n % RB
        a.e(f"buffer_load_dwordx4 {vr(DB+8*slot,4)}, v{V_SH}, {sr(S_WS,4)}, s{SD_B0} offen offset:{(n%4)*1024} {SC1}"); vm.issue()
        a.e(f"buffer_load_dwordx4 {vr(DB+8*slot+4,4)}, v{V_SH}, {sr(S_WS,4)}, s{SD_B1} offen offset:{(n%4)*1024} {SC1}"); bt[n] = vm.issue()
        if pace[0]: a.e(f"s_waitcnt vmcnt({O.d_pace})")
    lt = {}
    def areads(n):
        vm.wait(a, wt[n])
        slot = n % RW
        for nb in range(2):
            for u in range(2):
                a.e(f"ds_read_b64_tr_b16 {vr(DA+8*(n%2)+4*nb+2*u,2)}, v{D_TR+nb} offset:{slot*2048+u*1024}"); lt[(n, nb)] = lg.issue()
    keep_pace = pace[0]; pace[0] = False
    for n in range(O.d_first):
        wload(n)
    pace[0] = keep_pace
    vm.wait(a, ts)
    publish(a, f"s{S_LFL}"); vm.issue()
    for n in range(O.d_first, RW):
        wload(n)
    stamp(a, 8)
    poll_spin(a, [D_PH], V_PD)
    stamp(a, 9)
    a.e(f"buffer_load_dwordx2 {vr(V_PD,2)}, v{D_PO}, {sr(S_WS,4)}, s{S_T0} offen {SC1}"); vm.issue()
    if O.h_touch:
        a.e(f"v_lshrrev_b32 v{TT+3}, 4, v{L}", f"v_mul_u32_u24 v{TT+3}, 7168, v{TT+3}", f"v_bfe_u32 v{TT+4}, v{L}, 3, 1",
            f"v_mul_u32_u24 v{TT+4}, {HO_TB}, v{TT+4}", f"v_add_u32 v{TT+3}, v{TT+3}, v{TT+4}", f"v_and_b32 v{TT+4}, 7, v{L}",
            f"v_lshl_add_u32 v{TT+3}, v{TT+4}, 7, v{TT+3}", f"s_mul_i32 s{S_T0}, s{S_W}, 28", f"s_add_u32 s{S_T0}, s{S_T0}, s{SD_CT}",
            f"s_lshl_b32 s{S_T0}, s{S_T0}, 10", f"s_mul_i32 s{S_T1}, s{SD_RT}, {2*HO_TB}", f"s_add_u32 s{S_T0}, s{S_T0}, s{S_T1}",
            f"s_add_u32 s{S_T0}, s{S_T0}, {WS_HO}", f"buffer_load_dword v{TT+5}, v{TT+3}, {sr(S_WS,4)}, s{S_T0} offen {SC1}"); vm.issue()
    a.e(f"v_and_b32 v{TT+1}, 31, v{L}", f"v_lshlrev_b32 v{TT+2}, 2, v{TT+1}", f"s_lshl_b32 s{S_T0}, s{SD_RT}, 8", f"s_add_u32 s{S_T0}, s{S_T0}, {WS_G}")
    a.e(f"buffer_load_dword v{D_G}, v{TT+2}, {sr(S_WS,4)}, s{S_T0} offen {SC1}"); vm.issue()
    a.e(f"buffer_load_dword v{D_G+1}, v{TT+2}, {sr(S_WS,4)}, s{S_T0} offen offset:128 {SC1}"); vm.issue()
    for n in range(RB):
        bload(n)
    if O.wo_touch:
        a.e(f"s_and_b32 s4, s{SD_RT}, 3", "s_mul_i32 s4, s4, 28", f"s_mul_i32 s5, s{S_W}, 112", "s_add_u32 s4, s4, s5", f"v_min_u32 v{TT+3}, 27, v{L}",
            f"v_add_u32 v{TT+3}, s4, v{TT+3}", f"v_mul_u32_u24 v{TT+3}, 896, v{TT+3}", f"s_lshl_b32 s4, s{SD_CT}, 7",
            f"buffer_load_dword v{TT+4}, v{TT+3}, {sr(S_WO,4)}, s4 offen"); vm.issue()
    if O.poison:
        poll_spin(a, [D_PO], V_PD)
    if O.poison or O.wo2:
        NK = 28
    def gowait():
        pace[0] = False
        if O.delay_d:
            top, dn = uid("dg"), uid("dg")
            a.e(f"v_mov_b32 v{TT+3}, s{S_CNT}", f"s_mov_b32 s{S_SPIN}, 0x40000")
            a.label(top)
            a.e(f"ds_read_b32 v{TT+4}, v{TT+3} offset:4", "s_waitcnt lgkmcnt(0)", f"v_readfirstlane_b32 s{S_T0}, v{TT+4}", f"s_cmp_lg_u32 s{S_T0}, 0",
                f"s_cbranch_scc1 {dn}", f"s_sleep {O.dsleep}", f"s_sub_u32 s{S_SPIN}, s{S_SPIN}, 1", f"s_cmp_lg_u32 s{S_SPIN}, 0", f"s_cbranch_scc1 {top}")
            a.label(dn)
            if O.prio_d: a.e(f"s_setprio {O.prio_d}")
            stamp(a, 15)
    DONE, RDY, SO = SD_CP, SD_WB, 4
    OBH = [DB + 96, DB + 112, DB, DB + 16]
    AW = DB + 32
    def oload(i):
        for s_ in range(2):
            for tb in range(2):
                a.e(f"buffer_load_dwordx4 {vr(OBH[i]+8*s_+4*tb,4)}, v{V_SH}, {sr(S_WS,4)}, s{SO + 2*(i//2) + tb} offen offset:{((2*i+s_)%4)*1024} {SC1}"); vm.issue()
    def ofirst():
        a.e(f"s_mul_i32 s{SO}, s{SD_RT}, {2*HO_TB}", f"s_mul_i32 s{S_T0}, s{S_W}, {8*1024}", f"s_add_u32 s{SO}, s{SO}, s{S_T0}",
            f"s_add_u32 s{SO}, s{SO}, {WS_HO + 112*1024}", f"s_add_u32 s{SO+1}, s{SO}, {HO_TB}",
            f"s_add_u32 s{SO+2}, s{SO}, 4096", f"s_add_u32 s{SO+3}, s{SO+1}, 4096")
        for i in range(4): oload(i)
    if O.d_pre == 0: gowait()
    areads(0)
    for n in range(NK):
        if n == O.d_pre and n > 0:
            gowait()
        if n == 28:
            stamp(a, 10)
            poll_spin(a, [D_PO], V_PD, sleep=O.o_sleep)
            stamp(a, 11)
            for k in range(28, NK):
                bload(k)
            a.e(f"v_sub_f32 v{D_G}, 1.0, v{D_G}", f"v_sub_f32 v{D_G+1}, 1.0, v{D_G+1}")
            for nb in range(2):
                for tb in range(2):
                    for i in range(16):
                        r = DACC + 32 * nb + 16 * tb + i
                        a.e(f"v_mul_f32 v{r}, v{r}, v{D_G+tb}")
        if O.bars == 4 and n % 4 == 0 and n < 28: stamp(a, 16 + n // 4)
        if n + 1 < NK:
            areads(n + 1)
        vm.wait(a, bt[n])
        slot = n % RB
        parts = []
        if O.d_il and n >= 1:
            sub = Asm(); keep = a.lines; a.lines = sub.lines
            if n - 1 + RW < 36: wload(n - 1 + RW)
            if n - 1 + RB < 28: bload(n - 1 + RB)
            a.lines = keep
            cur = []
            for l in sub.lines:
                cur.append(l)
                if "buffer_load" in l: parts.append(cur); cur = []
            if cur: parts[-1].extend(cur)
        for nb in range(2):
            lg.wait(a, lt[(n, nb)])
            for tb in range(2):
                acc = DACC + 32 * nb + 16 * tb
                a.e(f"{MFMA} {vr(acc,16)}, {vr(DA+8*(n%2)+4*nb,4)}, {vr(DB+8*slot+4*tb,4)}, {'0' if n == 0 else vr(acc,16)}")
                if parts: a.lines.extend(parts.pop(0))
        if not O.d_il:
            if n + RW < 36:
                wload(n + RW)
            if n + RB < 28:
                bload(n + RB)
        if O.poison and n == O.o_early: ofirst()
        if O.wo2 and n == O.o_pre:
            a.e(f"s_mov_b32 s{S_T0}, {WS_F}", f"buffer_load_dwordx2 {vr(V_PD,2)}, v{D_PO}, {sr(S_WS,4)}, s{S_T0} offen {SC1}"); vm.issue()
        if O.wo2 and n == O.o_poll:
            a.e(f"s_mov_b32 s{S_T0}, {WS_F}", f"buffer_load_dwordx2 {vr(V_PD,2)}, v{D_PO}, {sr(S_WS,4)}, s{S_T0} offen {SC1}"); optk = vm.issue()
        if O.wo2 and n == O.o_chk:
            sk = uid("oe")
            vm.wait(a, optk)
            a.e(f"s_mov_b32 s{DONE}, 0")
            poll_check(a, V_PD, sk)
            n0 = vm.n; ofirst(); vm.n = n0
            a.e(f"s_mov_b32 s{DONE}, 1")
            a.label(sk)
    if O.wo2:
        stamp(a, 10)
        lw = uid("ow")
        a.e(f"v_sub_f32 v{D_G}, 1.0, v{D_G}", f"v_sub_f32 v{D_G+1}, 1.0, v{D_G+1}")
        if O.o_poll < 28:
            a.e(f"s_cmp_eq_u32 s{DONE}, 0", f"s_cbranch_scc1 L_olate", "s_waitcnt vmcnt(16)")
            a.label("L_oback")
        else:
            def oloads():
                a.e(f"s_mul_i32 s{SO}, s{SD_RT}, {2*HO_TB}", f"s_mul_i32 s{S_T0}, s{S_W}, {8*1024}", f"s_add_u32 s{SO}, s{SO}, s{S_T0}",
                    f"s_add_u32 s{SO}, s{SO}, {WS_HO + 112*1024}", f"s_add_u32 s{SO+1}, s{SO}, {HO_TB}",
                    f"s_add_u32 s{SO+2}, s{SO}, 4096", f"s_add_u32 s{SO+3}, s{SO+1}, 4096")
                for tb in range(2):
                    for k in range(8):
                        a.e(f"buffer_load_dwordx4 {vr(OBH[k//2]+8*(k%2)+4*tb,4)}, v{V_SH}, {sr(S_WS,4)}, s{SO + 2*(k//4) + tb} offen offset:{(k%4)*1024} {SC1}")
            if O.o_pre < 28:
                a.e("s_waitcnt vmcnt(0)", f"s_mov_b32 s{DONE}, 0")
                poll_check(a, V_PD, "L_onot")
                oloads()
                a.e(f"s_mov_b32 s{DONE}, 1")
                a.label("L_onot")
            else:
                vm.wait(a, wt[35])
        for n in range(28, 36):
            for nb in range(2):
                for u in range(2):
                    a.e(f"ds_read_b64_tr_b16 {vr(AW+8*(n-28)+4*nb+2*u,2)}, v{D_TR+nb} offset:{(n%RW)*2048+u*1024}")
        for nb in range(2):
            for tb in range(2):
                for i in range(16):
                    r = DACC + 32 * nb + 16 * tb + i
                    a.e(f"v_mul_f32 v{r}, v{r}, v{D_G+tb}")
        a.e(f"v_lshrrev_b32 v{TT}, 5, v{L}", f"v_mul_u32_u24 v{TT+2}, 272, v{TT+1}", f"v_lshl_add_u32 v{TT+2}, v{TT}, 4, v{TT+2}",
            f"v_add_u32 v{TT+2}, s{SD_LDS}, v{TT+2}")
        if O.o_poll >= 28:
            if O.o_pre < 28: a.e(f"s_cmp_lg_u32 s{DONE}, 0", "s_cbranch_scc1 L_ogot")
            poll_spin(a, [D_PO], V_PD, sleep=O.o_sleep)
            oloads()
            if O.o_pre < 28: a.label("L_ogot")
            stamp(a, 11)
            a.e("s_waitcnt lgkmcnt(0)")
        else:
            a.e("s_waitcnt vmcnt(0) lgkmcnt(0)")
            stamp(a, 11)
        def wr(q, g):
            nb, tb = q % 2, q // 2
            a.e(f"ds_write_b128 v{TT+2}, {vr(DACC+32*nb+16*tb+4*g,4)} offset:{tb*32*272 + nb*128 + g*32}")
        for q in range(4):
            nb, tb = q % 2, q // 2
            acc = DACC + 32 * nb + 16 * tb
            for k in range(8):
                if O.o_poll >= 28 and nb == 0: a.e(f"s_waitcnt vmcnt({15 - 8 * tb - k})")
                a.e(f"{MFMA} {vr(acc,16)}, {vr(AW+8*k+4*nb,4)}, {vr(OBH[k//2]+8*(k%2)+4*tb,4)}, {vr(acc,16)}")
                if q and k >= 4:
                    if k == 4: a.e("s_nop 7")
                    wr(q - 1, k - 4)
                if O.red8 and q == 3 and k == 1: a.e("s_waitcnt lgkmcnt(0)", "s_barrier")
        for g in range(4): wr(3, g)
    if O.poison:
        a.e(f"v_sub_f32 v{D_G}, 1.0, v{D_G}", f"v_sub_f32 v{D_G+1}, 1.0, v{D_G+1}")
        vm.wait(a, wt[35])
        for n in range(28, 36):
            for nb in range(2):
                for u in range(2):
                    a.e(f"ds_read_b64_tr_b16 {vr(AW+8*(n-28)+4*nb+2*u,2)}, v{D_TR+nb} offset:{(n%RW)*2048+u*1024}")
        for nb in range(2):
            for tb in range(2):
                for i in range(16):
                    r = DACC + 32 * nb + 16 * tb + i
                    a.e(f"v_mul_f32 v{r}, v{r}, v{D_G+tb}")
        a.e("s_waitcnt lgkmcnt(0)")
        a.e(f"s_mov_b32 s{DONE}, 0", f"s_mov_b32 s{S_SPIN}, 0x10000")
        a.label("L_oround")
        a.e(f"s_mov_b32 s{RDY}, 0")
        for i in range(4):
            sk, bad = uid("oc"), uid("oc")
            a.e(f"s_bitcmp1_b32 s{DONE}, {i}", f"s_cbranch_scc1 {sk}")
            if i == 0: pass
            a.e(f"s_waitcnt vmcnt(0)" if i == 0 or True else "")
            b = OBH[i]
            a.e(f"v_max3_u32 v{TT}, v{b}, v{b+1}, v{b+2}", f"v_max3_u32 v{TT+4}, v{b+3}, v{b+4}, v{b+5}")
            for k in range(6, 14, 4):
                a.e(f"v_max3_u32 v{TT}, v{TT}, v{b+k}, v{b+k+1}", f"v_max3_u32 v{TT+4}, v{TT+4}, v{b+k+2}, v{b+k+3}")
            a.e(f"v_max3_u32 v{TT}, v{TT}, v{b+14}, v{b+15}", f"v_max_u32 v{TT}, v{TT}, v{TT+4}", f"v_cmp_eq_u32 vcc, -1, v{TT}", f"s_cbranch_vccnz {sk}",
                f"s_bitset1_b32 s{RDY}, {i}")
            a.label(sk)
        a.e(f"s_or_b32 s{DONE}, s{DONE}, s{RDY}")
        for i in range(4):
            sk = uid("or")
            a.e(f"s_bitcmp1_b32 s{DONE}, {i}", f"s_cbranch_scc1 {sk}")
            oload(i)
            a.label(sk)
        for i in range(4):
            sk = uid("om")
            a.e(f"s_bitcmp0_b32 s{RDY}, {i}", f"s_cbranch_scc1 {sk}")
            for s_ in range(2):
                for nb in range(2):
                    for tb in range(2):
                        acc = DACC + 32 * nb + 16 * tb
                        a.e(f"{MFMA} {vr(acc,16)}, {vr(AW+8*(2*i+s_)+4*nb,4)}, {vr(OBH[i]+8*s_+4*tb,4)}, {vr(acc,16)}")
            a.label(sk)
        a.e(f"s_cmp_eq_u32 s{DONE}, 15", "s_cbranch_scc1 L_odone", f"s_sub_u32 s{S_SPIN}, s{S_SPIN}, 1", f"s_cmp_lg_u32 s{S_SPIN}, 0", "s_cbranch_scc1 L_oround")
        a.label("L_odone")
        a.e("s_nop 7", "s_nop 7")
    stamp(a, 12)
    if not O.wo2:
        a.e(f"v_lshrrev_b32 v{TT}, 5, v{L}", f"v_mul_u32_u24 v{TT+2}, 272, v{TT+1}", f"v_lshl_add_u32 v{TT+2}, v{TT}, 4, v{TT+2}",
            f"v_add_u32 v{TT+2}, s{SD_LDS}, v{TT+2}")
        for nb in range(2):
            for tb in range(2):
                for g in range(4):
                    a.e(f"ds_write_b128 v{TT+2}, {vr(DACC+32*nb+16*tb+4*g,4)} offset:{tb*32*272 + nb*128 + g*32}")
    red_addr(a, TT, SD_RT, SD_CT)
    a.e("s_waitcnt lgkmcnt(0)", "s_barrier")
    red_pass(a, TT, [1] if O.red8 else [0, 1])
    if O.stamp: a.e(f"s_add_u32 s{S_W}, s{S_W}, 4")
    stamp_end(a)
    a.e("s_endpgm")
    if O.wo2 and O.o_poll < 28:
        a.label("L_olate")
        poll_spin(a, [D_PO], V_PD, sleep=O.o_sleep)
        ofirst()
        a.e("s_branch L_oback")
    a.label(fin)
    a.e("s_waitcnt vmcnt(0)")
    publish(a, f"s{S_LFL}")
    stamp_end(a)
    a.e("s_endpgm")

def gen(a):
    K = NAME + "_kernel"
    a.label(K)
    a.e("s_cmp_ge_u32 s2, 256", "s_cbranch_scc1 L_exit")
    stamp_start(a)
    prologue(a)
    N = S_N
    a.e(f"s_cmp_eq_u32 s{S_J}, 12", "s_cbranch_scc1 L_B", f"s_cmp_eq_u32 s{S_J}, 14", "s_cbranch_scc1 L_C",
        f"s_cmp_gt_u32 s{S_J}, 12", "s_cbranch_scc1 L_D")
    def paramsA(a, gis):
        nf = 0
        for gi, k in enumerate(O.order_A):
            if gi in gis:
                if k == "QK": a.e(f"s_mov_b32 s{N}, s{S_J}")
                else: a.e(f"s_lshl_b32 s{N}, s{S_J}, 1", f"s_add_u32 s{N}, s{N}, {nf}")
                group_params(a, gi, k, N)
            if k == "F": nf += 1
    ab_program(a, O.order_A, paramsA)
    a.label("L_tail")
    a.e("s_waitcnt lgkmcnt(0)", "s_barrier")
    stamp(a, 7)
    a.e(f"s_cmp_ge_u32 s{S_W}, 4", "s_cbranch_scc1 L_dphase")
    attention(a)
    a.label("L_dphase")
    a.e("s_nop 7", "s_nop 7")
    dphase(a)
    for lab, kinds in (("C", ["V", "V", "S", "F"]), ("D", ["V", "V", "S", "F"])):
        a.label(f"L_{lab}")
        def params(a, gis, kinds=kinds):
            for gi in gis:
                k = kinds[gi]
                if k == "V": a.e(f"s_lshl_b32 s{N}, s{S_J}, 1", f"s_sub_u32 s{N}, s{N}, {11 - gi}")
                if k == "F": a.e(f"s_add_u32 s{N}, s{S_J}, 12")
                group_params(a, gi, k, N)
        ab_program(a, kinds, params, solo="G" if lab == "C" else "H")
        a.e("s_branch L_tail")
    a.label("L_B")
    kb, nb = ["QK", "QK", "F"], [12, 13, 24]
    def paramsB(a, gis):
        for gi in gis:
            a.e(f"s_mov_b32 s{N}, {nb[gi]}"); group_params(a, gi, kb[gi], N)
    ab_program(a, kb, paramsB)
    a.e("s_branch L_tail")
    a.label("L_exit")
    a.e("s_endpgm")
    a.label("L_code_end")

def main(out):
    head = open("cdna_kernels/" + NAME + ".s.ref").read().split("; Override launch")[0]
    K = NAME + "_kernel"
    txt = head + "; @launch grid=(256,1,1) block=(512,1,1) lds=163840\n"
    txt += '.amdgcn_target "amdgcn-amd-amdhsa--gfx950"\n.text\n'
    a = Asm()
    gen(a)
    lines = fix_hazards(a.lines)
    for l_ in ("L_c_loop", "L_fb1", "L_fb2"): check_loop(lines, l_)
    txt += f".globl {K}\n.p2align 8\n.type {K},@function\n" + "\n".join(lines) + "\n"
    txt += f""".section .rodata,"a"
.p2align 6
.amdhsa_kernel {K}
  .amdhsa_next_free_vgpr 256
  .amdhsa_next_free_sgpr 102
  .amdhsa_accum_offset 256
  .amdhsa_group_segment_fixed_size 0
  .amdhsa_kernarg_size 88
  .amdhsa_user_sgpr_count 2
  .amdhsa_user_sgpr_kernarg_segment_ptr 1
  .amdhsa_system_sgpr_workgroup_id_x 1
.end_amdhsa_kernel
"""
    open(out, "w").write(txt)

if __name__ == "__main__":
    args = sys.argv[1:]
    out = "cdna_kernels/" + NAME + ".s"
    for x in args:
        if "=" in x:
            k, v = x.split("=", 1)
            setattr(O, k, eval(v))
        else:
            out = x
    set_rw()
    main(out)
```

```python
import sys, math, struct, re
from asmlib import *

NAME = "gated_mix__mha_block__glu_gated_reglu__prompt"
WS_QK, WS_HO, WS_G, WS_F, WS_END, WS_V, WS_ALL = 0, 0x540000, 0xE40000, 0xE50000, 0xE60000, 0x1000000, 0x1200000
F_T, F_H, F_O = 0, 0x6000, 0xE000
HO_TB = 144 * 1024
V_TB = 57 * 512
V_PAD = 4 * 448 * 16
OCT = 32768
QSCALE = (28 ** -0.5) * math.log2(math.e)
TAGX = 0x5bd1e995
def f2u(x): return struct.unpack("<I", struct.pack("<f", x))[0]

class Opt:
    stamp = False
    bars = False
    diag = None
    pubd_s = 2
    pubd = 3
    prio_attn = 1
    pref_code = 1
    pref_w = True
    mall_at = 5
    pack = 6
    spread = 1
    poll_back = 2
    pref_f = 0
    la1 = 3
    xlast = False
    dsplit = 4
    dq_first = True
    dq_off = 1
    wfirst = False
    fbig = False
    minla = 2
    pd = 4
    ftouch = -1
    la0 = 2
    hsplit = True
    la = 36
    rot = True
    rotc = True
    rotd = True
    early = True
    hook_back = 5
    delay_d = True
    rw = 13
    rb = 16
    d_pre = 4
    d_go = (1, 5)
    d_first = 0
    o_sleep = 0
    ldm = 1
    lalign = 3
    f16 = False
    il16 = True
    plite = False
    fo_sh = 3
    dmaf = ''
    dmad = ''
    pk = False
    wt_early = True
    prio_d = 0
    prio_ld = 0
    peel = False
    poison = False
    wo_touch = False
    wo2 = True
    map48 = 2
    outf = ''
    d_il = True
    o_poll = 99
    o_pre = 99
    o_chk = 99
    o_early = 24
    red8 = False
    force_fb = False
    d_pace = 3
    noload = False
    dsleep = 4
    nod = False
    h_touch = False
    order_A = ["QK", "F", "F"]
O = Opt()

S_X, S_WQ, S_WG, S_WU, S_WS, S_WD, S_WO, S_OUT, S_GW, S_KV, S_DBG = 8, 12, 16, 20, 24, 28, 32, 36, 40, 44, 48
S_RB, S_J, S_W, S_W1K, S_T0, S_T1, S_XOFF, S_TB, S_CH, S_W2K = 56, 57, 58, 59, 60, 61, 62, 63, 64, 65
S_COL, S_OB, S_SC, S_N = 66, 70, 74, 7
S_TAG, S_FL, S_SPIN, S_LOB, S_LFL = 76, 78, 52, 53, 54
SC_HEAD, SC_QT, SC_K, SC_V0, SC_V1, SC_IT, SC_O, SC_EX = 82, 83, 84, 86, 87, 88, 89, 92
SD_RT, SD_CT, SD_B0, SD_B1, SD_W, SD_LDS, SD_CP, SD_WB, SD_BB = 82, 83, 84, 85, 86, 87, 88, 89, 90
MFMA = "v_mfma_f32_32x32x16_bf16"
MFMA16 = "v_mfma_f32_16x16x32_bf16"
V_TF1, D_TRN = 208, 248
SC1 = "sc1"

X, ACC, FR, T = 16, 128, 160, 192
V_LANE, V_WQ, V_WF, V_X0, V_X1, V_TR, V_SQ, V_SV, V_SH, V_T0, V_GS = 1, 2, 3, 4, 5, 6, 9, 10, 11, 12, 13
V_ZERO, V_T56 = 14, 15
V_XR, V_XC = 208, 212
V_LWF, V_LW, V_TRX, FB0 = 201, 202, 204, 216
S_W4K = 55
S_CP = 75
ROT7 = 0x0065432106543210
V_PD, V_NONCE, V_FD, V_DUM = 216, 200, 222, 203
CQ, CKV, CO, CS, CP = 16, 48, 128, 192, 224
C_VK, C_VV, C_PA, C_PB, C_MA, C_MB, C_G, C_T = 240, 241, 242, 243, 244, 245, 246, 112
C_ONE, C_VK1, C_VV1, C_QA = 247, 248, 249, 250
DACC, DB, DA = 16, 80, 224
D_VW, D_TR, D_PH, D_PO, D_G, D_T = 240, 242, 244, 245, 246, 208
PD, NUNIT, NFR = 4, 20, 8
def set_pd():
    global PD
    PD = O.pd
L_DREG = 22528
L_XCH = 4 * L_DREG
def set_rw():
    global L_DREG, L_XCH
    L_DREG = max(17408, O.rw * 2048); L_XCH = 4 * L_DREG
    assert L_XCH + 49152 <= 19 * 8192
S_EARLY, SC_BIG, S_OST, S_OFL = 91, 87, 94, 95
S_CNT = 3
EXEC_V = 0x0FFFFFFF

def srd(a, dst, src, nbytes):
    a.e(f"s_mov_b32 s{dst}, s{src}", f"s_and_b32 s{dst+1}, s{src+1}, 0xffff",
        f"s_mov_b32 s{dst+2}, {nbytes:#x}", f"s_mov_b32 s{dst+3}, 0x20000")

_uid = [0]
def uid(p):
    _uid[0] += 1
    return f"L_{p}{_uid[0]}"

def stamp_start(a):
    if O.stamp:
        a.e("s_memrealtime s[98:99]", "s_memtime s[100:101]")
def stamp(a, idx):
    if O.stamp == 1:
        a.e("s_memtime s[6:7]", "s_memrealtime s[4:5]", "s_waitcnt lgkmcnt(0)", "s_sub_u32 s6, s6, s100", f"v_writelane_b32 v255, s6, {idx}",
            f"v_writelane_b32 v255, s4, {32+idx}")
def stamp_end(a):
    if O.diag:
        idx, wg, wv = O.diag
        sk, top = uid("dg"), uid("dg")
        a.e("s_waitcnt vmcnt(0)", "s_mov_b64 exec, -1", f"s_cmp_lg_u32 s{S_W}, {wv}", f"s_cbranch_scc1 {sk}")
        if wg >= 0: a.e(f"s_cmp_lg_u32 s2, {wg}", f"s_cbranch_scc1 {sk}")
        if idx == -1: a.e("s_mov_b32 s6, s98")
        elif idx == -2: a.e("s_memrealtime s[6:7]", "s_waitcnt lgkmcnt(0)")
        elif idx == -3: a.e(f"s_add_u32 s6, s98, 500", f"s_mov_b32 s98, s{S_TAG}")
        else: a.e(f"v_readlane_b32 s6, v255, {32+idx}", "s_nop 3")
        a.e("s_sub_u32 s6, s6, s98", "s_mul_i32 s6, s6, 10", "s_add_u32 s6, s6, 6000")
        a.label(top)
        a.e("s_memrealtime s[4:5]", "s_waitcnt lgkmcnt(0)", "s_sub_u32 s4, s4, s98", "s_cmp_lt_u32 s4, s6", f"s_cbranch_scc1 {top}")
        a.label(sk)
        return
    if O.stamp:
        a.e("s_waitcnt vmcnt(0)", "s_memrealtime s[4:5]", "s_memtime s[6:7]", "s_waitcnt lgkmcnt(0)", "s_sub_u32 s6, s6, s100")
        a.e("v_writelane_b32 v255, s6, 29", "v_writelane_b32 v255, s98, 30", "v_writelane_b32 v255, s4, 31")
        a.e("s_mov_b64 exec, -1", "s_lshl_b32 s4, s2, 11", f"s_lshl_b32 s5, s{S_W}, 8", "s_add_u32 s4, s4, s5", f"s_add_u32 s4, s4, {WS_END}")
        a.e(f"v_lshlrev_b32 v254, 2, v{V_LANE}")
        a.e(f"buffer_store_dword v255, v254, {sr(S_WS,4)}, s4 offen")

class Cnt:
    def __init__(self, name, mx): self.n = 0; self.name = name; self.mx = mx
    def issue(self): self.n += 1; return self.n
    def wait(self, a, ticket):
        k = self.n - ticket
        a.e(f"s_waitcnt {self.name}({min(k, self.mx)})")
def Vm(): return Cnt("vmcnt", 63)
def Lg(): return Cnt("lgkmcnt", 15)

def publish(a, soff):
    a.e("s_mov_b64 exec, 1", f"buffer_store_dwordx2 {vr(V_FD,2)}, v{V_ZERO}, {sr(S_WS,4)}, {soff} offen {SC1}", "s_mov_b64 exec, -1")

def poll_check(a, data, fail_label):
    a.e(f"v_cmp_ne_u32 vcc, s{S_TAG}, v{data}", f"v_cmp_ne_u32 s[4:5], s{S_TAG+1}, v{data+1}", "s_or_b64 vcc, vcc, s[4:5]",
        f"s_cbranch_vccnz {fail_label}")

def poll_spin(a, addrs, data, sleep=2):
    top, done = uid("spin"), uid("spind")
    a.e(f"s_mov_b32 s{S_SPIN}, 0x8000")
    a.label(top)
    a.e(f"s_mov_b32 s{S_T0}, {WS_F}")
    for i, ad in enumerate(addrs):
        a.e(f"buffer_load_dwordx2 {vr(data+2*i,2)}, v{ad}, {sr(S_WS,4)}, s{S_T0} offen {SC1}")
    a.e("s_waitcnt vmcnt(0)", "s_mov_b64 s[6:7], 0")
    for i in range(len(addrs)):
        a.e(f"v_cmp_ne_u32 vcc, s{S_TAG}, v{data+2*i}", f"v_cmp_ne_u32 s[4:5], s{S_TAG+1}, v{data+2*i+1}",
            "s_or_b64 s[6:7], s[6:7], vcc", "s_or_b64 s[6:7], s[6:7], s[4:5]")
    a.e("s_cmp_eq_u64 s[6:7], 0", f"s_cbranch_scc1 {done}", f"s_sleep {sleep}" if sleep else "s_nop 0", f"s_sub_u32 s{S_SPIN}, s{S_SPIN}, 1",
        f"s_cmp_lg_u32 s{S_SPIN}, 0", f"s_cbranch_scc1 {top}")
    a.label(done)

def code_pref(a):
    a.e("s_getpc_b64 s[4:5]")
    a.label("L_pc")
    a.e(f"v_cmp_le_u32 vcc, 448, v0", "s_cbranch_vccz L_nocp")
    a.e(f"s_lshr_b32 s6, s2, 3", "s_lshl_b32 s6, s6, 11", f"v_and_b32 v{T}, 15, v0", f"v_lshlrev_b32 v{T}, 7, v{T}", f"v_add_u32 v{T}, s6, v{T}",
        f"v_min_u32 v{T}, L_code_end-L_pc-4, v{T}", f"global_load_dword v{V_DUM}, v{T}, s[4:5]")
    a.label("L_nocp")

def prologue(a):
    L = V_LANE
    A, B, C = T + 1, T + 2, T + 3
    a.e("s_load_dwordx4 s[76:79], s[0:1], 0")
    a.e(f"v_lshrrev_b32 v{V_T0}, 6, v0", f"v_and_b32 v{V_LANE}, 63, v0", f"v_readfirstlane_b32 s{S_W}, v{V_T0}")
    if O.map48 == 1:
        a.e(f"s_bfe_u32 s{S_RB}, s2, 0x20000", f"s_lshl_b32 s{S_RB}, s{S_RB}, 2", f"s_bfe_u32 s{S_T0}, s2, 0x20003", f"s_add_u32 s{S_RB}, s{S_RB}, s{S_T0}",
            f"s_bfe_u32 s{S_J}, s2, 0x10002", f"s_lshr_b32 s{S_T0}, s2, 5", f"s_lshl_b32 s{S_T0}, s{S_T0}, 1", f"s_add_u32 s{S_J}, s{S_J}, s{S_T0}")
    elif O.map48 == 2:
        a.e(f"s_and_b32 s{S_RB}, s2, 1", f"s_lshl_b32 s{S_RB}, s{S_RB}, 3", f"s_bfe_u32 s{S_T0}, s2, 0x30003", f"s_add_u32 s{S_RB}, s{S_RB}, s{S_T0}",
            f"s_bfe_u32 s{S_J}, s2, 0x20001", f"s_lshr_b32 s{S_T0}, s2, 6", f"s_lshl_b32 s{S_T0}, s{S_T0}, 2", f"s_add_u32 s{S_J}, s{S_J}, s{S_T0}")
    else:
        a.e(f"s_and_b32 s{S_RB}, s2, 1", f"s_lshl_b32 s{S_RB}, s{S_RB}, 3", f"s_bfe_u32 s{S_T0}, s2, 0x30003", f"s_add_u32 s{S_RB}, s{S_RB}, s{S_T0}",
            f"s_bfe_u32 s{S_J}, s2, 0x20001", f"s_lshl_b32 s{S_J}, s{S_J}, 2", f"s_lshr_b32 s{S_T0}, s2, 6", f"s_add_u32 s{S_J}, s{S_J}, s{S_T0}")
    a.e(f"s_lshl_b32 s{S_N}, s{S_J}, 1", f"s_sub_u32 s{S_N}, s{S_N}, 11", f"s_cmp_le_u32 s{S_J}, 12", f"s_cselect_b32 s{S_N}, s{S_J}, s{S_N}",
        f"s_lshl_b32 s{S_COL}, s{S_N}, 7", f"s_mul_i32 s{S_XOFF}, s{S_RB}, {128*896}")
    if O.rot == 2 or O.rot == 4 or O.rot == 3:
        tab = {2: 0x0404 << 0, 4: 0x5420, 3: 0x5050}[O.rot]
        tab = {2: 0x4040, 4: 0x5420, 3: 0x3030}[O.rot]
        a.e(f"s_add_u32 s{S_T0}, s{S_J}, s{S_RB}", f"s_and_b32 s{S_T0}, s{S_T0}, 3", f"s_lshl_b32 s{S_T0}, s{S_T0}, 2",
            f"s_lshr_b32 s{S_T0}, {tab:#x}, s{S_T0}", f"s_and_b32 s{S_T0}, s{S_T0}, 15", f"s_lshl_b32 s{S_T0}, s{S_T0}, 2",
            f"s_mov_b32 s4, {ROT7 & 0xffffffff:#x}", f"s_mov_b32 s5, {ROT7 >> 32:#x}", f"s_lshr_b64 s[4:5], s[4:5], s{S_T0}", f"s_mov_b32 s{S_CP}, s4")
    elif O.rot:
        if O.map48 == 1:
            a.e(f"s_and_b32 s{S_T0}, s{S_RB}, 3", f"s_lshl_b32 s{S_T0}, s{S_T0}, 1", f"s_lshr_b32 s{S_T1}, s{S_J}, 1")
        elif O.map48 == 2:
            a.e(f"s_lshr_b32 s{S_T0}, s{S_J}, 2", f"s_lshl_b32 s{S_T0}, s{S_T0}, 1", f"s_and_b32 s{S_T1}, s{S_RB}, 7")
        else:
            a.e(f"s_and_b32 s{S_T0}, s{S_J}, 3", f"s_lshl_b32 s{S_T0}, s{S_T0}, 1", f"s_and_b32 s{S_T1}, s{S_RB}, 7")
        a.e(f"s_add_u32 s{S_T0}, s{S_T0}, s{S_T1}",
            f"s_cmp_ge_u32 s{S_T0}, 7", f"s_cselect_b32 s{S_T1}, 7, 0", f"s_sub_u32 s{S_T0}, s{S_T0}, s{S_T1}", f"s_lshl_b32 s{S_T0}, s{S_T0}, 2",
            f"s_mov_b32 s4, {ROT7 & 0xffffffff:#x}", f"s_mov_b32 s5, {ROT7 >> 32:#x}", f"s_lshr_b64 s[4:5], s[4:5], s{S_T0}", f"s_mov_b32 s{S_CP}, s4")
    else:
        a.e(f"s_mov_b32 s{S_CP}, 0x6543210")
    a.e(f"s_mov_b32 s{S_X+2}, {2048*896:#x}", f"s_mov_b32 s{S_X+3}, 0x20000", f"s_mov_b32 s{S_WQ+2}, {448*2688:#x}", f"s_mov_b32 s{S_WQ+3}, 0x20000")
    a.e(f"v_lshrrev_b32 v{A}, 3, v{L}", f"v_and_b32 v{B}, 7, v{L}")
    a.e(f"s_lshl_b32 s{S_W2K}, s{S_W}, 11", f"s_lshl_b32 s{S_W4K}, s{S_W}, 12")
    a.e(f"v_bfe_u32 v{C}, v{L}, 4, 1", f"v_lshlrev_b32 v{C}, 2, v{C}", f"v_xor_b32 v{T+4}, v{C}, v{B}",
        f"s_lshl_b32 s{S_T0}, s{S_W}, 4", f"v_add_u32 v{T+5}, s{S_T0}, v{A}", f"v_mul_u32_u24 v{V_LW}, 2688, v{T+5}",
        f"v_lshl_add_u32 v{V_LW}, v{T+4}, 4, v{V_LW}")
    a.e(f"v_lshrrev_b32 v{C}, 4, v{L}", f"v_xor_b32 v{C}, v{C}, v{B}", f"v_add_u32 v{V_T0}, s{S_T0}, v{T+5}", f"v_mul_u32_u24 v{V_T0}, 896, v{V_T0}",
        f"v_lshl_add_u32 v{V_X0}, v{C}, 4, v{V_T0}", f"v_xor_b32 v{C}, 4, v{C}", f"v_lshl_add_u32 v{V_X1}, v{C}, 4, v{V_T0}",
        f"v_add_u32 v{V_X1}, {8*896}, v{V_X1}")
    a.e("s_waitcnt lgkmcnt(0)")
    a.e(f"s_mov_b32 s{S_X}, s76", f"s_and_b32 s{S_X+1}, s77, 0xffff", f"s_mov_b32 s{S_WQ}, s78", f"s_and_b32 s{S_WQ+1}, s79, 0xffff")
    stamp(a, 13)
    a.e("s_load_dwordx8 s[80:87], s[0:1], 16", "s_load_dwordx8 s[88:95], s[0:1], 48", "s_load_dwordx2 s[96:97], s[0:1], 80")
    a.e(f"s_cmp_ge_u32 s{S_W}, 4", "s_cbranch_scc1 L_nold")
    for c in range(O.la0):
        dma_g0(a, c, 14 + c)
    a.label("L_nold")
    stamp(a, 0)
    if O.pref_code: code_pref(a)
    a.e("s_waitcnt lgkmcnt(0)")
    srd(a, S_WG, 84, 448 * 3584); srd(a, S_WU, 86, 448 * 3584)
    a.e(f"s_lshl_b32 s{S_W1K}, s{S_W}, 10", f"s_lshr_b32 s{S_CH}, s{S_W}, 2",
        f"s_and_b32 s{S_T0}, s{S_W}, 3", f"s_lshl_b32 s{S_TB}, s{S_RB}, 2", f"s_add_u32 s{S_TB}, s{S_TB}, s{S_T0}")
    if O.f16:
        a.e(f"s_lshl_b32 s{S_T0}, s{S_W}, 1", f"s_and_b32 s{S_T0}, s{S_T0}, 2", f"v_xor_b32 v{T+6}, s{S_T0}, v{T+4}",
            f"s_and_b32 s{S_T0}, s{S_W}, 2", f"v_xor_b32 v{T+7}, s{S_T0}, v{T+4}")
    a.e(f"v_mul_u32_u24 v{V_LWF}, 3584, v{T+5}", f"v_lshl_add_u32 v{V_LWF}, v{T+6 if O.f16 else T+4}, 4, v{V_LWF}")
    a.e(f"s_lshl_b32 s{S_T0}, s{S_W}, 3", f"v_add_u32 v{V_T0}, s{S_T0}, v{A}")
    a.e(f"v_mul_u32_u24 v{V_WQ}, 2688, v{V_T0}", f"v_lshl_add_u32 v{V_WQ}, v{T+4}, 4, v{V_WQ}")
    a.e(f"v_mul_u32_u24 v{V_WF}, 3584, v{V_T0}", f"v_lshl_add_u32 v{V_WF}, v{T+7 if O.f16 else T+4}, 4, v{V_WF}")
    a.e(f"v_lshlrev_b32 v{V_SH}, 4, v{L}")
    prologue2(a)
    a.e(f"v_xor_b32 v{V_TRX}, 64, v{V_TR+1}", f"v_xor_b32 v{V_TRX+1}, 64, v{V_TR+2}")
    if O.pref_f == 1: pref_weights(a, None, [(4, S_WG), (5, S_WU)], True)
    stamp(a, 1)

def koff(dst, p, mul, base):
    return [f"s_bfe_u32 s{dst}, s{S_CP}, {(4 << 16) | (4 * p):#x}", f"s_mul_i32 s{dst}, s{dst}, {mul}", f"s_add_u32 s{dst}, s{dst}, s{base}"]

def dma_g0(a, c, unit, parts="xw"):
    xs, ws = [], []
    if "x" in parts:
        xs = [(f"s_add_u32 m0, s{S_W4K}, {c*16384}", *koff(S_T0, c, 128, S_XOFF), f"buffer_load_dwordx4 v{V_X0}, {sr(S_X,4)}, s{S_T0} offen lds"),
              (f"s_add_u32 m0, s{S_W4K}, {c*16384+1024}", "s_nop 0", f"buffer_load_dwordx4 v{V_X1}, {sr(S_X,4)}, s{S_T0} offen lds"),
              (f"s_add_u32 m0, s{S_W4K}, {c*16384+2048}", f"s_add_u32 s{S_T0}, s{S_T0}, {16*896}", f"buffer_load_dwordx4 v{V_X0}, {sr(S_X,4)}, s{S_T0} offen lds"),
              (f"s_add_u32 m0, s{S_W4K}, {c*16384+3072}", "s_nop 0", f"buffer_load_dwordx4 v{V_X1}, {sr(S_X,4)}, s{S_T0} offen lds")]
    if "w" in parts:
        ws = [(f"s_add_u32 m0, s{S_W2K}, {unit*8192}", *koff(S_T1, c, 64 * 2688, S_COL), f"buffer_load_dwordx4 v{V_LW}, {sr(S_WQ,4)}, s{S_T1} offen lds"),
              (f"s_add_u32 m0, s{S_W2K}, {unit*8192+1024}", f"s_add_u32 s{S_T1}, s{S_T1}, {8*2688}", f"buffer_load_dwordx4 v{V_LW}, {sr(S_WQ,4)}, s{S_T1} offen lds")]
    for g_ in ws + xs: a.e(*g_)
    return len(xs) + len(ws)

class Vm2:
    def __init__(self): self.n = [0, 0]; self.lo_only = False
    def issue(self):
        self.n[0] += 1
        if self.lo_only: return (self.n[0], None)
        self.n[1] += 1; return tuple(self.n)
    def issue_lo(self, k): self.n[0] += k; return (self.n[0], 0)
    def wait(self, a, tickets):
        t = [max(x[i] for x in tickets) for i in range(2)]
        k = [min(63, self.n[i] - t[i]) if t[i] else 63 for i in range(2)]
        if k[0] == k[1]:
            a.e(f"s_waitcnt vmcnt({k[0]})")
        elif k[1] == 63:
            nx = uid("vw")
            a.e(f"s_cmp_ge_u32 s{S_W}, 4", f"s_cbranch_scc1 {nx}", f"s_waitcnt vmcnt({k[0]})")
            a.label(nx)
        elif abs(k[0] - k[1]) <= 2:
            a.e(f"s_waitcnt vmcnt({min(k)})")
        elif k[1] < k[0]:
            nx = uid("vw")
            a.e(f"s_waitcnt vmcnt({k[0]})", f"s_cmp_lt_u32 s{S_W}, 4", f"s_cbranch_scc1 {nx}", f"s_waitcnt vmcnt({k[1]})")
            a.label(nx)
        else:
            nx = uid("vw")
            a.e(f"s_waitcnt vmcnt({k[1]})", f"s_cmp_ge_u32 s{S_W}, 4", f"s_cbranch_scc1 {nx}", f"s_waitcnt vmcnt({k[0]})")
            a.label(nx)

def prologue2(a):
    L = V_LANE
    A, B, C = T + 1, T + 2, T + 3
    srd(a, S_WO, 80, 448 * 896); srd(a, S_WD, 88, 1792 * 896); srd(a, S_GW, 90, 896); srd(a, S_OUT, 92, 2048 * 896)
    srd(a, S_DBG, 94, 256); srd(a, S_WS, 96, WS_ALL); srd(a, S_KV, 96, WS_ALL)
    a.e(f"v_mov_b32 v{V_ZERO}, 0")
    for r_ in range(240, 251): a.e(f"v_mov_b32 v{r_}, 0")
    skip = uid("nn")
    a.e(f"s_or_b32 s{S_T0}, s2, s{S_W}", f"s_cmp_lg_u32 s{S_T0}, 0", f"s_cbranch_scc1 {skip}")
    a.e("s_memrealtime s[4:5]", "s_waitcnt lgkmcnt(0)", "s_or_b32 s4, s4, 1", f"v_mov_b32 v{V_NONCE}, s4",
        "s_mov_b64 exec, 1", f"buffer_store_dword v{V_NONCE}, v{V_ZERO}, {sr(S_DBG,4)}, 0 offen {SC1}", "s_mov_b64 exec, -1")
    a.label(skip)
    a.e(f"v_lshrrev_b32 v{A}, 5, v{L}", f"v_bfe_u32 v{B}, v{L}, 2, 2", f"v_lshl_add_u32 v{C}, v{A}, 3, v{B}",
        f"v_lshlrev_b32 v{V_TR}, 7, v{C}", f"v_lshrrev_b32 v{B}, 1, v{B}", f"v_xor_b32 v{B}, s{S_CH}, v{B}",
        f"v_lshl_add_u32 v{V_TR}, v{B}, 6, v{V_TR}", f"v_bfe_u32 v{B}, v{L}, 4, 1", f"v_lshl_add_u32 v{V_TR}, v{B}, 5, v{V_TR}",
        f"v_and_b32 v{B}, 3, v{L}", f"v_lshl_add_u32 v{V_TR}, v{B}, 3, v{V_TR}",
        f"v_add_u32 v{V_TR+1}, 0x10000, v{V_TR}", f"v_add_u32 v{V_TR+2}, 0x20000, v{V_TR}")
    a.e(f"v_and_b32 v{B}, 31, v{L}", f"s_and_b32 s{S_T0}, s{S_W}, 3", f"s_lshl_b32 s{S_T0}, s{S_T0}, 5",
        f"v_add_u32 v{C}, s{S_T0}, v{B}", f"v_lshlrev_b32 v{V_T0}, 7, v{C}", f"v_bfe_u32 v{V_GS}, v{L}, 1, 3",
        f"v_xor_b32 v{V_GS}, v{V_GS}, v{A}")
    for e in range(4):
        a.e(f"v_xor_b32 v{V_XR+e}, {2*e}, v{V_GS}", f"v_lshl_add_u32 v{V_XR+e}, v{V_XR+e}, 4, v{V_T0}")
    a.e(f"s_lshl_b32 s{S_T0}, s{S_TB}, 5", f"v_add_u32 v{C}, s{S_T0}, v{B}", f"v_lshlrev_b32 v{V_SQ}, 4, v{C}",
        f"v_lshl_add_u32 v{V_SQ}, v{A}, 15, v{V_SQ}", f"v_lshlrev_b32 v{V_GS}, 2, v{C}")
    a.e(f"v_mul_u32_u24 v{V_SV}, 7168, v{A}", f"v_lshl_add_u32 v{V_SV}, v{B}, 4, v{V_SV}")

def role_c(a):
    L = V_LANE
    A, B, C = 204, 205, 206
    a.e(f"v_lshrrev_b32 v{A}, 5, v{L}", f"v_and_b32 v{B}, 31, v{L}")
    a.e(f"s_and_b32 s{S_T0}, s2, 7", f"s_lshr_b32 s{S_T1}, s2, 3")
    a.e(f"s_and_b32 s{SC_HEAD}, s{S_T1}, 1", f"s_lshl_b32 s{SC_HEAD}, s{SC_HEAD}, 3", f"s_add_u32 s{SC_HEAD}, s{SC_HEAD}, s{S_T0}",
        f"s_lshr_b32 s{SC_QT}, s{S_T1}, 1", f"s_mul_i32 s{SC_O}, s{SC_HEAD}, 7", f"s_lshr_b32 s{SC_O}, s{SC_O}, 1")
    a.e(f"v_lshlrev_b32 v{C_VK}, 4, v{B}", f"v_lshl_add_u32 v{C_VK}, v{A}, 15, v{C_VK}")
    a.e(f"s_mul_i32 s{S_T0}, s{SC_HEAD}, 448", f"v_add_u32 v{C_VV}, s{S_T0}, v{V_SV}")
    a.e(f"s_mov_b32 s{SC_BIG}, {f2u(2.0**30):#x}")
    a.e(f"s_add_u32 s4, s{SC_O}, 56", "s_lshl_b32 s4, s4, 15", f"s_lshl_b32 s5, s{S_W}, 13", "s_add_u32 s4, s4, s5",
        f"s_mov_b32 s{SC_K+1}, s4", f"v_add_u32 v{C_VK1}, s4, v{C_VK}", f"v_mov_b32 v{C_QA}, v{C_VK}", f"v_mov_b32 v{C_VK}, v{C_VK1}",
        f"v_add_u32 v{C_VK1}, {2*OCT}, v{C_VK1}")
    a.e(f"v_add_u32 v{C_VV1}, 14336, v{C_VV}", f"v_lshlrev_b32 v{C}, 4, v{B}", f"v_add_u32 v{C}, {V_PAD - 28*16}, v{C}", f"v_cmp_gt_u32 vcc, 28, v{B}",
        f"v_cndmask_b32 v{C_VV}, v{C}, v{C_VV}, vcc", f"v_cndmask_b32 v{C_VV1}, v{C}, v{C_VV1}, vcc")
    a.e(f"s_mul_i32 s4, s{S_W}, {16*V_TB}", f"s_add_u32 s4, s4, {WS_V}", f"v_add_u32 v{C_VV}, s4, v{C_VV}", f"v_add_u32 v{C_VV1}, s4, v{C_VV1}")
    if O.rotc:
        a.e(f"s_lshl_b32 s{SC_K}, s{SC_QT}, 9")
    else:
        a.e(f"s_mov_b32 s{SC_K}, 0")
    a.e(f"s_mul_i32 s{SC_V0}, s{SC_K}, 57")
    a.e(f"s_and_b32 s{S_T0}, s{SC_HEAD}, 1", f"v_cmp_le_u32 vcc, s{S_T0}, v{A}", f"v_cndmask_b32 v{C_MA}, 0, -1, vcc",
        f"v_cmp_ge_u32 vcc, s{S_T0}, v{A}", f"v_cndmask_b32 v{C_MB}, 0, -1, vcc")
    a.e(f"s_add_u32 s4, s{SC_O}, 56", "s_lshr_b32 s4, s4, 2", f"s_add_u32 s5, s{SC_O}, 59", "s_lshr_b32 s5, s5, 2",
        f"s_mul_i32 s6, s{SC_HEAD}, 28", "s_add_u32 s7, s6, 27", "s_lshr_b32 s6, s6, 5", "s_lshr_b32 s7, s7, 5",
        "s_add_u32 s6, s6, 28", "s_add_u32 s7, s7, 28")
    a.e(f"v_mov_b32 v{C_PA}, s7", f"v_mov_b32 v{C}, s6", f"v_cmp_gt_u32 vcc, 48, v{L}", f"v_cndmask_b32 v{C_PA}, v{C_PA}, v{C}, vcc",
        f"v_mov_b32 v{C}, s5", f"v_cmp_gt_u32 vcc, 32, v{L}", f"v_cndmask_b32 v{C_PA}, v{C_PA}, v{C}, vcc",
        f"v_mov_b32 v{C}, s4", f"v_cmp_gt_u32 vcc, 16, v{L}", f"v_cndmask_b32 v{C_PA}, v{C_PA}, v{C}, vcc")
    a.e(f"v_and_b32 v{C}, 15, v{L}", f"v_lshl_add_u32 v{C_PA}, v{C_PA}, 6, v{C}", f"s_lshl_b32 s4, s{S_W}, 4",
        f"v_add_u32 v{C_PA}, s4, v{C_PA}", f"v_lshlrev_b32 v{C_PA}, 3, v{C_PA}")
    a.e(f"s_lshr_b32 s4, s{SC_O}, 2", f"s_add_u32 s5, s{SC_O}, 3", "s_lshr_b32 s5, s5, 2", f"s_lshl_b32 s6, s{SC_QT}, 2")
    a.e(f"v_and_b32 v{C}, 3, v{L}", f"v_add_u32 v{C}, s6, v{C}")
    a.e(f"v_mov_b32 v{C_PB}, s5", f"v_mov_b32 v{V_T0}, s4", f"v_cmp_gt_u32 vcc, 4, v{L}", f"v_cndmask_b32 v{C_PB}, v{C_PB}, v{V_T0}, vcc",
        f"v_lshl_add_u32 v{C_PB}, v{C_PB}, 6, v{C}", f"v_lshlrev_b32 v{C_PB}, 3, v{C_PB}")
    a.e(f"v_lshlrev_b32 v{C}, 9, v{C}", f"v_add_u32 v{C}, {F_H + 56*8}, v{C}", f"v_cmp_gt_u32 vcc, 8, v{L}",
        f"v_cndmask_b32 v{C_PB}, v{C}, v{C_PB}, vcc")

def role_d(a):
    L = V_LANE
    A, B, C = 204, 205, 206
    done = uid("rdone")
    a.e(f"s_cmp_lt_u32 s{S_W}, 4", f"s_cbranch_scc1 {done}")
    a.e(f"v_lshrrev_b32 v{A}, 5, v{L}", f"v_and_b32 v{B}, 31, v{L}")
    a.e(f"s_and_b32 s{S_T0}, s2, 7", f"s_lshr_b32 s{S_T1}, s2, 3")
    a.e(f"s_mul_i32 s{SD_RT}, s{S_T1}, 37", f"s_lshr_b32 s{SD_RT}, s{SD_RT}, 8",
        f"s_mul_i32 s{SD_CT}, s{SD_RT}, 7", f"s_sub_u32 s{SD_CT}, s{S_T1}, s{SD_CT}", f"s_lshl_b32 s{S_T0}, s{S_T0}, 2",
        f"s_add_u32 s{SD_RT}, s{SD_RT}, s{S_T0}", f"s_and_b32 s{S_T0}, s{S_W}, 3", f"s_mul_i32 s{SD_LDS}, s{S_T0}, {L_DREG}")
    a.e(f"v_lshrrev_b32 v{C}, 3, v{L}", f"v_mul_u32_u24 v{D_VW}, 896, v{C}", f"v_and_b32 v{C}, 7, v{L}", f"v_bfe_u32 v{V_T0}, v{L}, 4, 1",
        f"v_lshlrev_b32 v{V_T0}, 2, v{V_T0}", f"v_xor_b32 v{C}, v{C}, v{V_T0}", f"v_lshl_add_u32 v{D_VW}, v{C}, 4, v{D_VW}")
    a.e(f"v_bfe_u32 v{C}, v{L}, 2, 2", f"v_lshl_add_u32 v{V_T0}, v{A}, 2, v{C}", f"v_lshlrev_b32 v{D_TR}, 7, v{V_T0}",
        f"v_lshrrev_b32 v{C}, 1, v{C}", f"v_lshl_add_u32 v{D_TR}, v{C}, 6, v{D_TR}", f"v_bfe_u32 v{C}, v{L}, 4, 1",
        f"v_lshl_add_u32 v{D_TR}, v{C}, 5, v{D_TR}", f"v_and_b32 v{C}, 3, v{L}", f"v_lshl_add_u32 v{D_TR}, v{C}, 3, v{D_TR}",
        f"v_xor_b32 v{D_TR+1}, 64, v{D_TR}", f"v_add_u32 v{D_TR}, s{SD_LDS}, v{D_TR}", f"v_add_u32 v{D_TR+1}, s{SD_LDS}, v{D_TR+1}")
    if O.f16: a.e(f"v_lshl_add_u32 v{D_TRN}, v{A}, 9, v{D_TR}", f"v_lshl_add_u32 v{D_TRN+1}, v{A}, 9, v{D_TR+1}")
    if O.rotd:
        a.e(f"s_and_b32 s4, s{SD_RT}, 3", "s_lshl_b32 s4, s4, 1", f"s_add_u32 s6, s4, s{SD_CT}", "s_cmp_ge_u32 s6, 7", "s_cselect_b32 s4, 7, 0",
            "s_sub_u32 s6, s6, s4", "s_lshl_b32 s6, s6, 2", f"s_mov_b32 s4, {ROT7 & 0xffffffff:#x}", f"s_mov_b32 s5, {ROT7 >> 32:#x}",
            "s_lshr_b64 s[4:5], s[4:5], s6", f"s_mov_b32 s{SD_CP}, s4")
    else:
        a.e(f"s_mov_b32 s{SD_CP}, 0x6543210")
    a.e(f"s_mul_i32 s4, s{S_T0}, 14", f"v_add_u32 v{C}, s4, v{B}", f"v_cmp_gt_u32 vcc, 14, v{B}", f"v_cndmask_b32 v{C}, 56, v{C}, vcc",
        f"s_lshl_b32 s5, s{SD_RT}, 1", f"v_add_u32 v{V_T0}, s5, v{A}", f"v_lshl_add_u32 v{D_PH}, v{V_T0}, 6, v{C}",
        f"v_lshlrev_b32 v{D_PH}, 3, v{D_PH}", f"v_add_u32 v{D_PH}, {F_H}, v{D_PH}")
    a.e(f"s_lshl_b32 s4, s{S_T0}, 2", f"v_and_b32 v{C}, 3, v{L}", f"v_add_u32 v{C}, s4, v{C}", f"v_lshl_add_u32 v{D_PO}, v{V_T0}, 4, v{C}",
        f"v_lshlrev_b32 v{D_PO}, {O.fo_sh}, v{D_PO}", f"v_add_u32 v{D_PO}, {F_O if O.fo_sh == 3 else 0x11D0000 - WS_F}, v{D_PO}")
    a.label(done)

def pref_weights(a, vm, which, force=False):
    if not O.pref_w and not force: return
    end = uid("pw")
    a.e(f"s_lshl_b32 s{S_T0}, s2, 13", f"v_lshlrev_b32 v{T}, 7, v{V_LANE}")
    for w, s in which:
        nx = uid("pwn")
        a.e(f"s_cmp_lg_u32 s{S_W}, {w}", f"s_cbranch_scc1 {nx}", f"buffer_load_dword v{V_DUM}, v{T}, {sr(s,4)}, s{S_T0} offen")
        a.label(nx)

def group_params(a, gi, kind, nreg):
    col, ob, fl = S_COL + gi, S_OB + gi, S_FL + gi
    if kind == "G":
        a.e(f"s_lshl_b32 s{fl}, s{S_TB}, 9", f"s_add_u32 s{fl}, s{fl}, {WS_F + F_H + 56*8}")
        return
    if kind == "S":
        a.e(f"s_mov_b32 s{col}, {14*128}", f"s_sub_u32 s{S_T1}, s{S_J}, 13", f"s_lshr_b32 s{S_T1}, s{S_T1}, 1", f"s_add_u32 s{S_T1}, s{S_T1}, 28")
        a.e(f"s_lshl_b32 s{ob}, s{S_T1}, 9", f"s_mul_i32 s{S_T0}, s{S_TB}, {V_TB}", f"s_add_u32 s{ob}, s{ob}, s{S_T0}",
            f"s_add_u32 s{ob}, s{ob}, {WS_V - 14*1024}")
        a.e(f"s_lshl_b32 s{fl}, s{S_T1}, 6", f"s_add_u32 s{fl}, s{fl}, s{S_TB}", f"s_lshl_b32 s{fl}, s{fl}, 3", f"s_add_u32 s{fl}, s{fl}, {WS_F + F_T}")
        a.e(f"s_lshl_b32 s{S_T0}, s{S_TB}, 9", f"s_add_u32 s{S_T0}, s{S_T0}, {WS_F + F_H + 56*8}", f"s_cmp_ge_u32 s{S_W}, 4",
            f"s_cselect_b32 s{fl}, s{S_T0}, s{fl}")
        return
    if False:
        pass
    else:
        a.e(f"s_lshl_b32 s{col}, s{nreg}, 7", f"s_lshl_b32 s{S_T1}, s{nreg}, 1")
        if gi: a.e(f"s_add_u32 s{S_T1}, s{S_T1}, s{S_CH}")
    if kind == "QK":
        a.e(f"s_lshl_b32 s{ob}, s{S_T1}, 17")
        a.e(f"s_cmp_lt_u32 s{nreg}, 7", f"s_cselect_b32 s{S_SC}, {f2u(QSCALE):#x}, 1.0")
    elif kind == "V":
        a.e(f"s_lshl_b32 s{ob}, s{S_T1}, 9", f"s_mul_i32 s{S_T0}, s{S_TB}, {V_TB}", f"s_add_u32 s{ob}, s{ob}, s{S_T0}",
            f"s_add_u32 s{ob}, s{ob}, {WS_V - 14*1024}")
    elif kind == "F":
        a.e(f"s_lshl_b32 s{ob}, s{S_T1}, 11", f"s_mul_i32 s{S_T0}, s{S_TB}, {HO_TB}", f"s_add_u32 s{ob}, s{ob}, s{S_T0}",
            f"s_add_u32 s{ob}, s{ob}, {WS_HO}")
    if kind == "F":
        a.e(f"s_lshl_b32 s{fl}, s{S_TB}, 6", f"s_add_u32 s{fl}, s{fl}, s{S_T1}", f"s_lshl_b32 s{fl}, s{fl}, 3", f"s_add_u32 s{fl}, s{fl}, {WS_F + F_H}")
    else:
        a.e(f"s_lshl_b32 s{fl}, s{S_T1}, 6", f"s_add_u32 s{fl}, s{fl}, s{S_TB}", f"s_lshl_b32 s{fl}, s{fl}, 3", f"s_add_u32 s{fl}, s{fl}, {WS_F + F_T}")

def vadd(a, d, x, y, n):
    if O.pk:
        for i in range(0, n, 2): a.e(f"v_pk_add_f32 {vr(d+i,2)}, {vr(x+i,2)}, {vr(y+i,2)}")
    else:
        for i in range(n): a.e(f"v_add_f32 v{d+i}, v{x+i}, v{y+i}")
def vscale(a, d, x, sc, n):
    if O.pk:
        hi = sc % 2
        for i in range(0, n, 2): a.e(f"v_pk_mul_f32 {vr(d+i,2)}, {vr(x+i,2)}, {vr(sc-hi,2)} op_sel:[0,{hi}] op_sel_hi:[1,{hi}]")
    else:
        for i in range(n): a.e(f"v_mul_f32 v{d+i}, v{x+i}, v{sc}")

def epi_F(a, vm, ob, T=T):
    A0, A1 = ACC, ACC + 16
    for i in range(16):
        a.e(f"v_max_f32 v{A0+i}, 0, v{A0+i}")
    if O.pk:
        for i in range(0, 16, 2): a.e(f"v_pk_mul_f32 {vr(A0+i,2)}, {vr(A0+i,2)}, {vr(A1+i,2)}")
    else:
        for i in range(16):
            a.e(f"v_mul_f32 v{A0+i}, v{A0+i}, v{A1+i}")
    for k in range(8):
        a.e(f"v_cvt_pk_bf16_f32 v{T+k}, v{A0+2*k}, v{A0+2*k+1}")
        if k == (5 if O.f16 else 3):
            if O.f16: a.e(f"v_permlane16_swap_b32 v{T}, v{T+2}", f"v_permlane16_swap_b32 v{T+1}, v{T+3}")
            a.e(f"buffer_store_dwordx4 {vr(T,4)}, v{V_SH}, {sr(S_WS,4)}, s{ob} offen {SC1}"); vm.issue()
    if O.f16: a.e(f"v_permlane16_swap_b32 v{T+4}, v{T+6}", f"v_permlane16_swap_b32 v{T+5}, v{T+7}")
    a.e(f"buffer_store_dwordx4 {vr(T+4,4)}, v{V_SH}, {sr(S_WS,4)}, s{ob} offen offset:1024 {SC1}")
    return vm.issue()

def epilogue(a, vm, gi, kind, A0=ACC):
    ob = S_OB + gi
    if kind == "QK":
        if O.pk:
            a.e(f"v_mov_b32 v{V_T0}, s{S_SC}")
            vscale(a, A0, A0, V_T0, 16)
        else:
            for i in range(16):
                a.e(f"v_mul_f32 v{A0+i}, s{S_SC}, v{A0+i}")
        for k in range(8):
            a.e(f"v_cvt_pk_bf16_f32 v{T+k}, v{A0+2*k}, v{A0+2*k+1}")
        for p in range(2):
            a.e(f"v_permlane32_swap_b32 v{T+4*p}, v{T+4*p+2}", f"v_permlane32_swap_b32 v{T+4*p+1}, v{T+4*p+3}")
            a.e(f"s_add_u32 s{S_T0}, s{ob}, {2*p*OCT}")
            a.e(f"buffer_store_dwordx4 {vr(T+4*p,4)}, v{V_SQ}, {sr(S_WS,4)}, s{S_T0} offen {SC1}"); t = vm.issue()
        return t
    if kind in ("V", "H"):
        for k in range(8):
            a.e(f"v_cvt_pk_bf16_f32 v{T+k}, v{A0+2*k}, v{A0+2*k+1}")
            if k == 3:
                a.e(f"buffer_store_dwordx4 {vr(T,4)}, v{V_SV}, {sr(S_WS,4)}, s{ob} offen {SC1}"); vm.issue()
        a.e(f"s_add_u32 s{S_T0}, s{ob}, 14336")
        a.e(f"buffer_store_dwordx4 {vr(T+4,4)}, v{V_SV}, {sr(S_WS,4)}, s{S_T0} offen {SC1}"); vm.issue()
        a.e(f"v_cmp_gt_u32 vcc, 4, v{V_LANE}", f"v_mov_b32 v{V_T0}, 0x3f803f80", f"v_lshlrev_b32 v207, 2, v{V_LANE}", f"s_mul_i32 s{S_T0}, s{S_TB}, {V_TB}",
            f"v_cndmask_b32 v{V_T0}, 0, v{V_T0}, vcc", f"s_add_u32 s{S_T0}, s{S_T0}, {WS_V + V_PAD}", "s_mov_b64 exec, 0xffff",
            f"buffer_store_dword v{V_T0}, v207, {sr(S_WS,4)}, s{S_T0} offen {SC1}", "s_mov_b64 exec, -1")
        return vm.issue()
    if kind == "F":
        return epi_F(a, vm, ob)
    a.e(f"v_mul_f32 v{T}, {f2u(-math.log2(math.e)):#x}, v{A0}", f"v_exp_f32 v{T}, v{T}", f"v_add_f32 v{T}, 1.0, v{T}",
        f"v_rcp_f32 v{T}, v{T}", f"s_mov_b32 s{S_T0}, {WS_G}", "s_nop 0")
    a.e(f"buffer_store_dword v{T}, v{V_GS}, {sr(S_WS,4)}, s{S_T0} offen {SC1}")
    return vm.issue()

def get_tag(a):
    ok, top = uid("tagok"), uid("tagspin")
    a.e(f"v_readfirstlane_b32 s{S_TAG}, v{V_NONCE}", f"s_cmp_lg_u32 s{S_TAG}, 0", f"s_cbranch_scc1 {ok}", f"s_mov_b32 s{S_SPIN}, 0x8000")
    a.label(top)
    a.e(f"buffer_load_dword v{V_NONCE}, v{V_ZERO}, {sr(S_DBG,4)}, 0 offen {SC1}", "s_waitcnt vmcnt(0)",
        f"v_readfirstlane_b32 s{S_TAG}, v{V_NONCE}", f"s_cmp_lg_u32 s{S_TAG}, 0", f"s_cbranch_scc1 {ok}", "s_sleep 2",
        f"s_sub_u32 s{S_SPIN}, s{S_SPIN}, 1", f"s_cmp_lg_u32 s{S_SPIN}, 0", f"s_cbranch_scc1 {top}")
    a.label(ok)
    a.e(f"s_xor_b32 s{S_TAG+1}, s{S_TAG}, {TAGX:#x}", f"v_mov_b32 v{V_FD}, s{S_TAG}", f"v_mov_b32 v{V_FD+1}, s{S_TAG+1}")

def ab_program(a, kinds, params, solo=None):
    vm, lg = Vm2(), Lg()
    stages = []
    for gi, kind in enumerate(kinds):
        if gi == 0: continue
        if kind == "F":
            for k0, nk in (O.fbig if O.fbig else [(4 * c, 4) for c in range(7)]):
                stages.append(dict(gi=gi, k0=k0, nk=nk, kind=kind, nu=nk // 2))
        elif kind == "S" and solo == "G":
            stages.append(dict(gi=gi, k0=0, nk=28, kind=kind, nu=1))
        else:
            for k0, nk in ((0, 8), (8, 8), (16, 8), (24, 4)):
                stages.append(dict(gi=gi, k0=k0, nk=nk, kind=kind, nu=nk // 4))
    mf = []
    for si, st in enumerate(stages):
        st["first"] = len(mf)
        for s in range(st["k0"], st["k0"] + st["nk"]):
            for tile in range(2 if st["kind"] == "F" else 1):
                mf.append(dict(si=si, s=s, tile=tile, kind=st["kind"], gi=st["gi"]))
    g0 = [dict(u=14 + c if c < 6 else 14) for c in range(7)]
    for c in range(O.la0):
        g0[c]["t"] = vm.issue_lo(6)
    free = []
    state = dict(next_dma=0, tag=False, nonce=None)
    pend, dq = [], []
    def issue_dma(si, lo):
        st = stages[si]
        gi, kind = st["gi"], st["kind"]
        if si >= len(stages) - 2 and 19 in free[:st["nu"]] and len(free) > st["nu"]:
            free.remove(19); free.append(19)
        st["u"] = [free.pop(0) for _ in range(st["nu"])]
        u = st["u"]
        c = st["k0"] // 4
        if lo:
            if kind == "F":
              for p_ in range(st["nk"] // 4):
                a.e(*koff(S_T0, c + p_, 64 * 3584, S_COL + gi), f"s_add_u32 s{S_T1}, s{S_T0}, {8*3584}")
                for q, w in enumerate((S_WG, S_WU)):
                    a.e(f"s_add_u32 m0, s{S_W2K}, {u[2*p_+q]*8192}", "s_nop 0", f"buffer_load_dwordx4 v{V_LWF}, {sr(w,4)}, s{S_T0} offen lds")
                    a.e(f"s_add_u32 m0, s{S_W2K}, {u[2*p_+q]*8192+1024}", "s_nop 0", f"buffer_load_dwordx4 v{V_LWF}, {sr(w,4)}, s{S_T1} offen lds")
            else:
                for q in range(st["nu"]):
                    a.e(f"s_add_u32 m0, s{S_W2K}, {u[q]*8192}", *koff(S_T0, c + q, 64 * 2688, S_COL + gi), f"buffer_load_dwordx4 v{V_LW}, {sr(S_WQ,4)}, s{S_T0} offen lds")
                    a.e(f"s_add_u32 m0, s{S_W2K}, {u[q]*8192+1024}", f"s_add_u32 s{S_T0}, s{S_T0}, {8*2688}", f"buffer_load_dwordx4 v{V_LW}, {sr(S_WQ,4)}, s{S_T0} offen lds")
            st["t"] = vm.issue_lo(2 * st["nu"])
        elif kind == "F":
            for p_ in range(st["nk"] // 4):
                a.e(f"s_add_u32 m0, s{S_W1K}, {u[2*p_]*8192}", *koff(96, c + p_, 64 * 3584, S_COL + gi))
                a.e(f"buffer_load_dwordx4 v{V_WF}, {sr(S_WG,4)}, s96 offen lds"); vm.issue()
                a.e(f"s_add_u32 m0, s{S_W1K}, {u[2*p_+1]*8192}", "s_nop 0")
                a.e(f"buffer_load_dwordx4 v{V_WF}, {sr(S_WU,4)}, s96 offen lds"); st["t"] = vm.issue()
        else:
            for q in range(st["nk"] // 4 if not (kind == "S" and solo == "G") else 0):
                a.e(f"s_add_u32 m0, s{S_W1K}, {u[q]*8192}", *koff(S_T0, c + q, 64 * 2688, S_COL + gi))
                a.e(f"buffer_load_dwordx4 v{V_WQ}, {sr(S_WQ,4)}, s{S_T0} offen lds"); st["t"] = vm.issue()
            if kind == "S" and solo == "G":
                state["gu"] = st["u"][0]
                a.e(f"s_and_b32 s{S_T0}, s{S_CP}, 15", f"s_lshl_b32 s{S_T0}, s{S_T0}, 7", f"v_add_u32 v{V_T0}, s{S_T0}, v{V_SH}",
                    f"v_subrev_u32 v207, 896, v{V_T0}", f"v_min_u32 v{V_T0}, v{V_T0}, v207")
                a.e(f"s_add_u32 m0, s{S_W1K}, {state['gu']*8192}", "s_nop 0")
                a.e(f"buffer_load_dwordx4 v{V_T0}, {sr(S_GW,4)}, 0 offen lds"); st["t"] = vm.issue()
    def fill(pos, lo=False, si=-9):
        if si >= 0 and stages[si]["kind"] == "S": pos += 8 if solo == "H" else 24
        while state["next_dma"] < len(stages):
            st = stages[state["next_dma"]]
            if len(free) < st["nu"] or (st["first"] - pos > O.la and state["next_dma"] > si + O.minla) or (lo and st["kind"] == "S"):
                break
            issue_dma(state["next_dma"], lo); state["next_dma"] += 1
    def xreads(c):
        for q in range(4):
            a.e(f"v_add_u32 v{V_XC+q}, {c*16384}, v{V_XR+q}")
        return [f"ds_read_b128 {vr(X+16*c+4*q,4)}, v{V_XC+q}" for q in range(4)]
    def xconv(pairs):
        for S2 in pairs:
            for i in range(4): a.e(f"v_permlane16_swap_b32 v{X+8*S2+i}, v{X+8*S2+4+i}")
    cv0 = O.f16 and kinds[1] == "F"
    def g0_mfma(c, i):
        s_, t_ = 4 * c + i // 2, i % 2
        f = (FB0 if c % 2 == 0 else FR) + 4 * i
        acc = ACC + 16 * t_
        cin = "0" if s_ == 0 else vr(acc, 16)
        if kinds[0] == "V":
            return f"{MFMA} {vr(acc,16)}, {vr(X+4*s_,4)}, {vr(f,4)}, {cin}"
        return f"{MFMA} {vr(acc,16)}, {vr(f,4)}, {vr(X+4*s_,4)}, {cin}"
    params(a, range(len(kinds)))
    a.e(f"s_mov_b32 s{S_LOB}, s{S_OB+len(kinds)-1}", f"s_mov_b32 s{S_LFL}, s{S_FL+len(kinds)-1}")
    lc, lj = uid("g0c"), uid("g0j")
    a.e(f"s_cmp_ge_u32 s{S_W}, 4", f"s_cbranch_scc1 {lc}")
    if O.prio_ld: a.e(f"s_setprio {O.prio_ld}")
    for c in range(7):
        a.e(f"s_waitcnt vmcnt({vm.n[0] - g0[c]['t'][0]}) lgkmcnt(4)", "s_barrier")
        if O.bars == 1: stamp(a, 16 + c)
        if c >= 2:
            if c != 2: free.append(g0[c-2]["u"])
            free.extend([2 * (c - 2), 2 * (c - 2) + 1])
        if not O.xlast: a.e(*xreads(c))
        for q in range(7):
            if "t" not in g0[q] and q <= c + O.la1 and (q < 6 or c >= 2):
                g0[q]["t"] = vm.issue_lo(dma_g0(a, q, g0[q]["u"]))
        if "t" in g0[6]: fill(8 * (c - 7), lo=True)
        if O.xlast: a.e(*xreads(c))
    if O.prio_ld: a.e("s_setprio 0")
    a.e(f"s_branch {lj}")
    a.label(lc)
    def ftouch():
        a.e(f"s_and_b32 s{S_T0}, s{S_RB}, 7", f"s_lshl_b32 s{S_T0}, s{S_T0}, 3", f"v_lshrrev_b32 v{T}, 3, v{V_LANE}", f"v_min_u32 v{T}, 6, v{T}",
            f"v_lshlrev_b32 v{T}, 6, v{T}", f"v_and_b32 v{T+1}, 7, v{V_LANE}", f"v_add3_u32 v{T}, v{T}, v{T+1}, s{S_T0}")
        for wv, (sd, stride, gi) in enumerate([(S_WG, 3584, 1), (S_WU, 3584, 1)] if kinds[1] == "F" else [(S_WQ, 2688, 1)]):
            nx = uid("ft")
            a.e(f"s_cmp_lg_u32 s{S_W}, {5+wv}", f"s_cbranch_scc1 {nx}", f"v_mul_u32_u24 v{T}, {stride}, v{T}",
                f"buffer_load_dword v{V_DUM}, v{T}, {sr(sd,4)}, s{S_COL+gi} offen")
            a.label(nx)
    if O.ftouch == -2: ftouch()
    for c in range(7):
        a.e("s_barrier")
        if O.ftouch == c: ftouch()
        if O.bars == 1: stamp(a, 16 + c)
        if O.pref_f >= 2 and c == O.pref_f - 2: pref_weights(a, None, [(4, S_WG), (5, S_WU)], True)
        rd = xreads(c)
        for i in range(8):
            f = (FB0 if c % 2 == 0 else FR) + 4 * i
            for u in range(2):
                off = g0[c]["u"] * 8192 + (16 * (i // 2) + 4 * u) * 128
                base = (V_TR + off // 65536) if i % 2 else (V_TRX + off // 65536 - 1)
                rd.append(f"ds_read_b64_tr_b16 {vr(f+2*u,2)}, v{base} offset:{off % 65536}")
        if c == 0:
            a.e(*rd)
        else:
            new = 0
            for i in range(8):
                a.e(f"s_waitcnt lgkmcnt({min(15, 2 * (7 - i) + new)})", g0_mfma(c - 1, i))
                k = 3 if i < 4 else 2
                a.e(*rd[:k]); rd = rd[k:]; new += k
                if cv0 and c >= 2: a.e(f"v_permlane16_swap_b32 v{X+16*(c-2)+8*(i//4)+i%4}, v{X+16*(c-2)+8*(i//4)+4+i%4}")
            assert not rd
    a.label(lj)
    rel = [[g0[5]["u"], 10, 11], [g0[6]["u"], 12, 13]]
    def bar(si, m):
        st = stages[si]
        due = [p for p in pend if p[0] <= si]
        tk = [st["t"]] + [p[1] for p in due] + ([state["nonce"]] if due and not state["tag"] else [])
        vm.wait(a, tk)
        a.e("s_barrier")
        if O.bars == 1 and si < 6: stamp(a, 23 + si)
        if O.bars == 2 and si < 13: stamp(a, 16 + si)
        free.extend(stages[si - 2]["u"] if si >= 2 else rel[si])
        if O.dsplit and stages[si]["kind"] != "S" and si + 1 < len(stages) and stages[si + 1]["kind"] != "S":
            sub = Asm(); keep = a.lines; a.lines = sub.lines
            n0, d0 = list(vm.n), state["next_dma"]
            fill(m - PD, si=si)
            a.lines = keep
            vm.n = n0
            cur, k = [], 0
            for l in sub.lines:
                cur.append(l)
                if "buffer_load" in l:
                    dq.append([min(m + O.dq_off + k * O.dsplit, stages[si + 1]["first"] - 1), cur, None]); cur = []; k += 1
            idx = len(dq) - k
            for q in range(d0, state["next_dma"]):
                idx += stages[q]["nu"]
                dq[idx - 1][2] = q
        else:
            fill(m - PD, si=si)
        for p in due:
            if not state["tag"]:
                get_tag(a); state["tag"] = True
            if p[2] == 0:
                nx = uid("p0")
                a.e(f"s_cmp_lt_u32 s{S_W}, 4", f"s_cbranch_scc1 {nx}", f"s_add_u32 s{S_T0}, s{S_FL}, 512")
                publish(a, f"s{S_FL}"); publish(a, f"s{S_T0}"); vm.n[1] += 2
                a.label(nx)
            elif kinds[p[2]] == "S":
                nx = uid("p0")
                a.e(f"s_cmp_ge_u32 s{S_W}, 4" if solo == "H" else f"s_cmp_lt_u32 s{S_W}, 4", f"s_cbranch_scc1 {nx}")
                publish(a, f"s{S_FL+p[2]}"); vm.n[solo == "G"] += 1
                a.label(nx)
            else:
                publish(a, f"s{S_FL+p[2]}"); vm.issue()
            pend.remove(p)
        if si == 0:
            a.e(f"buffer_load_dword v{V_NONCE}, v{V_ZERO}, {sr(S_DBG,4)}, 0 offen {SC1}"); state["nonce"] = vm.issue()
        if si == 3:
            role_d(a)
        if si == len(stages) - 1:
            u = [q for q in free if q * 8192 >= L_XCH + 49152][0]
            a.e(f"s_mov_b32 s{S_CNT}, {u*8192 + 4096}", f"v_mov_b32 v204, s{S_CNT}", f"ds_write_b32 v204, v{V_ZERO}", f"ds_write_b32 v204, v{V_ZERO} offset:4"); lg.issue(); lg.issue()
        if si == O.mall_at:
            pref_weights(a, vm, [(0, S_WD), (1, S_WO)])
        if si == len(stages) - O.poll_back:
            a.e(f"s_mov_b32 s{S_T0}, {WS_F}")
            a.e(f"buffer_load_dwordx2 {vr(V_PD,2)}, v{C_PA}, {sr(S_WS,4)}, s{S_T0} offen {SC1}"); vm.issue()
            a.e(f"buffer_load_dwordx2 {vr(V_PD+2,2)}, v{C_PB}, {sr(S_WS,4)}, s{S_T0} offen {SC1}"); state["poll"] = vm.issue()
    blocks = {}
    def flush_dq(m):
        while dq and dq[0][0] <= m:
            _, ls, q = dq.pop(0)
            a.lines.extend(ls); t = vm.issue()
            if q is not None: stages[q]["t"] = t
    def reads(m, hi=False):
        e = mf[m]; st = stages[e["si"]]
        if m == st["first"]:
            if hi:
                labs = [l[:-1] for l in blocks[m] if l.endswith(":")]
                for l in blocks[m]:
                    for q in labs: l = re.sub(rf"\b{q}\b", q + "h", l)
                    a.lines.append(l)
            else:
                n0 = len(a.lines); bar(e["si"], m); blocks[m] = a.lines[n0:]
        if O.dq_first: flush_dq(m)
        f = FR + 4 * (m % NFR)
        if st["kind"] == "S" and hi != (solo == "G"):
            return
        if hi:
            for u in range(2):
                a.e(f"ds_read_b64 {vr(f+2*u,2)}, v{V_XC+3} offset:{32*e['s']+8*u}"); e["t"] = lg.issue()
        else:
            kk = e["s"] - st["k0"]
            if O.f16 and st["kind"] == "F":
                if m == st["first"] and st["k0"] == 0 and not state.get("tf"):
                    state["tf"] = True
                    a.e(f"v_bfe_u32 v{V_T0}, v{V_LANE}, 4, 1", f"v_lshlrev_b32 v{V_T0}, 11, v{V_T0}")
                    for q in range(3): a.e(f"v_add_u32 v{V_TR+q}, v{V_TR+q}, v{V_T0}", f"v_xor_b32 v{V_TF1+q}, 32, v{V_TR+q}")
                idx = m - st["first"]
                for u in range(2):
                    off = st["u"][(idx % 4) // 2] * 8192 + (32 * (idx // 4) + 4 * u) * 128
                    a.e(f"ds_read_b64_tr_b16 {vr(f+2*u,2)}, v{(V_TF1 if idx % 2 else V_TR) + off // 65536} offset:{off % 65536}"); e["t"] = lg.issue()
                flush_dq(m)
                return
            unit = st["u"][2 * (kk // 4) + e["tile"]] if st["kind"] == "F" else st["u"][kk // 4]
            for u in range(2):
                off = unit * 8192 + (16 * (kk % 4) + 4 * u) * 128
                a.e(f"ds_read_b64_tr_b16 {vr(f+2*u,2)}, v{(V_XC if st['kind'] == 'S' else V_TR) + off // 65536} offset:{off % 65536}"); e["t"] = lg.issue()
        flush_dq(m)
    for m in range(PD):
        reads(m)
    nx, ny = uid("e0"), uid("e0")
    a.e(f"s_cmp_ge_u32 s{S_W}, 4", f"s_cbranch_scc1 {ny}")
    role_c(a)
    if cv0:
        a.e(f"s_waitcnt lgkmcnt({2*PD})"); xconv(range(14))
    a.e(f"s_branch {nx}")
    a.label(ny)
    for i in range(8):
        a.e(f"s_waitcnt lgkmcnt({min(15, 2 * (7 - i) + 2 * PD)})", g0_mfma(6, i))
        if cv0: a.e(f"v_permlane16_swap_b32 v{X+80+8*(i//4)+i%4}, v{X+80+8*(i//4)+4+i%4}")
    if cv0: xconv([12, 13])
    dummy = Vm()
    epilogue(a, dummy, 0, kinds[0], ACC)
    a.e(f"s_add_u32 s{S_OB}, s{S_OB}, {131072 if kinds[0] == 'QK' else 512}")
    epilogue(a, dummy, 0, kinds[0], ACC + 16)
    vm.n[1] += dummy.n
    pend.append((O.pubd, (0, vm.n[1]), 0))
    a.label(nx)
    stamp(a, 3)
    def mfma(m, hi=False):
        e = mf[m]
        if e["kind"] == "S" and hi != (solo == "G"): return
        if O.f16 and e["kind"] == "F":
            st = stages[e["si"]]
            if not state.get("xc"):
                state["xc"] = True
                if e["gi"] > 1: xconv(range(14))
            idx = m - st["first"]
            S2 = st["k0"] // 2 + idx // 4
            lg.wait(a, e["t"])
            f = FR + 4 * (m % NFR)
            for tau in range(2):
                acc = ACC + 8 * (idx % 4) + 4 * tau
                a.e(f"{MFMA16} {vr(acc,4)}, {vr(f,4)}, {vr(X+8*S2+4*tau,4)}, {'0' if S2 == 0 else vr(acc,4)}")
            return
        if not e.get("w"): lg.wait(a, e["t"])
        f = FR + 4 * (m % NFR)
        acc = ACC + 16 * e["tile"]
        cin = "0" if e["s"] == 0 else vr(acc, 16)
        xa = vr(X + 4 * e["s"], 4)
        if e["kind"] in ("V", "S") and not hi:
            a.e(f"{MFMA} {vr(acc,16)}, {xa}, {vr(f,4)}, {cin}")
        else:
            a.e(f"{MFMA} {vr(acc,16)}, {vr(f,4)}, {xa}, {cin}")
        if O.wfirst and e["kind"] != "S" and m + 1 < len(mf) and mf[m + 1]["gi"] == e["gi"]:
            lg.wait(a, mf[m + 1]["t"]); mf[m + 1]["w"] = True
    m = 0
    while m < len(mf):
        e = mf[m]
        if e["kind"] == "S":
            m1 = m + 28
            lh, lj2 = uid("sh"), uid("sj")
            if solo == "H":
                a.e(f"s_sub_u32 s{S_T0}, s{S_J}, 13", f"s_lshl_b32 s{S_T0}, s{S_T0}, 5")
                for q in range(3): a.e(f"v_xor_b32 v{V_XC+q}, s{S_T0}, v{V_TR+q}")
            else:
                a.e(f"v_lshrrev_b32 v{V_XC+3}, 5, v{V_LANE}", f"v_lshlrev_b32 v{V_XC+3}, 4, v{V_XC+3}",
                    f"s_add_u32 s{S_T0}, s{S_W1K}, {state['gu']*8192}", f"v_add_u32 v{V_XC+3}, s{S_T0}, v{V_XC+3}")
            a.e(f"s_cmp_ge_u32 s{S_W}, 4", f"s_cbranch_scc1 {lh}")
            lg0 = lg.n
            epi = {}
            for hi in (False, True):
                lg.n = lg0
                if hi: a.label(lh)
                for q in range(m, m + PD): reads(q, hi)
                if not hi:
                    n0 = len(a.lines); state["epi"](); epi = a.lines[n0:]
                else:
                    a.lines.extend(epi)
                for q in range(m, m1):
                    mfma(q, hi)
                    if q + PD < m1: reads(q + PD, hi)
                if not hi: a.e(f"s_branch {lj2}")
            a.label(lj2)
            lg.n = lg0 + 200
            for q in range(m1, m1 + PD): reads(q)
            lj2 = uid("sj")
            d0 = Vm()
            a.e(f"s_cmp_ge_u32 s{S_W}, 4" if solo == "H" else f"s_cmp_lt_u32 s{S_W}, 4", f"s_cbranch_scc1 {lj2}", "s_nop 7")
            epilogue(a, d0, e["gi"], "V" if solo == "H" else "G")
            a.label(lj2)
            vm.n[solo == "G"] += d0.n
            pend.append((mf[m1]["si"] + O.pubd_s, (vm.n[0], 0) if solo == "H" else (0, vm.n[1]), e["gi"]))
            stamp(a, 3 + e["gi"])
            m = m1
            continue
        mfma(m)
        if m + PD < len(mf) and mf[m + PD]["kind"] != "S":
            n0 = len(a.lines)
            reads(m + PD)
            if O.f16 and O.il16 and e["kind"] == "F" and len(a.lines) - n0 == 2:
                a.lines[n0 - 1], a.lines[n0] = a.lines[n0], a.lines[n0 - 1]
        if O.early and m == len(mf) - O.hook_back:
            early_hook(a, vm.n[0] - state["poll"][0])
        if m + 1 < len(mf) and mf[m + 1]["gi"] != e["gi"]:
            def do_epi(e=e, m=m):
                t = epilogue(a, vm, e["gi"], e["kind"])
                pend.append((mf[m + 1]["si"] + O.pubd, t, e["gi"]))
                stamp(a, 3 + e["gi"])
            if mf[m + 1]["kind"] == "S": state["epi"] = do_epi
            else: do_epi()
        m += 1
    assert not pend and state["tag"]
    assert kinds[-1] == "F"

def c_adv(a):
    a.e(f"s_add_u32 s{SC_K}, s{SC_K}, 512", f"s_and_b32 s{SC_K}, s{SC_K}, 8191", f"s_mul_i32 s{SC_V0}, s{SC_K}, 57")

def c_loads(a, buf, imm=0):
    for w in range(4):
        c_load1(a, buf, 0, w, masked=(w == 3))

def c_smfma(a, i, half):
    kt, qs = (i // 4) % 4, i % 4
    S = CS + 16 * (i % 2)
    a.e(f"{MFMA} {vr(S,16)}, {vr(CKV+16*kt+4*half,4)}, {vr(CQ+8*qs+4*half,4)}, {'0' if half == 0 else vr(S,16)}")
def c_pv(a, i, half, first=False):
    if first and i < 0: return
    i %= 16
    kt, qs = i // 4, i % 4
    Oq = CO + 16 * qs
    a.e(f"{MFMA} {vr(Oq,16)}, {vr(CKV+16*kt+8+4*half,4)}, {vr(CP+8*(i%2)+4*half,4)}, {'0' if first and half == 0 else vr(Oq,16)}")

def c_load1(a, buf, imm, which, masked=False):
    kb, vb = CKV + 16 * buf, CKV + 16 * buf + 8
    if which < 2:
        a.e(f"buffer_load_dwordx4 {vr(kb+4*which,4)}, v{C_VK1 if which else C_VK}, {sr(S_KV,4)}, s{SC_K} offen {SC1}")
    else:
        a.e(f"buffer_load_dwordx4 {vr(vb+4*(which-2),4)}, v{C_VV1 if which == 3 else C_VV}, {sr(S_KV,4)}, s{SC_V0} offen {SC1}")
        if which == 3: c_adv(a)

def c_step(a, i, first=False, extra=None):
    S, P = CS + 16 * (i % 2), CP + 8 * (i % 2)
    ex = lambda k: a.e(f"v_exp_f32 v{S+k}, v{S+k}")
    cv = lambda k: a.e(f"v_cvt_pk_bf16_f32 v{P+k}, v{S+2*k}, v{S+2*k+1}")
    kt = i // 4
    def mem():
        if i == 4:
            a.e(f"s_cmp_eq_u32 s{SC_IT}, 1", f"s_cselect_b32 s{S_KV+2}, 0, s{S_KV+2}")
        if O.noload:
            pass
        elif O.spread:
            c_load1(a, (kt + 3) % 4, 512 * (kt + 3), i % 4)
        elif i % 4 == 0:
            c_loads(a, (kt + 3) % 4, 512 * (kt + 3))
    def wt():
        if O.delay_d and i == O.d_go[1]:
            sk = uid("go")
            a.e(f"s_cmp_lg_u32 s{SC_IT}, {O.d_go[0]}", f"s_cbranch_scc1 {sk}", f"ds_write_b32 v{C_T+15}, v{C_T+15} offset:4")
            a.label(sk)
        if first and i == 3:
            a.e("s_waitcnt vmcnt(3)", "s_mov_b64 exec, 1", f"buffer_store_dwordx2 {vr(C_T,2)}, v{V_ZERO}, {sr(S_WS,4)}, s{S_LFL} offen {SC1}", "s_mov_b64 exec, -1")
        elif i % 4 == 3:
            a.e(f"s_waitcnt vmcnt({7 if O.spread and O.pack != 6 else 8})")
            if i == 3 and not O.peel:
                sk = uid("pub")
                a.e(f"s_cmp_lg_u32 s{SC_IT}, 4", f"s_cbranch_scc1 {sk}")
                a.e("s_mov_b64 exec, 1", f"buffer_store_dwordx2 {vr(C_T,2)}, v{V_ZERO}, {sr(S_WS,4)}, s{S_LFL} offen {SC1}")
                if O.poison: a.e(f"buffer_store_dwordx2 {vr(C_T,2)}, v{V_ZERO}, {sr(S_WS,4)}, s{S_OFL} offen {SC1}")
                a.e("s_mov_b64 exec, -1")
                if O.plite:
                    a.e(f"buffer_store_dwordx4 {vr(C_T+4,4)}, v{V_SH}, {sr(S_WS,4)}, s{S_OST} offen {SC1}",
                        f"buffer_store_dwordx4 {vr(C_T+4,4)}, v{V_SH}, {sr(S_WS,4)}, s{S_OST} offen offset:1024 {SC1}")
                a.label(sk)
            if i == 11 and O.plite:
                sk = uid("pub")
                a.e(f"s_cmp_lg_u32 s{SC_IT}, 4", f"s_cbranch_scc1 {sk}")
                a.e("s_mov_b64 exec, 1", f"buffer_store_dwordx2 {vr(C_T,2)}, v{V_ZERO}, {sr(S_WS,4)}, s{S_OFL} offen {SC1}", "s_mov_b64 exec, -1")
                a.label(sk)
    if O.pack == 0:
        wt()
        c_smfma(a, i + 1, 0)
        for k in range(4): ex(k)
        c_smfma(a, i + 1, 1)
        ex(4); ex(5); cv(0); cv(1); ex(6); ex(7)
        c_pv(a, i - 1, 0)
        ex(8); ex(9); cv(2); cv(3); ex(10); ex(11)
        c_pv(a, i - 1, 1)
        mem()
        for k in range(12, 16): ex(k)
        cv(4); cv(5); cv(6); cv(7)
    elif O.pack == 1:
        c_pv(a, i - 1, 0, first)
        ex(0); ex(1); ex(2)
        c_pv(a, i - 1, 1, first)
        ex(3); ex(4); ex(5)
        wt()
        c_smfma(a, i + 1, 0)
        ex(6); ex(7); cv(0); cv(1)
        c_smfma(a, i + 1, 1)
        mem()
        if extra: extra()
        ex(8); ex(9); cv(2); ex(10); ex(11); cv(3); ex(12); ex(13); cv(4); ex(14); ex(15); cv(5); cv(6); cv(7)
    elif O.pack == 6:
        buf = (kt + 3) % 4
        kb, vb = CKV + 16 * buf, CKV + 16 * buf + 8
        sl = [[], [], [], []]
        if i == 4:
            sl[0].append(f"s_cmp_eq_u32 s{SC_IT}, 1"); sl[1].append(f"s_cselect_b32 s{S_KV+2}, 0, s{S_KV+2}")
        ld = [f"buffer_load_dwordx4 {vr(kb,4)}, v{C_VK}, {sr(S_KV,4)}, s{SC_K} offen {SC1}", f"buffer_load_dwordx4 {vr(kb+4,4)}, v{C_VK1}, {sr(S_KV,4)}, s{SC_K} offen {SC1}",
              f"buffer_load_dwordx4 {vr(vb,4)}, v{C_VV}, {sr(S_KV,4)}, s{SC_V0} offen {SC1}", f"buffer_load_dwordx4 {vr(vb+4,4)}, v{C_VV1}, {sr(S_KV,4)}, s{SC_V0} offen {SC1}"]
        if O.ldm == 0:
            if i % 4 == 0: sl[3] += ld[:2]
            if i % 4 == 1: sl[3] += ld[2:]
        elif i % 4 == 1:
            for q in range(4): sl[q].append(ld[q])
        if i % 4 == 2:
            sl[0].append(f"s_add_u32 s{SC_K}, s{SC_K}, 512"); sl[1].append(f"s_and_b32 s{SC_K}, s{SC_K}, 8191"); sl[2].append(f"s_mul_i32 s{SC_V0}, s{SC_K}, 57")
        if i == 15 and O.wt_early:
            sl[2].append(f"s_sub_u32 s{SC_IT}, s{SC_IT}, 1"); sl[3].append(f"s_cmp_lg_u32 s{SC_IT}, 0")
        em = lambda k: [a.e(l) for l in sl[k]]
        c_pv(a, i - 1, 0); em(0)
        ex(0); ex(1); ex(2)
        c_pv(a, i - 1, 1); em(1)
        if O.wt_early: wt()
        ex(3); ex(4); ex(5)
        if not O.wt_early: wt()
        c_smfma(a, i + 1, 0); em(2)
        ex(6); ex(7); cv(0); cv(1)
        c_smfma(a, i + 1, 1); em(3)
        ex(8); ex(9); cv(2); ex(10); ex(11); cv(3); ex(12); ex(13); cv(4); ex(14); ex(15); cv(5); cv(6); cv(7)
    elif O.pack == 4:
        c_pv(a, i - 1, 0)
        ex(0); ex(1); ex(2)
        c_pv(a, i - 1, 1)
        ex(3); ex(4); cv(0); ex(5); cv(1); ex(6); ex(7); cv(2); cv(3)
        wt()
        c_smfma(a, i + 1, 0)
        ex(8); ex(9); ex(10)
        c_smfma(a, i + 1, 1)
        mem()
        ex(11); ex(12); cv(4); ex(13); cv(5); ex(14); ex(15); cv(6); cv(7)
    elif O.pack == 5:
        c_pv(a, i - 1, 0)
        ex(0); ex(1); ex(2)
        c_pv(a, i - 1, 1)
        ex(3); ex(4); cv(0); ex(5); cv(1); ex(6); ex(7); ex(8); cv(2); cv(3)
        wt()
        c_smfma(a, i + 1, 0)
        ex(9); ex(10); ex(11)
        c_smfma(a, i + 1, 1)
        mem()
        ex(12); cv(4); ex(13); cv(5); ex(14); ex(15); cv(6); cv(7)
    elif O.pack == 3:
        sub = Asm(); keep = a.lines; a.lines = sub.lines; mem(); a.lines = keep
        ml = sub.lines
        grp = []
        k = 0
        while k < len(ml):
            if "s_mov_b64 exec, s[" in ml[k]: grp.append(ml[k:k+3]); k += 3
            elif "s_cmp_eq" in ml[k]: grp.append(ml[k:k+2]); k += 2
            else: grp.append([ml[k]]); k += 1
        def nx():
            if grp: a.lines.extend(grp.pop(0))
        c_pv(a, i - 1, 0)
        ex(0); ex(1); ex(2)
        c_pv(a, i - 1, 1)
        ex(3); ex(4); ex(5)
        wt()
        c_smfma(a, i + 1, 0)
        ex(6); ex(7); cv(0); cv(1)
        c_smfma(a, i + 1, 1)
        ex(8); nx(); ex(9); nx(); cv(2); ex(10); nx(); ex(11); nx(); cv(3); ex(12); nx(); ex(13); cv(4); ex(14); ex(15); cv(5); cv(6); cv(7)
        assert not grp
    elif O.pack == 2:
        c_pv(a, i - 1, 0)
        ex(0); ex(1)
        c_pv(a, i - 1, 1)
        ex(2); ex(3); cv(0)
        wt()
        c_smfma(a, i + 1, 0)
        ex(4); ex(5); cv(1)
        c_smfma(a, i + 1, 1)
        mem()
        ex(6); ex(7); cv(2); ex(8); ex(9); cv(3); ex(10); ex(11); cv(4); ex(12); ex(13); cv(5); ex(14); ex(15); cv(6); cv(7)

def vinit(a, b):
    if b == 3:
        for k in range(8):
            a.e(f"v_mov_b32 v{CKV+16*b+8+k}, 0")

def first_loads(a):
    vinit(a, 0)
    c_loads(a, 0, 0)
    a.e(f"s_lshl_b32 s4, s{SC_O}, 15", f"s_lshl_b32 s5, s{SC_QT}, 11", "s_add_u32 s4, s4, s5")
    for i in range(4):
        a.e(f"s_add_u32 s5, s{S_W}, {i+1}", "s_and_b32 s5, s5, 3", "s_lshl_b32 s5, s5, 9", "s_add_u32 s5, s5, s4", f"s_add_u32 s6, s5, {2*OCT}")
        a.e(f"buffer_load_dwordx4 {vr(CQ+8*i,4)}, v{C_QA}, {sr(S_WS,4)}, s5 offen {SC1}")
        a.e(f"buffer_load_dwordx4 {vr(CQ+8*i+4,4)}, v{C_QA}, {sr(S_WS,4)}, s6 offen {SC1}")
    a.e(f"s_lshl_b32 s4, s{SC_QT}, 2", f"s_add_u32 s4, s4, s{S_W}", "s_lshl_b32 s4, s4, 7", f"s_add_u32 s4, s4, {WS_G}",
        f"v_and_b32 v{C_G}, 31, v{V_LANE}", f"v_lshlrev_b32 v{C_G}, 2, v{C_G}")
    a.e(f"buffer_load_dword v{C_G}, v{C_G}, {sr(S_WS,4)}, s4 offen {SC1}")

def early_hook(a, k):
    sk = uid("eh")
    a.e(f"s_mov_b32 s{S_EARLY}, 0", f"s_cmp_ge_u32 s{S_W}, 4", f"s_cbranch_scc1 {sk}")
    if O.peel:
        for b in range(1, 4): vinit(a, b)
    a.e(f"s_waitcnt vmcnt({k})")
    poll_check(a, V_PD, sk); poll_check(a, V_PD + 2, sk)
    first_loads(a)
    a.e(f"s_mov_b32 s{S_EARLY}, 1")
    a.label(sk)

def fallback(a):
    TT = C_T
    KB, VB, M, VA = CKV, CKV + 8, TT + 7, TT + 10
    SK, SK1, SV, SV1, SN = 4, 5, 6, 7, SC_IT
    def kbase():
        a.e(f"s_add_u32 s{SK}, s{SC_O}, 56", f"s_lshl_b32 s{SK}, s{SK}, 15", f"s_add_u32 s{SK1}, s{SK}, {2*OCT}", f"s_mov_b32 s{SN}, 64")
    def kload():
        a.e(f"buffer_load_dwordx4 {vr(KB,4)}, v{C_QA}, {sr(S_WS,4)}, s{SK} offen {SC1}", f"buffer_load_dwordx4 {vr(KB+4,4)}, v{C_QA}, {sr(S_WS,4)}, s{SK1} offen {SC1}",
            f"s_add_u32 s{SK}, s{SK}, 512", f"s_add_u32 s{SK1}, s{SK1}, 512")
    def scores():
        a.e("s_waitcnt vmcnt(0)", f"{MFMA} {vr(CS,16)}, {vr(KB,4)}, {vr(CQ+24,4)}, 0", f"{MFMA} {vr(CS,16)}, {vr(KB+4,4)}, {vr(CQ+28,4)}, {vr(CS,16)}")
    a.label("L_fallback")
    a.e(f"v_mov_b32 v{M}, 0xff800000")
    kbase()
    a.label("L_fb1")
    kload(); scores()
    for i in range(8):
        a.e(f"v_max3_f32 v{M}, v{M}, v{CS+2*i}, v{CS+2*i+1}")
    a.e(f"s_sub_u32 s{SN}, s{SN}, 1", f"s_cmp_lg_u32 s{SN}, 0", "s_cbranch_scc1 L_fb1")
    a.e(f"v_mov_b32 v{M+1}, v{M}", f"v_permlane32_swap_b32 v{M}, v{M+1}", f"v_max_f32 v{M}, v{M}, v{M+1}")
    for i in range(16):
        a.e(f"v_mov_b32 v{CO+i}, 0")
    kbase()
    a.e(f"s_mul_i32 s{SV}, s{S_W}, {16*V_TB}", f"v_subrev_u32 v{VA}, s{SV}, v{C_VV}", f"v_subrev_u32 v{VA+1}, s{SV}, v{C_VV1}", f"s_mov_b32 s{SV}, 0")
    a.label("L_fb2")
    kload()
    a.e(f"buffer_load_dwordx4 {vr(VB,4)}, v{VA}, {sr(S_WS,4)}, s{SV} offen {SC1}",
        f"buffer_load_dwordx4 {vr(VB+4,4)}, v{VA+1}, {sr(S_WS,4)}, s{SV} offen {SC1}", f"s_add_u32 s{SV}, s{SV}, {V_TB}")
    scores()
    for i in range(16):
        a.e(f"v_sub_f32 v{CS+i}, v{CS+i}, v{M}")
    for i in range(16):
        a.e(f"v_exp_f32 v{CS+i}, v{CS+i}")
    for k in range(8):
        a.e(f"v_cvt_pk_bf16_f32 v{CP+k}, v{CS+2*k}, v{CS+2*k+1}")
    a.e(f"{MFMA} {vr(CO,16)}, {vr(VB,4)}, {vr(CP,4)}, {vr(CO,16)}", f"{MFMA} {vr(CO,16)}, {vr(VB+4,4)}, {vr(CP+4,4)}, {vr(CO,16)}")
    a.e("s_nop 7", "s_nop 7", f"s_sub_u32 s{SN}, s{SN}, 1", f"s_cmp_lg_u32 s{SN}, 0", "s_cbranch_scc1 L_fb2")
    a.e(f"v_mov_b32 v{TT+5}, v{CO+12}", f"v_mov_b32 v{TT+6}, v{CO+12}", f"v_permlane32_swap_b32 v{TT+5}, v{TT+6}", f"s_mov_b32 s{SN}, 1", "s_nop 1", "s_branch L_fb_done")

def attention(a):
    L, TT = V_LANE, C_T
    vm = Vm()
    spin, go, go2 = uid("aspin"), uid("ago"), uid("ago")
    if O.prio_attn: a.e(f"s_setprio {O.prio_attn}")
    if O.early:
        a.e(f"s_cmp_eq_u32 s{S_EARLY}, 0", f"s_cbranch_scc1 {spin}")
    else:
        a.e("s_waitcnt vmcnt(0)")
        poll_check(a, V_PD, spin); poll_check(a, V_PD + 2, spin)
        a.label(go2)
        first_loads(a)
    a.label(go)
    stamp(a, 8)
    if O.peel:
        assert O.pack == 1 and O.spread and O.early and not O.poison
        a.e(f"v_mov_b32 v{TT}, v{V_FD}", f"v_mov_b32 v{TT+1}, v{V_FD+1}")
        c_loads(a, 1)
        od, dn = uid("qm"), uid("qm")
        a.e(f"s_bitcmp1_b32 s{SC_HEAD}, 0", "s_waitcnt vmcnt(4)", f"s_cbranch_scc1 {od}")
        for qs in range(4): a.e(f"v_and_b32 v{CQ+8*qs+6}, v{CQ+8*qs+6}, v{C_MB}", f"v_and_b32 v{CQ+8*qs+7}, v{CQ+8*qs+7}, v{C_MB}")
        a.e(f"s_branch {dn}")
        a.label(od)
        for qs in range(4): a.e(f"v_and_b32 v{CQ+8*qs}, v{CQ+8*qs}, v{C_MA}", f"v_and_b32 v{CQ+8*qs+1}, v{CQ+8*qs+1}, v{C_MA}")
        a.label(dn)
        a.e("s_nop 1")
        c_smfma(a, 0, 0); c_smfma(a, 0, 1)
        c_loads(a, 2)
        epi_F(a, vm, S_LOB, CP)
        for i in range(16): a.e(f"v_mov_b32 v{CO+48+i}, 0")
        stamp(a, 9)
        def x0():
            a.e(f"s_lshl_b32 s{S_TB}, s{SC_QT}, 2", f"s_add_u32 s{S_TB}, s{S_TB}, s{S_W}", f"s_mov_b32 s{SC_IT}, 4")
            a.e(f"s_mul_i32 s{S_OST}, s{S_TB}, {HO_TB}", f"s_lshl_b32 s{S_T1}, s{SC_HEAD}, 11", f"s_add_u32 s{S_OST}, s{S_OST}, s{S_T1}",
                f"s_add_u32 s{S_OST}, s{S_OST}, {WS_HO + 112*1024}")
            a.e(f"s_lshl_b32 s{S_OFL}, s{S_TB}, 4", f"s_add_u32 s{S_OFL}, s{S_OFL}, s{SC_HEAD}", f"s_lshl_b32 s{S_OFL}, s{S_OFL}, 3",
                f"s_add_u32 s{S_OFL}, s{S_OFL}, {WS_F + F_O}")
        def x1():
            for i in range(3):
                a.e(f"s_add_u32 s{S_T1}, s{S_W}, {i+1}", f"s_and_b32 s{S_T1}, s{S_T1}, 3", f"s_mul_i32 s{S_T1}, s{S_T1}, 12288",
                    f"s_add_u32 s{S_T1}, s{S_T1}, {L_XCH + i*4096}", f"v_add_u32 v{TT+11+i}, s{S_T1}, v{V_SH}")
            a.e(f"s_mul_i32 s{S_T1}, s{S_W}, 12288", f"s_add_u32 s{S_T1}, s{S_T1}, {L_XCH}", f"v_add_u32 v{TT+14}, s{S_T1}, v{V_SH}", f"v_mov_b32 v{TT+15}, s{S_CNT}")
        for i in range(4):
            c_step(a, i, first=True, extra=[x0, x1, None, None][i])
        a.raw(".p2align 3")
        a.label("L_c_loop")
        for i in range(4, 16):
            c_step(a, i)
        a.e(f"s_sub_u32 s{SC_IT}, s{SC_IT}, 1", f"s_cmp_eq_u32 s{SC_IT}, 0", "s_cbranch_scc1 L_c_out")
        for i in range(4):
            c_step(a, i)
        a.e("s_branch L_c_loop")
        a.label("L_c_out")
    else:
        a.e(f"v_and_b32 v{TT+2}, 31, v{L}", f"s_lshl_b32 s{S_TB}, s{SC_QT}, 2", f"s_add_u32 s{S_TB}, s{S_TB}, s{S_W}")
        epi_F(a, vm, S_LOB)
        a.e(f"v_mov_b32 v{TT}, v{V_FD}", f"v_mov_b32 v{TT+1}, v{V_FD+1}")
        a.e(f"s_mul_i32 s{S_OST}, s{S_TB}, {HO_TB}", f"s_lshl_b32 s{S_T1}, s{SC_HEAD}, 11", f"s_add_u32 s{S_OST}, s{S_OST}, s{S_T1}",
            f"s_add_u32 s{S_OST}, s{S_OST}, {WS_HO + 112*1024}")
        a.e(f"s_lshl_b32 s{S_OFL}, s{S_TB}, 4", f"s_add_u32 s{S_OFL}, s{S_OFL}, s{SC_HEAD}", f"s_lshl_b32 s{S_OFL}, s{S_OFL}, {O.fo_sh}",
            f"s_add_u32 s{S_OFL}, s{S_OFL}, {WS_F + F_O if O.fo_sh == 3 else 0x11D0000}")
        if O.poison:
            for k in range(4): a.e(f"v_mov_b32 v{CP+k}, -1")
            a.e(f"buffer_store_dwordx4 {vr(CP,4)}, v{V_SH}, {sr(S_WS,4)}, s{S_OST} offen {SC1}",
                f"buffer_store_dwordx4 {vr(CP,4)}, v{V_SH}, {sr(S_WS,4)}, s{S_OST} offen offset:1024 {SC1}")
        for b in range(1, 4): vinit(a, b)
        if O.plite:
            for k in range(4): a.e(f"v_mov_b32 v{TT+4+k}, -1")
        c_loads(a, 1, 512)
        for i in range(64):
            a.e(f"v_mov_b32 v{CO+i}, 0")
        for i in range(8):
            a.e(f"v_mov_b32 v{CP+8+i}, 0")
        c_loads(a, 2, 1024)
        for i in range(3):
            a.e(f"s_add_u32 s{S_T1}, s{S_W}, {i+1}", f"s_and_b32 s{S_T1}, s{S_T1}, 3", f"s_mul_i32 s{S_T1}, s{S_T1}, 12288",
                f"s_add_u32 s{S_T1}, s{S_T1}, {L_XCH + i*4096}", f"v_add_u32 v{TT+11+i}, s{S_T1}, v{V_SH}")
        a.e(f"s_mul_i32 s{S_T1}, s{S_W}, 12288", f"s_add_u32 s{S_T1}, s{S_T1}, {L_XCH}", f"v_add_u32 v{TT+14}, s{S_T1}, v{V_SH}", f"v_mov_b32 v{TT+15}, s{S_CNT}")
        a.e(f"s_mov_b32 s{SC_IT}, 4")
        a.e(f"s_waitcnt vmcnt({12 if O.poison else 10})")
        for qs in range(4):
            a.e(f"v_and_b32 v{CQ+8*qs}, v{CQ+8*qs}, v{C_MA}", f"v_and_b32 v{CQ+8*qs+1}, v{CQ+8*qs+1}, v{C_MA}",
                f"v_and_b32 v{CQ+8*qs+6}, v{CQ+8*qs+6}, v{C_MB}", f"v_and_b32 v{CQ+8*qs+7}, v{CQ+8*qs+7}, v{C_MB}")
        stamp(a, 9)
        c_smfma(a, 0, 0); c_smfma(a, 0, 1)
        a.e("s_nop 7")
        a.raw(f".p2align {O.lalign}")
        a.label("L_c_loop")
        for i in range(16):
            c_step(a, i)
        if O.stamp == 1 and O.bars == 3:
            a.e("s_memtime s[6:7]", "s_waitcnt lgkmcnt(0)", "s_sub_u32 s6, s6, s100", f"s_add_u32 m0, s{SC_IT}, 15", "s_nop 0", f"v_writelane_b32 v255, s6, m0")
        if not (O.wt_early and O.pack == 6): a.e(f"s_sub_u32 s{SC_IT}, s{SC_IT}, 1", f"s_cmp_lg_u32 s{SC_IT}, 0")
        a.e("s_cbranch_scc1 L_c_loop")
    stamp(a, 10)
    for i in range(3):
        if i < 2: c_pv(a, 15, i)
        for q in range(4):
            a.e(f"ds_write_b128 v{TT+11+i}, {vr(CO+16*i+4*q,4)} offset:{q*1024}")
    a.e(f"v_mov_b32 v{TT+6}, 1", "s_waitcnt lgkmcnt(0)", "s_mov_b64 exec, 1",
        f"ds_add_u32 v{TT+15}, v{TT+6}", "s_mov_b64 exec, -1", f"s_mov_b32 s{S_SPIN}, 0x100000")
    top, dn = uid("xs"), uid("xd")
    a.label(top)
    a.e(f"ds_read_b32 v{TT+6}, v{TT+15}", "s_waitcnt lgkmcnt(0)", f"v_readfirstlane_b32 s{S_T1}, v{TT+6}", f"s_cmp_ge_u32 s{S_T1}, 4",
        f"s_cbranch_scc1 {dn}", f"s_sub_u32 s{S_SPIN}, s{S_SPIN}, 1", f"s_cmp_lg_u32 s{S_SPIN}, 0", f"s_cbranch_scc1 {top}")
    a.label(dn)
    stamp(a, 11)
    for i in range(3):
        for q in range(4):
            a.e(f"ds_read_b128 {vr(CO+16*i+4*q,4)}, v{TT+14} offset:{i*4096+q*1024}")
    a.e("s_waitcnt lgkmcnt(8)")
    vadd(a, CO, CO, CO + 48, 16)
    a.e("s_waitcnt lgkmcnt(4)")
    vadd(a, CO, CO, CO + 16, 16)
    a.e("s_waitcnt lgkmcnt(0)")
    vadd(a, CO, CO, CO + 32, 16)
    def check():
        a.e(f"v_pk_mul_f32 {vr(TT+8,2)}, {vr(CO,2)}, 0 op_sel_hi:[1,0]", f"v_pk_mul_f32 {vr(TT+10,2)}, {vr(CO+2,2)}, 0 op_sel_hi:[1,0]")
        for i in range(2, 8):
            r = TT + 8 + 2 * (i % 2)
            a.e(f"v_pk_fma_f32 {vr(r,2)}, {vr(CO+2*i,2)}, 0, {vr(r,2)} op_sel_hi:[1,0,1]")
        a.e(f"v_cmp_nle_f32 vcc, {f2u(2.0**-30):#x}, v{TT+6}", f"v_cmp_nge_f32 s[4:5], s{SC_BIG}, v{TT+6}", f"v_pk_add_f32 {vr(TT+8,2)}, {vr(TT+8,2)}, {vr(TT+10,2)}",
            "s_or_b64 vcc, vcc, s[4:5]", f"v_cmp_u_f32 s[6:7], v{TT+8}, v{TT+9}", "s_or_b64 vcc, vcc, s[6:7]")
        if O.force_fb: a.e("s_mov_b64 vcc, -1")
        if not (O.poison or O.plite): a.e(f"s_cmp_lg_u32 s{SC_IT}, 0", "s_cselect_b64 vcc, 0, vcc")
        a.e("s_cbranch_vccnz L_fallback")
    a.e(f"v_mov_b32 v{TT+5}, v{CO+12}", f"v_mov_b32 v{TT+6}, v{CO+12}", f"s_mov_b32 s{SC_IT}, 0", f"v_permlane32_swap_b32 v{TT+5}, v{TT+6}")
    if O.poison or O.plite: check()
    a.label("L_fb_done")
    a.e(f"v_rcp_f32 v{TT+5}, v{TT+6}", f"v_mul_f32 v{TT+5}, v{TT+5}, v{C_G}")
    def fin(k):
        a.e(f"v_cvt_pk_bf16_f32 v{CP+k}, v{CO+16+2*k}, v{CO+17+2*k}")
        if O.poison or O.plite: a.e(f"v_min_u32 v{CP+k}, -2, v{CP+k}")
    for k in range(8):
        vscale(a, CO + 16 + 2 * k, CO + 2 * k, TT + 5, 2)
        if k: fin(k - 1)
        if k == 4:
            a.e(f"buffer_store_dwordx4 {vr(CP,4)}, v{V_SH}, {sr(S_WS,4)}, s{S_OST} offen {SC1}")
    fin(7)
    a.e("s_mov_b32 exec_lo, 0", f"v_mov_b32 v{CP+6}, 0", f"v_mov_b32 v{CP+7}, 0", "s_mov_b32 exec_lo, -1")
    a.e(f"buffer_store_dwordx4 {vr(CP+4,4)}, v{V_SH}, {sr(S_WS,4)}, s{S_OST} offen offset:1024 {SC1}")
    if not (O.poison or O.plite):
        check()
        a.e("s_waitcnt vmcnt(0)", "s_mov_b64 exec, 1")
        a.e(f"buffer_store_dwordx2 {vr(TT,2)}, v{V_ZERO}, {sr(S_WS,4)}, s{S_OFL} offen {SC1}")
    stamp(a, 12)
    if O.red8:
        sk = uid("r8")
        a.e("s_mov_b64 exec, -1", "s_setprio 0", "s_cmp_ge_u32 s2, 224", f"s_cbranch_scc1 {sk}")
        a.e("s_and_b32 s4, s2, 7", "s_lshr_b32 s5, s2, 3", "s_mul_i32 s6, s5, 37", "s_lshr_b32 s6, s6, 8", "s_mul_i32 s7, s6, 7", "s_sub_u32 s7, s5, s7",
            "s_lshl_b32 s4, s4, 2", "s_add_u32 s6, s6, s4")
        red_addr(a, TT, 6, 7)
        a.e("s_barrier")
        red_pass(a, TT, [0])
        a.label(sk)
    stamp_end(a)
    a.e("s_endpgm")
    fallback(a)
    a.label(spin)
    poll_spin(a, [C_PA, C_PB], V_PD)
    if O.early:
        first_loads(a)
        a.e(f"s_branch {go}")
    else:
        a.e(f"s_branch {go2}")

def red_addr(a, TT, rt, ct):
    a.e(f"v_and_b32 v{TT+4}, 255, v0", f"v_lshrrev_b32 v{TT}, 3, v{TT+4}", f"v_and_b32 v{TT+1}, 7, v0", f"v_mul_u32_u24 v{TT+5}, 272, v{TT}",
        f"v_lshl_add_u32 v{TT+5}, v{TT+1}, 5, v{TT+5}")
    a.e(f"v_mul_u32_u24 v{TT+3}, 896, v{TT}", f"v_lshl_add_u32 v{TT+3}, v{TT+1}, 4, v{TT+3}")
    a.e(f"s_mul_i32 s{S_T0}, s{rt}, {64*896}", f"s_lshl_b32 s{S_T1}, s{ct}, 7", f"s_add_u32 s{S_T0}, s{S_T0}, s{S_T1}",
        f"s_add_u32 s{S_T1}, s{S_T0}, {32*896}")
    a.e(f"v_add_u32 v{TT+6}, {2*L_DREG}, v{TT+5}")

def red_pass(a, TT, ps):
    for p in ps:
        for w in range(4):
            for q in range(2):
                a.e(f"ds_read_b128 {vr(DACC+32*p+8*w+4*q,4)}, v{TT+5+w//2} offset:{(w%2)*L_DREG + p*32*272 + q*16}")
    for p in ps:
        b = DACC + 32 * p
        left = 8 * (len(ps) - 1 - ps.index(p))
        a.e(f"s_waitcnt lgkmcnt({left + 4})")
        vadd(a, b, b, b + 8, 8)
        a.e(f"s_waitcnt lgkmcnt({left})")
        vadd(a, b + 16, b + 16, b + 24, 8)
        vadd(a, b, b, b + 16, 8)
        for k in range(4):
            a.e(f"v_cvt_pk_bf16_f32 v{b+8+k}, v{b+2*k}, v{b+2*k+1}")
        a.e(f"buffer_store_dwordx4 {vr(b+8,4)}, v{TT+3}, {sr(S_OUT,4)}, s{S_T0 if p == 0 else S_T1} offen {O.outf}")

def dphase(a):
    L, TT = V_LANE, D_T
    vm, lg = Vm(), Lg()
    RW, RB = O.rw, O.rb
    ts = epi_F(a, vm, S_LOB)
    fin = uid("dfin")
    a.e(f"s_cmp_ge_u32 s2, 224", f"s_cbranch_scc1 {fin}")
    a.e(f"s_and_b32 s{S_W}, s{S_W}, 3")
    a.e(f"s_mul_i32 s{SD_WB}, s{S_W}, {28*16*896}", f"s_lshl_b32 s{S_T0}, s{SD_CT}, 7", f"s_add_u32 s{SD_WB}, s{SD_WB}, s{S_T0}")
    a.e(f"s_mul_i32 s{SD_BB}, s{SD_RT}, {2*HO_TB}", f"s_mul_i32 s{S_T0}, s{S_W}, {28*1024}", f"s_add_u32 s{SD_BB}, s{SD_BB}, s{S_T0}",
        f"s_add_u32 s{SD_BB}, s{SD_BB}, {WS_HO}")
    NK = 36
    wt, bt = {}, {}
    pace = [O.d_pace >= 0]
    def wload(n):
        if n == 28:
            a.e(f"s_mul_i32 s{SD_W}, s{S_W}, {112*896}", f"s_lshl_b32 s{S_T0}, s{SD_CT}, 7", f"s_add_u32 s{SD_W}, s{SD_W}, s{S_T0}")
        elif n < 28 and n % 4 == 0:
            a.e(f"s_bfe_u32 s{SD_W}, s{SD_CP}, {(4 << 16) | n:#x}", f"s_mul_i32 s{SD_W}, s{SD_W}, {64*896}", f"s_add_u32 s{SD_W}, s{SD_W}, s{SD_WB}")
        row = 16 * (n % 4) if n < 28 else 28 * ((n - 28) // 2) + 16 * (n % 2)
        w = S_WD if n < 28 else S_WO
        slot = n % RW
        a.e(f"s_add_u32 m0, s{SD_LDS}, {slot*2048}", f"s_add_u32 s{S_T0}, s{SD_W}, {row*896}")
        a.e(f"buffer_load_dwordx4 v{D_VW}, {sr(w,4)}, s{S_T0} offen lds"); vm.issue()
        a.e(f"s_add_u32 m0, s{SD_LDS}, {slot*2048+1024}", f"s_add_u32 s{S_T0}, s{S_T0}, {8*896}")
        a.e(f"buffer_load_dwordx4 v{D_VW}, {sr(w,4)}, s{S_T0} offen lds"); wt[n] = vm.issue()
        if pace[0]: a.e(f"s_waitcnt vmcnt({O.d_pace})")
    def bload(n):
        if n == 28:
            a.e(f"s_mul_i32 s{SD_B0}, s{SD_RT}, {2*HO_TB}", f"s_mul_i32 s{S_T0}, s{S_W}, {8*1024}", f"s_add_u32 s{SD_B0}, s{SD_B0}, s{S_T0}",
                f"s_add_u32 s{SD_B0}, s{SD_B0}, {WS_HO + 112*1024}", f"s_add_u32 s{SD_B1}, s{SD_B0}, {HO_TB}")
        elif n == 32:
            a.e(f"s_add_u32 s{SD_B0}, s{SD_B0}, 4096", f"s_add_u32 s{SD_B1}, s{SD_B1}, 4096")
        elif n % 4 == 0:
            a.e(f"s_bfe_u32 s{SD_B0}, s{SD_CP}, {(4 << 16) | n:#x}", f"s_lshl_b32 s{SD_B0}, s{SD_B0}, 12", f"s_add_u32 s{SD_B0}, s{SD_B0}, s{SD_BB}",
                f"s_add_u32 s{SD_B1}, s{SD_B0}, {HO_TB}")
        slot = n % RB
        a.e(f"buffer_load_dwordx4 {vr(DB+8*slot,4)}, v{V_SH}, {sr(S_WS,4)}, s{SD_B0} offen offset:{(n%4)*1024} {SC1}"); vm.issue()
        a.e(f"buffer_load_dwordx4 {vr(DB+8*slot+4,4)}, v{V_SH}, {sr(S_WS,4)}, s{SD_B1} offen offset:{(n%4)*1024} {SC1}"); bt[n] = vm.issue()
        if pace[0]: a.e(f"s_waitcnt vmcnt({O.d_pace})")
    lt = {}
    def areads(n):
        vm.wait(a, wt[n])
        slot = n % RW
        for nb in range(2):
            for u in range(2):
                a.e(f"ds_read_b64_tr_b16 {vr(DA+8*(n%2)+4*nb+2*u,2)}, v{(D_TRN if O.f16 and n < 28 else D_TR)+nb} offset:{slot*2048+u*(512 if O.f16 and n < 28 else 1024)}"); lt[(n, nb)] = lg.issue()
    keep_pace = pace[0]; pace[0] = False
    for n in range(O.d_first):
        wload(n)
    pace[0] = keep_pace
    vm.wait(a, ts)
    publish(a, f"s{S_LFL}"); vm.issue()
    for n in range(O.d_first, RW):
        wload(n)
    stamp(a, 8)
    poll_spin(a, [D_PH], V_PD)
    stamp(a, 9)
    a.e(f"buffer_load_dwordx2 {vr(V_PD,2)}, v{D_PO}, {sr(S_WS,4)}, s{S_T0} offen {SC1}"); vm.issue()
    if O.h_touch:
        a.e(f"v_lshrrev_b32 v{TT+3}, 4, v{L}", f"v_mul_u32_u24 v{TT+3}, 7168, v{TT+3}", f"v_bfe_u32 v{TT+4}, v{L}, 3, 1",
            f"v_mul_u32_u24 v{TT+4}, {HO_TB}, v{TT+4}", f"v_add_u32 v{TT+3}, v{TT+3}, v{TT+4}", f"v_and_b32 v{TT+4}, 7, v{L}",
            f"v_lshl_add_u32 v{TT+3}, v{TT+4}, 7, v{TT+3}", f"s_mul_i32 s{S_T0}, s{S_W}, 28", f"s_add_u32 s{S_T0}, s{S_T0}, s{SD_CT}",
            f"s_lshl_b32 s{S_T0}, s{S_T0}, 10", f"s_mul_i32 s{S_T1}, s{SD_RT}, {2*HO_TB}", f"s_add_u32 s{S_T0}, s{S_T0}, s{S_T1}",
            f"s_add_u32 s{S_T0}, s{S_T0}, {WS_HO}", f"buffer_load_dword v{TT+5}, v{TT+3}, {sr(S_WS,4)}, s{S_T0} offen {SC1}"); vm.issue()
    a.e(f"v_and_b32 v{TT+1}, 31, v{L}", f"v_lshlrev_b32 v{TT+2}, 2, v{TT+1}", f"s_lshl_b32 s{S_T0}, s{SD_RT}, 8", f"s_add_u32 s{S_T0}, s{S_T0}, {WS_G}")
    a.e(f"buffer_load_dword v{D_G}, v{TT+2}, {sr(S_WS,4)}, s{S_T0} offen {SC1}"); vm.issue()
    a.e(f"buffer_load_dword v{D_G+1}, v{TT+2}, {sr(S_WS,4)}, s{S_T0} offen offset:128 {SC1}"); vm.issue()
    for n in range(RB):
        bload(n)
    if O.wo_touch:
        a.e(f"s_and_b32 s4, s{SD_RT}, 3", "s_mul_i32 s4, s4, 28", f"s_mul_i32 s5, s{S_W}, 112", "s_add_u32 s4, s4, s5", f"v_min_u32 v{TT+3}, 27, v{L}",
            f"v_add_u32 v{TT+3}, s4, v{TT+3}", f"v_mul_u32_u24 v{TT+3}, 896, v{TT+3}", f"s_lshl_b32 s4, s{SD_CT}, 7",
            f"buffer_load_dword v{TT+4}, v{TT+3}, {sr(S_WO,4)}, s4 offen"); vm.issue()
    if O.poison or O.plite:
        poll_spin(a, [D_PO], V_PD)
    if O.plite:
        a.e(f"v_lshrrev_b32 v{TT+3}, 5, v{L}", f"v_mul_u32_u24 v{TT+3}, {HO_TB}, v{TT+3}", f"v_and_b32 v{D_PO}, 3, v{L}",
            f"v_lshl_add_u32 v{D_PO}, v{D_PO}, 11, v{TT+3}", f"v_add_u32 v{D_PO}, 2032, v{D_PO}")
    if O.poison or O.wo2:
        NK = 28
    def gowait():
        pace[0] = False
        if O.delay_d:
            top, dn = uid("dg"), uid("dg")
            a.e(f"v_mov_b32 v{TT+3}, s{S_CNT}", f"s_mov_b32 s{S_SPIN}, 0x40000")
            a.label(top)
            a.e(f"ds_read_b32 v{TT+4}, v{TT+3} offset:4", "s_waitcnt lgkmcnt(0)", f"v_readfirstlane_b32 s{S_T0}, v{TT+4}", f"s_cmp_lg_u32 s{S_T0}, 0",
                f"s_cbranch_scc1 {dn}", f"s_sleep {O.dsleep}", f"s_sub_u32 s{S_SPIN}, s{S_SPIN}, 1", f"s_cmp_lg_u32 s{S_SPIN}, 0", f"s_cbranch_scc1 {top}")
            a.label(dn)
            if O.prio_d: a.e(f"s_setprio {O.prio_d}")
            stamp(a, 15)
    DONE, RDY, SO = SD_CP, SD_WB, 4
    OBH = [DB + 96, DB + 112, DB, DB + 16]
    AW = DB + 32
    def oload(i):
        for s_ in range(2):
            for tb in range(2):
                a.e(f"buffer_load_dwordx4 {vr(OBH[i]+8*s_+4*tb,4)}, v{V_SH}, {sr(S_WS,4)}, s{SO + 2*(i//2) + tb} offen offset:{((2*i+s_)%4)*1024} {SC1}"); vm.issue()
    def ofirst():
        a.e(f"s_mul_i32 s{SO}, s{SD_RT}, {2*HO_TB}", f"s_mul_i32 s{S_T0}, s{S_W}, {8*1024}", f"s_add_u32 s{SO}, s{SO}, s{S_T0}",
            f"s_add_u32 s{SO}, s{SO}, {WS_HO + 112*1024}", f"s_add_u32 s{SO+1}, s{SO}, {HO_TB}",
            f"s_add_u32 s{SO+2}, s{SO}, 4096", f"s_add_u32 s{SO+3}, s{SO+1}, 4096")
        for i in range(4): oload(i)
    if O.d_pre == 0: gowait()
    areads(0)
    for n in range(NK):
        if n == O.d_pre and n > 0:
            gowait()
        if n == 28:
            stamp(a, 10)
            poll_spin(a, [D_PO], V_PD, sleep=O.o_sleep)
            stamp(a, 11)
            for k in range(28, NK):
                bload(k)
            a.e(f"v_sub_f32 v{D_G}, 1.0, v{D_G}", f"v_sub_f32 v{D_G+1}, 1.0, v{D_G+1}")
            for nb in range(2):
                for tb in range(2):
                    for i in range(16):
                        r = DACC + 32 * nb + 16 * tb + i
                        a.e(f"v_mul_f32 v{r}, v{r}, v{D_G+tb}")
        if O.bars == 4 and n % 4 == 0 and n < 28: stamp(a, 16 + n // 4)
        if n + 1 < NK:
            areads(n + 1)
        vm.wait(a, bt[n])
        slot = n % RB
        parts = []
        if O.d_il and n >= 1:
            sub = Asm(); keep = a.lines; a.lines = sub.lines
            if n - 1 + RW < 36: wload(n - 1 + RW)
            if n - 1 + RB < 28: bload(n - 1 + RB)
            a.lines = keep
            cur = []
            for l in sub.lines:
                cur.append(l)
                if "buffer_load" in l: parts.append(cur); cur = []
            if cur: parts[-1].extend(cur)
        for nb in range(2):
            lg.wait(a, lt[(n, nb)])
            for tb in range(2):
                acc = DACC + 32 * nb + 16 * tb
                a.e(f"{MFMA} {vr(acc,16)}, {vr(DA+8*(n%2)+4*nb,4)}, {vr(DB+8*slot+4*tb,4)}, {'0' if n == 0 else vr(acc,16)}")
                if parts: a.lines.extend(parts.pop(0))
        if not O.d_il:
            if n + RW < 36:
                wload(n + RW)
            if n + RB < 28:
                bload(n + RB)
        if O.poison and n == O.o_early: ofirst()
        if O.wo2 and n == O.o_pre:
            a.e(f"s_mov_b32 s{S_T0}, {WS_F}", f"buffer_load_dwordx2 {vr(V_PD,2)}, v{D_PO}, {sr(S_WS,4)}, s{S_T0} offen {SC1}"); vm.issue()
        if O.wo2 and n == O.o_poll:
            a.e(f"s_mov_b32 s{S_T0}, {WS_F}", f"buffer_load_dwordx2 {vr(V_PD,2)}, v{D_PO}, {sr(S_WS,4)}, s{S_T0} offen {SC1}"); optk = vm.issue()
        if O.wo2 and n == O.o_chk:
            sk = uid("oe")
            vm.wait(a, optk)
            a.e(f"s_mov_b32 s{DONE}, 0")
            poll_check(a, V_PD, sk)
            n0 = vm.n; ofirst(); vm.n = n0
            a.e(f"s_mov_b32 s{DONE}, 1")
            a.label(sk)
    if O.wo2:
        stamp(a, 10)
        lw = uid("ow")
        a.e(f"v_sub_f32 v{D_G}, 1.0, v{D_G}", f"v_sub_f32 v{D_G+1}, 1.0, v{D_G+1}")
        if O.o_poll < 28:
            a.e(f"s_cmp_eq_u32 s{DONE}, 0", f"s_cbranch_scc1 L_olate", "s_waitcnt vmcnt(16)")
            a.label("L_oback")
        else:
            def oloads():
                a.e(f"s_mul_i32 s{SO}, s{SD_RT}, {2*HO_TB}", f"s_mul_i32 s{S_T0}, s{S_W}, {8*1024}", f"s_add_u32 s{SO}, s{SO}, s{S_T0}",
                    f"s_add_u32 s{SO}, s{SO}, {WS_HO + 112*1024}", f"s_add_u32 s{SO+1}, s{SO}, {HO_TB}",
                    f"s_add_u32 s{SO+2}, s{SO}, 4096", f"s_add_u32 s{SO+3}, s{SO+1}, 4096")
                for tb in range(2):
                    for k in range(8):
                        a.e(f"buffer_load_dwordx4 {vr(OBH[k//2]+8*(k%2)+4*tb,4)}, v{V_SH}, {sr(S_WS,4)}, s{SO + 2*(k//4) + tb} offen offset:{(k%4)*1024} {SC1}")
            if O.o_pre < 28:
                a.e("s_waitcnt vmcnt(0)", f"s_mov_b32 s{DONE}, 0")
                poll_check(a, V_PD, "L_onot")
                oloads()
                a.e(f"s_mov_b32 s{DONE}, 1")
                a.label("L_onot")
            else:
                vm.wait(a, wt[35])
        for n in range(28, 36):
            for nb in range(2):
                for u in range(2):
                    a.e(f"ds_read_b64_tr_b16 {vr(AW+8*(n-28)+4*nb+2*u,2)}, v{D_TR+nb} offset:{(n%RW)*2048+u*1024}")
        for nb in range(2):
            for tb in range(2):
                vscale(a, DACC + 32 * nb + 16 * tb, DACC + 32 * nb + 16 * tb, D_G + tb, 16)
        a.e(f"v_lshrrev_b32 v{TT}, 5, v{L}", f"v_mul_u32_u24 v{TT+2}, 272, v{TT+1}", f"v_lshl_add_u32 v{TT+2}, v{TT}, 4, v{TT+2}",
            f"v_add_u32 v{TT+2}, s{SD_LDS}, v{TT+2}")
        if O.o_poll >= 28:
            if O.plite:
                a.e(f"s_mul_i32 s{SO}, s{SD_RT}, {2*HO_TB}", f"s_mul_i32 s{S_T0}, s{S_W}, {8*1024}", f"s_add_u32 s{SO}, s{SO}, s{S_T0}",
                    f"s_add_u32 s{SO}, s{SO}, {WS_HO + 112*1024}", f"s_add_u32 s{SO+1}, s{SO}, {HO_TB}",
                    f"s_add_u32 s{SO+2}, s{SO}, 4096", f"s_add_u32 s{SO+3}, s{SO+1}, 4096", f"s_mov_b32 s{S_SPIN}, 0x10000")
                a.label("L_probe")
                a.e(f"buffer_load_dword v{V_PD}, v{D_PO}, {sr(S_WS,4)}, s{SO} offen {SC1}", f"s_sub_u32 s{S_SPIN}, s{S_SPIN}, 1", f"s_cmp_eq_u32 s{S_SPIN}, 0",
                    "s_cbranch_scc1 L_probed", "s_waitcnt vmcnt(0)", f"v_cmp_eq_u32 vcc, -1, v{V_PD}", "s_and_b64 vcc, vcc, exec", "s_cbranch_vccnz L_probe")
                a.label("L_probed")
                stamp(a, 11)
                if O.stamp == 1:
                    a.e(f"s_mul_i32 s{SO}, s{SD_RT}, {2*HO_TB}", f"s_mul_i32 s{S_T0}, s{S_W}, {8*1024}", f"s_add_u32 s{SO}, s{SO}, s{S_T0}",
                        f"s_add_u32 s{SO}, s{SO}, {WS_HO + 112*1024}", f"s_add_u32 s{SO+1}, s{SO}, {HO_TB}",
                        f"s_add_u32 s{SO+2}, s{SO}, 4096", f"s_add_u32 s{SO+3}, s{SO+1}, 4096")
                def tbloads(tb):
                    for k in range(8):
                        a.e(f"buffer_load_dwordx4 {vr(OBH[k//2]+8*(k%2)+4*tb,4)}, v{V_SH}, {sr(S_WS,4)}, s{SO + 2*(k//4) + tb} offen offset:{(k%4)*1024} {SC1}")
                def vchk(tb, k):
                    b = OBH[k // 2] + 8 * (k % 2) + 4 * tb
                    r = TT + 6 + tb
                    return [f"v_max3_u32 v{r}, v{b}, v{b+1}, " + (f"v{r}" if k else f"v{b+2}"), f"v_max3_u32 v{r}, v{b+2}, v{b+3}, v{r}"]
                a.label("L_oa")
                tbloads(0); tbloads(1)
                for k in range(8):
                    a.e(f"s_waitcnt vmcnt({15 - k})", *vchk(0, k))
                a.e(f"v_cmp_eq_u32 vcc, -1, v{TT+6}", "s_waitcnt lgkmcnt(0)", "s_and_b64 vcc, vcc, exec", "s_cbranch_vccnz L_oa_retry")
                a.label("L_oa_ok")
            else:
                if O.o_pre < 28: a.e(f"s_cmp_lg_u32 s{DONE}, 0", "s_cbranch_scc1 L_ogot")
                poll_spin(a, [D_PO], V_PD, sleep=O.o_sleep)
                oloads()
                if O.o_pre < 28: a.label("L_ogot")
                stamp(a, 11)
                a.e("s_waitcnt lgkmcnt(0)")
        else:
            a.e("s_waitcnt vmcnt(0) lgkmcnt(0)")
            stamp(a, 11)
        def wr(q, g):
            nb, tb = q % 2, q // 2
            a.e(f"ds_write_b128 v{TT+2}, {vr(DACC+32*nb+16*tb+4*g,4)} offset:{tb*32*272 + nb*128 + g*32}")
        for q in range(4):
            nb, tb = q % 2, q // 2
            acc = DACC + 32 * nb + 16 * tb
            for k in range(8):
                if O.o_poll >= 28 and nb == 0 and not O.plite: a.e(f"s_waitcnt vmcnt({15 - 8 * tb - k})")
                if O.plite and q == 2 and k == 0:
                    a.e(f"v_cmp_eq_u32 vcc, -1, v{TT+7}", "s_nop 0", "s_and_b64 vcc, vcc, exec", "s_cbranch_vccnz L_ob_retry")
                    a.label("L_ob_ok")
                a.e(f"{MFMA} {vr(acc,16)}, {vr(AW+8*k+4*nb,4)}, {vr(OBH[k//2]+8*(k%2)+4*tb,4)}, {vr(acc,16)}")
                if O.plite and q == 0: a.e(f"s_waitcnt vmcnt({7 - k})", *vchk(1, k))
                if q and k >= 4:
                    if k == 4: a.e("s_nop 7")
                    wr(q - 1, k - 4)
                if O.red8 and q == 3 and k == 1: a.e("s_waitcnt lgkmcnt(0)", "s_barrier")
        for g in range(4): wr(3, g)
    if O.poison:
        a.e(f"v_sub_f32 v{D_G}, 1.0, v{D_G}", f"v_sub_f32 v{D_G+1}, 1.0, v{D_G+1}")
        vm.wait(a, wt[35])
        for n in range(28, 36):
            for nb in range(2):
                for u in range(2):
                    a.e(f"ds_read_b64_tr_b16 {vr(AW+8*(n-28)+4*nb+2*u,2)}, v{D_TR+nb} offset:{(n%RW)*2048+u*1024}")
        for nb in range(2):
            for tb in range(2):
                for i in range(16):
                    r = DACC + 32 * nb + 16 * tb + i
                    a.e(f"v_mul_f32 v{r}, v{r}, v{D_G+tb}")
        a.e("s_waitcnt lgkmcnt(0)")
        a.e(f"s_mov_b32 s{DONE}, 0", f"s_mov_b32 s{S_SPIN}, 0x10000")
        a.label("L_oround")
        a.e(f"s_mov_b32 s{RDY}, 0")
        for i in range(4):
            sk, bad = uid("oc"), uid("oc")
            a.e(f"s_bitcmp1_b32 s{DONE}, {i}", f"s_cbranch_scc1 {sk}")
            if i == 0: pass
            a.e(f"s_waitcnt vmcnt(0)" if i == 0 or True else "")
            b = OBH[i]
            a.e(f"v_max3_u32 v{TT}, v{b}, v{b+1}, v{b+2}", f"v_max3_u32 v{TT+4}, v{b+3}, v{b+4}, v{b+5}")
            for k in range(6, 14, 4):
                a.e(f"v_max3_u32 v{TT}, v{TT}, v{b+k}, v{b+k+1}", f"v_max3_u32 v{TT+4}, v{TT+4}, v{b+k+2}, v{b+k+3}")
            a.e(f"v_max3_u32 v{TT}, v{TT}, v{b+14}, v{b+15}", f"v_max_u32 v{TT}, v{TT}, v{TT+4}", f"v_cmp_eq_u32 vcc, -1, v{TT}", f"s_cbranch_vccnz {sk}",
                f"s_bitset1_b32 s{RDY}, {i}")
            a.label(sk)
        a.e(f"s_or_b32 s{DONE}, s{DONE}, s{RDY}")
        for i in range(4):
            sk = uid("or")
            a.e(f"s_bitcmp1_b32 s{DONE}, {i}", f"s_cbranch_scc1 {sk}")
            oload(i)
            a.label(sk)
        for i in range(4):
            sk = uid("om")
            a.e(f"s_bitcmp0_b32 s{RDY}, {i}", f"s_cbranch_scc1 {sk}")
            for s_ in range(2):
                for nb in range(2):
                    for tb in range(2):
                        acc = DACC + 32 * nb + 16 * tb
                        a.e(f"{MFMA} {vr(acc,16)}, {vr(AW+8*(2*i+s_)+4*nb,4)}, {vr(OBH[i]+8*s_+4*tb,4)}, {vr(acc,16)}")
            a.label(sk)
        a.e(f"s_cmp_eq_u32 s{DONE}, 15", "s_cbranch_scc1 L_odone", f"s_sub_u32 s{S_SPIN}, s{S_SPIN}, 1", f"s_cmp_lg_u32 s{S_SPIN}, 0", "s_cbranch_scc1 L_oround")
        a.label("L_odone")
        a.e("s_nop 7", "s_nop 7")
    stamp(a, 12)
    if not O.wo2:
        a.e(f"v_lshrrev_b32 v{TT}, 5, v{L}", f"v_mul_u32_u24 v{TT+2}, 272, v{TT+1}", f"v_lshl_add_u32 v{TT+2}, v{TT}, 4, v{TT+2}",
            f"v_add_u32 v{TT+2}, s{SD_LDS}, v{TT+2}")
        for nb in range(2):
            for tb in range(2):
                for g in range(4):
                    a.e(f"ds_write_b128 v{TT+2}, {vr(DACC+32*nb+16*tb+4*g,4)} offset:{tb*32*272 + nb*128 + g*32}")
    red_addr(a, TT, SD_RT, SD_CT)
    a.e("s_waitcnt lgkmcnt(0)", "s_barrier")
    red_pass(a, TT, [1] if O.red8 else [0, 1])
    if O.stamp: a.e(f"s_add_u32 s{S_W}, s{S_W}, 4")
    stamp_end(a)
    a.e("s_endpgm")
    if O.plite:
        a.label("L_oa_retry")
        a.e(f"s_sub_u32 s{S_SPIN}, s{S_SPIN}, 1", f"s_cmp_gt_i32 s{S_SPIN}, 0", "s_waitcnt vmcnt(0)", "s_cbranch_scc1 L_oa", "s_branch L_oa_ok")
        a.label("L_ob_retry")
        tbloads(1)
        a.e("s_waitcnt vmcnt(0)")
        for k in range(8): a.e(*vchk(1, k))
        a.e(f"v_cmp_eq_u32 vcc, -1, v{TT+7}", f"s_sub_u32 s{S_SPIN}, s{S_SPIN}, 1", "s_and_b64 vcc, vcc, exec", "s_cbranch_vccz L_ob_ok",
            f"s_cmp_gt_i32 s{S_SPIN}, 0", "s_cbranch_scc1 L_ob_retry", "s_branch L_ob_ok")
    if O.wo2 and O.o_poll < 28:
        a.label("L_olate")
        poll_spin(a, [D_PO], V_PD, sleep=O.o_sleep)
        ofirst()
        a.e("s_branch L_oback")
    a.label(fin)
    a.e("s_waitcnt vmcnt(0)")
    publish(a, f"s{S_LFL}")
    stamp_end(a)
    a.e("s_endpgm")

def gen(a):
    K = NAME + "_kernel"
    a.label(K)
    a.e("s_cmp_ge_u32 s2, 256", "s_cbranch_scc1 L_exit")
    stamp_start(a)
    prologue(a)
    N = S_N
    a.e(f"s_cmp_eq_u32 s{S_J}, 12", "s_cbranch_scc1 L_B", f"s_cmp_eq_u32 s{S_J}, 14", "s_cbranch_scc1 L_C",
        f"s_cmp_gt_u32 s{S_J}, 12", "s_cbranch_scc1 L_D")
    def paramsA(a, gis):
        nf = 0
        for gi, k in enumerate(O.order_A):
            if gi in gis:
                if k == "QK": a.e(f"s_mov_b32 s{N}, s{S_J}")
                else: a.e(f"s_lshl_b32 s{N}, s{S_J}, 1", f"s_add_u32 s{N}, s{N}, {nf}")
                group_params(a, gi, k, N)
            if k == "F": nf += 1
    ab_program(a, O.order_A, paramsA)
    a.label("L_tail")
    a.e("s_waitcnt lgkmcnt(0)", "s_barrier")
    stamp(a, 7)
    a.e(f"s_cmp_ge_u32 s{S_W}, 4", "s_cbranch_scc1 L_dphase")
    attention(a)
    a.label("L_dphase")
    a.e("s_nop 7", "s_nop 7")
    dphase(a)
    for lab, kinds in (("C", ["V", "V", "S", "F"]), ("D", ["V", "V", "S", "F"])):
        a.label(f"L_{lab}")
        def params(a, gis, kinds=kinds):
            for gi in gis:
                k = kinds[gi]
                if k == "V": a.e(f"s_lshl_b32 s{N}, s{S_J}, 1", f"s_sub_u32 s{N}, s{N}, {11 - gi}")
                if k == "F": a.e(f"s_add_u32 s{N}, s{S_J}, 12")
                group_params(a, gi, k, N)
        ab_program(a, kinds, params, solo="G" if lab == "C" else "H")
        a.e("s_branch L_tail")
    a.label("L_B")
    kb, nb = ["QK", "QK", "F"], [12, 13, 24]
    def paramsB(a, gis):
        for gi in gis:
            a.e(f"s_mov_b32 s{N}, {nb[gi]}"); group_params(a, gi, kb[gi], N)
    ab_program(a, kb, paramsB)
    a.e("s_branch L_tail")
    a.label("L_exit")
    a.e("s_endpgm")
    a.label("L_code_end")

DOC = """;
;  GEMM phase : x rows stationary in registers; wqkv / W_gate / W_up streamed HBM -> LDS (LDS-DMA) and read with
"""

def main(out):
    head = open("cdna_kernels/" + NAME + ".s.ref").read().split("; Override launch")[0]
    K = NAME + "_kernel"
    txt = head + "; @launch grid=(256,1,1) block=(512,1,1) lds=163840\n" + DOC
    txt += '.amdgcn_target "amdgcn-amd-amdhsa--gfx950"\n.text\n'
    a = Asm()
    gen(a)
    if O.dmaf or O.dmad:
        k0 = a.lines.index("L_dphase:"); k1 = a.lines.index("L_C:")
        for i_, l_ in enumerate(a.lines):
            if l_.endswith(" offen lds"):
                f_ = O.dmad if k0 < i_ < k1 else O.dmaf
                if f_: a.lines[i_] = l_[:-4] + f" {f_} lds"
    lines = fix_hazards(a.lines)
    for l_ in ("L_c_loop", "L_fb1", "L_fb2"): check_loop(lines, l_)
    txt += f".globl {K}\n.p2align 8\n.type {K},@function\n" + "\n".join(lines) + "\n"
    txt += f""".section .rodata,"a"
.p2align 6
.amdhsa_kernel {K}
  .amdhsa_next_free_vgpr 256
  .amdhsa_next_free_sgpr 102
  .amdhsa_accum_offset 256
  .amdhsa_group_segment_fixed_size 0
  .amdhsa_kernarg_size 88
  .amdhsa_user_sgpr_count 2
  .amdhsa_user_sgpr_kernarg_segment_ptr 1
  .amdhsa_system_sgpr_workgroup_id_x 1
.end_amdhsa_kernel
"""
    open(out, "w").write(txt)

if __name__ == "__main__":
    args = sys.argv[1:]
    out = "cdna_kernels/" + NAME + ".s"
    for x in args:
        if "=" in x:
            k, v = x.split("=", 1)
            setattr(O, k, eval(v))
        else:
            out = x
    set_rw(); set_pd()
    main(out)
```

```python
import sys, math, struct, re
from asmlib import *

NAME = "gated_mix__mha_block__glu_gated_reglu__prompt"
WS_QK, WS_HO, WS_G, WS_F, WS_END, WS_V, WS_ALL = 0, 0x540000, 0xE40000, 0xE50000, 0xE60000, 0x1000000, 0x1200000
F_T, F_H, F_O = 0, 0x6000, 0xE000
HO_TB = 144 * 1024
V_TB = 57 * 512
V_PAD = 4 * 448 * 16
OCT = 32768
QSCALE = (28 ** -0.5) * math.log2(math.e)
TAGX = 0x5bd1e995
def f2u(x): return struct.unpack("<I", struct.pack("<f", x))[0]

class Opt:
    stamp = False
    bars = False
    diag = None
    pubd_s = 2
    pubd = 3
    prio_attn = 1
    pref_code = 1
    pref_w = True
    mall_at = 5
    pack = 6
    spread = 1
    poll_back = 2
    pref_f = 0
    la1 = 3
    xlast = False
    dsplit = 4
    dq_first = True
    dq_off = 1
    wfirst = False
    wpre = 0
    wpre_e = 2
    sg = 0
    fbig = False
    minla = 2
    pd = 4
    ftouch = -1
    la0 = 2
    hsplit = True
    la = 36
    rot = True
    rotc = True
    rotd = True
    early = True
    hook_back = 9
    delay_d = True
    rw = 13
    rb = 16
    d_pre = 4
    d_go = (1, 5)
    d_first = 0
    o_sleep = 0
    ldm = 1
    lalign = 3
    f16 = False
    il16 = True
    plite = False
    fo_sh = 3
    dmaf = ''
    dmad = ''
    pk = False
    wt_early = True
    prio_d = 0
    prio_ld = 0
    peel = 2
    poison = False
    wo_touch = False
    wo2 = True
    map48 = 2
    outf = ''
    d_il = True
    o_poll = 99
    o_pre = 99
    o_chk = 99
    o_early = 24
    red8 = False
    force_fb = False
    d_pace = 3
    noload = False
    dsleep = 4
    nod = False
    h_touch = False
    order_A = ["QK", "F", "F"]
O = Opt()

S_X, S_WQ, S_WG, S_WU, S_WS, S_WD, S_WO, S_OUT, S_GW, S_KV, S_DBG = 8, 12, 16, 20, 24, 28, 32, 36, 40, 44, 48
S_RB, S_J, S_W, S_W1K, S_T0, S_T1, S_XOFF, S_TB, S_CH, S_W2K = 56, 57, 58, 59, 60, 61, 62, 63, 64, 65
S_COL, S_OB, S_SC, S_N = 66, 70, 74, 7
S_TAG, S_FL, S_SPIN, S_LOB, S_LFL = 76, 78, 52, 53, 54
SC_HEAD, SC_QT, SC_K, SC_V0, SC_V1, SC_IT, SC_O, SC_EX = 82, 83, 84, 86, 87, 88, 89, 92
SD_RT, SD_CT, SD_B0, SD_B1, SD_W, SD_LDS, SD_CP, SD_WB, SD_BB = 82, 83, 84, 85, 86, 87, 88, 89, 90
MFMA = "v_mfma_f32_32x32x16_bf16"
MFMA16 = "v_mfma_f32_16x16x32_bf16"
V_TF1, D_TRN = 208, 248
SC1 = "sc1"

X, ACC, FR, T = 16, 128, 160, 192
V_LANE, V_WQ, V_WF, V_X0, V_X1, V_TR, V_SQ, V_SV, V_SH, V_T0, V_GS = 1, 2, 3, 4, 5, 6, 9, 10, 11, 12, 13
V_ZERO, V_T56 = 14, 15
V_XR, V_XC = 208, 212
V_LWF, V_LW, V_TRX, FB0 = 201, 202, 204, 216
S_W4K = 55
S_CP = 75
ROT7 = 0x0065432106543210
V_PD, V_NONCE, V_FD, V_DUM = 216, 200, 222, 203
CQ, CKV, CO, CS, CP = 16, 48, 128, 192, 224
C_VK, C_VV, C_PA, C_PB, C_MA, C_MB, C_G, C_T = 240, 241, 242, 243, 244, 245, 246, 112
C_ONE, C_VK1, C_VV1, C_QA = 247, 248, 249, 250
DACC, DB, DA = 16, 80, 224
D_VW, D_TR, D_PH, D_PO, D_G, D_T = 240, 242, 244, 245, 246, 208
PD, NUNIT, NFR = 4, 20, 8
def set_pd():
    global PD
    PD = O.pd
L_DREG = 22528
L_XCH = 4 * L_DREG
def set_rw():
    global L_DREG, L_XCH
    L_DREG = max(17408, O.rw * 2048); L_XCH = 4 * L_DREG
    assert L_XCH + 49152 <= 19 * 8192
S_EARLY, SC_BIG, S_OST, S_OFL, S_HD = 91, 87, 94, 95, 93
S_CNT = 3
EXEC_V = 0x0FFFFFFF

def srd(a, dst, src, nbytes):
    a.e(f"s_mov_b32 s{dst}, s{src}", f"s_and_b32 s{dst+1}, s{src+1}, 0xffff",
        f"s_mov_b32 s{dst+2}, {nbytes:#x}", f"s_mov_b32 s{dst+3}, 0x20000")

_uid = [0]
def uid(p):
    _uid[0] += 1
    return f"L_{p}{_uid[0]}"

def stamp_start(a):
    if O.stamp:
        a.e("s_memrealtime s[98:99]", "s_memtime s[100:101]")
def stamp(a, idx):
    if O.stamp == 1:
        a.e("s_memtime s[6:7]", "s_memrealtime s[4:5]", "s_waitcnt lgkmcnt(0)", "s_sub_u32 s6, s6, s100", f"v_writelane_b32 v255, s6, {idx}",
            f"v_writelane_b32 v255, s4, {32+idx}")
def stamp_end(a):
    if O.diag:
        idx, wg, wv = O.diag
        sk, top = uid("dg"), uid("dg")
        a.e("s_waitcnt vmcnt(0)", "s_mov_b64 exec, -1", f"s_cmp_lg_u32 s{S_W}, {wv}", f"s_cbranch_scc1 {sk}")
        if wg >= 0: a.e(f"s_cmp_lg_u32 s2, {wg}", f"s_cbranch_scc1 {sk}")
        if idx == -1: a.e("s_mov_b32 s6, s98")
        elif idx == -2: a.e("s_memrealtime s[6:7]", "s_waitcnt lgkmcnt(0)")
        elif idx == -3: a.e(f"s_add_u32 s6, s98, 500", f"s_mov_b32 s98, s{S_TAG}")
        else: a.e(f"v_readlane_b32 s6, v255, {32+idx}", "s_nop 3")
        a.e("s_sub_u32 s6, s6, s98", "s_mul_i32 s6, s6, 10", "s_add_u32 s6, s6, 6000")
        a.label(top)
        a.e("s_memrealtime s[4:5]", "s_waitcnt lgkmcnt(0)", "s_sub_u32 s4, s4, s98", "s_cmp_lt_u32 s4, s6", f"s_cbranch_scc1 {top}")
        a.label(sk)
        return
    if O.stamp:
        a.e("s_waitcnt vmcnt(0)", "s_memrealtime s[4:5]", "s_memtime s[6:7]", "s_waitcnt lgkmcnt(0)", "s_sub_u32 s6, s6, s100")
        a.e("v_writelane_b32 v255, s6, 29", "v_writelane_b32 v255, s98, 30", "v_writelane_b32 v255, s4, 31")
        a.e("s_mov_b64 exec, -1", "s_lshl_b32 s4, s2, 11", f"s_lshl_b32 s5, s{S_W}, 8", "s_add_u32 s4, s4, s5", f"s_add_u32 s4, s4, {WS_END}")
        a.e(f"v_lshlrev_b32 v254, 2, v{V_LANE}")
        a.e(f"buffer_store_dword v255, v254, {sr(S_WS,4)}, s4 offen")

class Cnt:
    def __init__(self, name, mx): self.n = 0; self.name = name; self.mx = mx
    def issue(self): self.n += 1; return self.n
    def wait(self, a, ticket):
        k = self.n - ticket
        a.e(f"s_waitcnt {self.name}({min(k, self.mx)})")
def Vm(): return Cnt("vmcnt", 63)
def Lg(): return Cnt("lgkmcnt", 15)

def publish(a, soff):
    a.e("s_mov_b64 exec, 1", f"buffer_store_dwordx2 {vr(V_FD,2)}, v{V_ZERO}, {sr(S_WS,4)}, {soff} offen {SC1}", "s_mov_b64 exec, -1")

def poll_check(a, data, fail_label):
    a.e(f"v_cmp_ne_u32 vcc, s{S_TAG}, v{data}", f"v_cmp_ne_u32 s[4:5], s{S_TAG+1}, v{data+1}", "s_or_b64 vcc, vcc, s[4:5]",
        f"s_cbranch_vccnz {fail_label}")

def poll_spin(a, addrs, data, sleep=2):
    top, done = uid("spin"), uid("spind")
    a.e(f"s_mov_b32 s{S_SPIN}, 0x8000")
    a.label(top)
    a.e(f"s_mov_b32 s{S_T0}, {WS_F}")
    for i, ad in enumerate(addrs):
        a.e(f"buffer_load_dwordx2 {vr(data+2*i,2)}, v{ad}, {sr(S_WS,4)}, s{S_T0} offen {SC1}")
    a.e("s_waitcnt vmcnt(0)", "s_mov_b64 s[6:7], 0")
    for i in range(len(addrs)):
        a.e(f"v_cmp_ne_u32 vcc, s{S_TAG}, v{data+2*i}", f"v_cmp_ne_u32 s[4:5], s{S_TAG+1}, v{data+2*i+1}",
            "s_or_b64 s[6:7], s[6:7], vcc", "s_or_b64 s[6:7], s[6:7], s[4:5]")
    a.e("s_cmp_eq_u64 s[6:7], 0", f"s_cbranch_scc1 {done}", f"s_sleep {sleep}" if sleep else "s_nop 0", f"s_sub_u32 s{S_SPIN}, s{S_SPIN}, 1",
        f"s_cmp_lg_u32 s{S_SPIN}, 0", f"s_cbranch_scc1 {top}")
    a.label(done)

def code_pref(a):
    a.e("s_getpc_b64 s[4:5]")
    a.label("L_pc")
    a.e(f"v_cmp_le_u32 vcc, 448, v0", "s_cbranch_vccz L_nocp")
    a.e(f"s_lshr_b32 s6, s2, 3", "s_lshl_b32 s6, s6, 11", f"v_and_b32 v{T}, 15, v0", f"v_lshlrev_b32 v{T}, 7, v{T}", f"v_add_u32 v{T}, s6, v{T}",
        f"v_min_u32 v{T}, L_code_end-L_pc-4, v{T}", f"global_load_dword v{V_DUM}, v{T}, s[4:5]")
    a.label("L_nocp")

def prologue(a):
    L = V_LANE
    A, B, C = T + 1, T + 2, T + 3
    a.e("s_load_dwordx4 s[76:79], s[0:1], 0")
    a.e(f"v_lshrrev_b32 v{V_T0}, 6, v0", f"v_and_b32 v{V_LANE}, 63, v0", f"v_readfirstlane_b32 s{S_W}, v{V_T0}")
    if O.map48 == 1:
        a.e(f"s_bfe_u32 s{S_RB}, s2, 0x20000", f"s_lshl_b32 s{S_RB}, s{S_RB}, 2", f"s_bfe_u32 s{S_T0}, s2, 0x20003", f"s_add_u32 s{S_RB}, s{S_RB}, s{S_T0}",
            f"s_bfe_u32 s{S_J}, s2, 0x10002", f"s_lshr_b32 s{S_T0}, s2, 5", f"s_lshl_b32 s{S_T0}, s{S_T0}, 1", f"s_add_u32 s{S_J}, s{S_J}, s{S_T0}")
    elif O.map48 == 2:
        a.e(f"s_and_b32 s{S_RB}, s2, 1", f"s_lshl_b32 s{S_RB}, s{S_RB}, 3", f"s_bfe_u32 s{S_T0}, s2, 0x30003", f"s_add_u32 s{S_RB}, s{S_RB}, s{S_T0}",
            f"s_bfe_u32 s{S_J}, s2, 0x20001", f"s_lshr_b32 s{S_T0}, s2, 6", f"s_lshl_b32 s{S_T0}, s{S_T0}, 2", f"s_add_u32 s{S_J}, s{S_J}, s{S_T0}")
    else:
        a.e(f"s_and_b32 s{S_RB}, s2, 1", f"s_lshl_b32 s{S_RB}, s{S_RB}, 3", f"s_bfe_u32 s{S_T0}, s2, 0x30003", f"s_add_u32 s{S_RB}, s{S_RB}, s{S_T0}",
            f"s_bfe_u32 s{S_J}, s2, 0x20001", f"s_lshl_b32 s{S_J}, s{S_J}, 2", f"s_lshr_b32 s{S_T0}, s2, 6", f"s_add_u32 s{S_J}, s{S_J}, s{S_T0}")
    a.e(f"s_lshl_b32 s{S_N}, s{S_J}, 1", f"s_sub_u32 s{S_N}, s{S_N}, 11", f"s_cmp_le_u32 s{S_J}, 12", f"s_cselect_b32 s{S_N}, s{S_J}, s{S_N}",
        f"s_lshl_b32 s{S_COL}, s{S_N}, 7", f"s_mul_i32 s{S_XOFF}, s{S_RB}, {128*896}")
    if O.rot == 2 or O.rot == 4 or O.rot == 3:
        tab = {2: 0x0404 << 0, 4: 0x5420, 3: 0x5050}[O.rot]
        tab = {2: 0x4040, 4: 0x5420, 3: 0x3030}[O.rot]
        a.e(f"s_add_u32 s{S_T0}, s{S_J}, s{S_RB}", f"s_and_b32 s{S_T0}, s{S_T0}, 3", f"s_lshl_b32 s{S_T0}, s{S_T0}, 2",
            f"s_lshr_b32 s{S_T0}, {tab:#x}, s{S_T0}", f"s_and_b32 s{S_T0}, s{S_T0}, 15", f"s_lshl_b32 s{S_T0}, s{S_T0}, 2",
            f"s_mov_b32 s4, {ROT7 & 0xffffffff:#x}", f"s_mov_b32 s5, {ROT7 >> 32:#x}", f"s_lshr_b64 s[4:5], s[4:5], s{S_T0}", f"s_mov_b32 s{S_CP}, s4")
    elif O.rot:
        if O.map48 == 1:
            a.e(f"s_and_b32 s{S_T0}, s{S_RB}, 3", f"s_lshl_b32 s{S_T0}, s{S_T0}, 1", f"s_lshr_b32 s{S_T1}, s{S_J}, 1")
        elif O.map48 == 2:
            a.e(f"s_lshr_b32 s{S_T0}, s{S_J}, 2", f"s_lshl_b32 s{S_T0}, s{S_T0}, 1", f"s_and_b32 s{S_T1}, s{S_RB}, 7")
        else:
            a.e(f"s_and_b32 s{S_T0}, s{S_J}, 3", f"s_lshl_b32 s{S_T0}, s{S_T0}, 1", f"s_and_b32 s{S_T1}, s{S_RB}, 7")
        a.e(f"s_add_u32 s{S_T0}, s{S_T0}, s{S_T1}",
            f"s_cmp_ge_u32 s{S_T0}, 7", f"s_cselect_b32 s{S_T1}, 7, 0", f"s_sub_u32 s{S_T0}, s{S_T0}, s{S_T1}", f"s_lshl_b32 s{S_T0}, s{S_T0}, 2",
            f"s_mov_b32 s4, {ROT7 & 0xffffffff:#x}", f"s_mov_b32 s5, {ROT7 >> 32:#x}", f"s_lshr_b64 s[4:5], s[4:5], s{S_T0}", f"s_mov_b32 s{S_CP}, s4")
    else:
        a.e(f"s_mov_b32 s{S_CP}, 0x6543210")
    a.e(f"s_mov_b32 s{S_X+2}, {2048*896:#x}", f"s_mov_b32 s{S_X+3}, 0x20000", f"s_mov_b32 s{S_WQ+2}, {448*2688:#x}", f"s_mov_b32 s{S_WQ+3}, 0x20000")
    a.e(f"v_lshrrev_b32 v{A}, 3, v{L}", f"v_and_b32 v{B}, 7, v{L}")
    a.e(f"s_lshl_b32 s{S_W2K}, s{S_W}, 11", f"s_lshl_b32 s{S_W4K}, s{S_W}, 12")
    a.e(f"v_bfe_u32 v{C}, v{L}, 4, 1", f"v_lshlrev_b32 v{C}, 2, v{C}", f"v_xor_b32 v{T+4}, v{C}, v{B}",
        f"s_lshl_b32 s{S_T0}, s{S_W}, 4", f"v_add_u32 v{T+5}, s{S_T0}, v{A}", f"v_mul_u32_u24 v{V_LW}, 2688, v{T+5}",
        f"v_lshl_add_u32 v{V_LW}, v{T+4}, 4, v{V_LW}")
    a.e(f"v_lshrrev_b32 v{C}, 4, v{L}", f"v_xor_b32 v{C}, v{C}, v{B}", f"v_add_u32 v{V_T0}, s{S_T0}, v{T+5}", f"v_mul_u32_u24 v{V_T0}, 896, v{V_T0}",
        f"v_lshl_add_u32 v{V_X0}, v{C}, 4, v{V_T0}", f"v_xor_b32 v{C}, 4, v{C}", f"v_lshl_add_u32 v{V_X1}, v{C}, 4, v{V_T0}",
        f"v_add_u32 v{V_X1}, {8*896}, v{V_X1}")
    a.e("s_waitcnt lgkmcnt(0)")
    a.e(f"s_mov_b32 s{S_X}, s76", f"s_and_b32 s{S_X+1}, s77, 0xffff", f"s_mov_b32 s{S_WQ}, s78", f"s_and_b32 s{S_WQ+1}, s79, 0xffff")
    stamp(a, 13)
    a.e("s_load_dwordx8 s[80:87], s[0:1], 16", "s_load_dwordx8 s[88:95], s[0:1], 48", "s_load_dwordx2 s[96:97], s[0:1], 80")
    a.e(f"s_cmp_ge_u32 s{S_W}, 4", "s_cbranch_scc1 L_nold")
    for c in range(O.la0):
        dma_g0(a, c, 14 + c)
    a.label("L_nold")
    stamp(a, 0)
    if O.pref_code: code_pref(a)
    a.e("s_waitcnt lgkmcnt(0)")
    srd(a, S_WG, 84, 448 * 3584); srd(a, S_WU, 86, 448 * 3584)
    a.e(f"s_lshl_b32 s{S_W1K}, s{S_W}, 10", f"s_lshr_b32 s{S_CH}, s{S_W}, 2",
        f"s_and_b32 s{S_T0}, s{S_W}, 3", f"s_lshl_b32 s{S_TB}, s{S_RB}, 2", f"s_add_u32 s{S_TB}, s{S_TB}, s{S_T0}")
    if O.f16:
        a.e(f"s_lshl_b32 s{S_T0}, s{S_W}, 1", f"s_and_b32 s{S_T0}, s{S_T0}, 2", f"v_xor_b32 v{T+6}, s{S_T0}, v{T+4}",
            f"s_and_b32 s{S_T0}, s{S_W}, 2", f"v_xor_b32 v{T+7}, s{S_T0}, v{T+4}")
    a.e(f"v_mul_u32_u24 v{V_LWF}, 3584, v{T+5}", f"v_lshl_add_u32 v{V_LWF}, v{T+6 if O.f16 else T+4}, 4, v{V_LWF}")
    a.e(f"s_lshl_b32 s{S_T0}, s{S_W}, 3", f"v_add_u32 v{V_T0}, s{S_T0}, v{A}")
    a.e(f"v_mul_u32_u24 v{V_WQ}, 2688, v{V_T0}", f"v_lshl_add_u32 v{V_WQ}, v{T+4}, 4, v{V_WQ}")
    a.e(f"v_mul_u32_u24 v{V_WF}, 3584, v{V_T0}", f"v_lshl_add_u32 v{V_WF}, v{T+7 if O.f16 else T+4}, 4, v{V_WF}")
    a.e(f"v_lshlrev_b32 v{V_SH}, 4, v{L}")
    prologue2(a)
    a.e(f"v_xor_b32 v{V_TRX}, 64, v{V_TR+1}", f"v_xor_b32 v{V_TRX+1}, 64, v{V_TR+2}")
    if O.pref_f == 1: pref_weights(a, None, [(4, S_WG), (5, S_WU)], True)
    stamp(a, 1)

def koff(dst, p, mul, base):
    return [f"s_bfe_u32 s{dst}, s{S_CP}, {(4 << 16) | (4 * p):#x}", f"s_mul_i32 s{dst}, s{dst}, {mul}", f"s_add_u32 s{dst}, s{dst}, s{base}"]

def dma_g0(a, c, unit, parts="xw"):
    xs, ws = [], []
    if "x" in parts:
        xs = [(f"s_add_u32 m0, s{S_W4K}, {c*16384}", *koff(S_T0, c, 128, S_XOFF), f"buffer_load_dwordx4 v{V_X0}, {sr(S_X,4)}, s{S_T0} offen lds"),
              (f"s_add_u32 m0, s{S_W4K}, {c*16384+1024}", "s_nop 0", f"buffer_load_dwordx4 v{V_X1}, {sr(S_X,4)}, s{S_T0} offen lds"),
              (f"s_add_u32 m0, s{S_W4K}, {c*16384+2048}", f"s_add_u32 s{S_T0}, s{S_T0}, {16*896}", f"buffer_load_dwordx4 v{V_X0}, {sr(S_X,4)}, s{S_T0} offen lds"),
              (f"s_add_u32 m0, s{S_W4K}, {c*16384+3072}", "s_nop 0", f"buffer_load_dwordx4 v{V_X1}, {sr(S_X,4)}, s{S_T0} offen lds")]
    if "w" in parts:
        ws = [(f"s_add_u32 m0, s{S_W2K}, {unit*8192}", *koff(S_T1, c, 64 * 2688, S_COL), f"buffer_load_dwordx4 v{V_LW}, {sr(S_WQ,4)}, s{S_T1} offen lds"),
              (f"s_add_u32 m0, s{S_W2K}, {unit*8192+1024}", f"s_add_u32 s{S_T1}, s{S_T1}, {8*2688}", f"buffer_load_dwordx4 v{V_LW}, {sr(S_WQ,4)}, s{S_T1} offen lds")]
    for g_ in ws + xs: a.e(*g_)
    return len(xs) + len(ws)

class Vm2:
    def __init__(self): self.n = [0, 0]; self.lo_only = False
    def issue(self):
        self.n[0] += 1
        if self.lo_only: return (self.n[0], None)
        self.n[1] += 1; return tuple(self.n)
    def issue_lo(self, k): self.n[0] += k; return (self.n[0], 0)
    def wait(self, a, tickets):
        t = [max(x[i] for x in tickets) for i in range(2)]
        k = [min(63, self.n[i] - t[i]) if t[i] else 63 for i in range(2)]
        if k[0] == k[1]:
            a.e(f"s_waitcnt vmcnt({k[0]})")
        elif k[1] == 63:
            nx = uid("vw")
            a.e(f"s_cmp_ge_u32 s{S_W}, 4", f"s_cbranch_scc1 {nx}", f"s_waitcnt vmcnt({k[0]})")
            a.label(nx)
        elif abs(k[0] - k[1]) <= 2:
            a.e(f"s_waitcnt vmcnt({min(k)})")
        elif k[1] < k[0]:
            nx = uid("vw")
            a.e(f"s_waitcnt vmcnt({k[0]})", f"s_cmp_lt_u32 s{S_W}, 4", f"s_cbranch_scc1 {nx}", f"s_waitcnt vmcnt({k[1]})")
            a.label(nx)
        else:
            nx = uid("vw")
            a.e(f"s_waitcnt vmcnt({k[1]})", f"s_cmp_ge_u32 s{S_W}, 4", f"s_cbranch_scc1 {nx}", f"s_waitcnt vmcnt({k[0]})")
            a.label(nx)

def prologue2(a):
    L = V_LANE
    A, B, C = T + 1, T + 2, T + 3
    srd(a, S_WO, 80, 448 * 896); srd(a, S_WD, 88, 1792 * 896); srd(a, S_GW, 90, 896); srd(a, S_OUT, 92, 2048 * 896)
    srd(a, S_DBG, 94, 256); srd(a, S_WS, 96, WS_ALL); srd(a, S_KV, 96, WS_ALL)
    a.e(f"v_mov_b32 v{V_ZERO}, 0")
    for r_ in range(240, 251): a.e(f"v_mov_b32 v{r_}, 0")
    skip = uid("nn")
    a.e(f"s_or_b32 s{S_T0}, s2, s{S_W}", f"s_cmp_lg_u32 s{S_T0}, 0", f"s_cbranch_scc1 {skip}")
    a.e("s_memrealtime s[4:5]", "s_waitcnt lgkmcnt(0)", "s_or_b32 s4, s4, 1", f"v_mov_b32 v{V_NONCE}, s4",
        "s_mov_b64 exec, 1", f"buffer_store_dword v{V_NONCE}, v{V_ZERO}, {sr(S_DBG,4)}, 0 offen {SC1}", "s_mov_b64 exec, -1")
    a.label(skip)
    a.e(f"v_lshrrev_b32 v{A}, 5, v{L}", f"v_bfe_u32 v{B}, v{L}, 2, 2", f"v_lshl_add_u32 v{C}, v{A}, 3, v{B}",
        f"v_lshlrev_b32 v{V_TR}, 7, v{C}", f"v_lshrrev_b32 v{B}, 1, v{B}", f"v_xor_b32 v{B}, s{S_CH}, v{B}",
        f"v_lshl_add_u32 v{V_TR}, v{B}, 6, v{V_TR}", f"v_bfe_u32 v{B}, v{L}, 4, 1", f"v_lshl_add_u32 v{V_TR}, v{B}, 5, v{V_TR}",
        f"v_and_b32 v{B}, 3, v{L}", f"v_lshl_add_u32 v{V_TR}, v{B}, 3, v{V_TR}",
        f"v_add_u32 v{V_TR+1}, 0x10000, v{V_TR}", f"v_add_u32 v{V_TR+2}, 0x20000, v{V_TR}")
    a.e(f"v_and_b32 v{B}, 31, v{L}", f"s_and_b32 s{S_T0}, s{S_W}, 3", f"s_lshl_b32 s{S_T0}, s{S_T0}, 5",
        f"v_add_u32 v{C}, s{S_T0}, v{B}", f"v_lshlrev_b32 v{V_T0}, 7, v{C}", f"v_bfe_u32 v{V_GS}, v{L}, 1, 3",
        f"v_xor_b32 v{V_GS}, v{V_GS}, v{A}")
    for e in range(4):
        a.e(f"v_xor_b32 v{V_XR+e}, {2*e}, v{V_GS}", f"v_lshl_add_u32 v{V_XR+e}, v{V_XR+e}, 4, v{V_T0}")
    a.e(f"s_lshl_b32 s{S_T0}, s{S_TB}, 5", f"v_add_u32 v{C}, s{S_T0}, v{B}", f"v_lshlrev_b32 v{V_SQ}, 4, v{C}",
        f"v_lshl_add_u32 v{V_SQ}, v{A}, 15, v{V_SQ}", f"v_lshlrev_b32 v{V_GS}, 2, v{C}")
    a.e(f"v_mul_u32_u24 v{V_SV}, 7168, v{A}", f"v_lshl_add_u32 v{V_SV}, v{B}, 4, v{V_SV}")

def role_c(a):
    L = V_LANE
    A, B, C = 204, 205, 206
    a.e(f"v_lshrrev_b32 v{A}, 5, v{L}", f"v_and_b32 v{B}, 31, v{L}")
    a.e(f"s_and_b32 s{S_T0}, s2, 7", f"s_lshr_b32 s{S_T1}, s2, 3")
    a.e(f"s_and_b32 s{SC_HEAD}, s{S_T1}, 1", f"s_lshl_b32 s{SC_HEAD}, s{SC_HEAD}, 3", f"s_add_u32 s{SC_HEAD}, s{SC_HEAD}, s{S_T0}",
        f"s_lshr_b32 s{SC_QT}, s{S_T1}, 1", f"s_mul_i32 s{SC_O}, s{SC_HEAD}, 7", f"s_lshr_b32 s{SC_O}, s{SC_O}, 1")
    a.e(f"v_lshlrev_b32 v{C_VK}, 4, v{B}", f"v_lshl_add_u32 v{C_VK}, v{A}, 15, v{C_VK}")
    a.e(f"s_mul_i32 s{S_T0}, s{SC_HEAD}, 448", f"v_add_u32 v{C_VV}, s{S_T0}, v{V_SV}")
    a.e(f"s_mov_b32 s{SC_BIG}, {f2u(2.0**30):#x}")
    a.e(f"s_add_u32 s4, s{SC_O}, 56", "s_lshl_b32 s4, s4, 15", f"s_lshl_b32 s5, s{S_W}, 13", "s_add_u32 s4, s4, s5",
        f"s_mov_b32 s{SC_K+1}, s4", f"v_add_u32 v{C_VK1}, s4, v{C_VK}", f"v_mov_b32 v{C_QA}, v{C_VK}", f"v_mov_b32 v{C_VK}, v{C_VK1}",
        f"v_add_u32 v{C_VK1}, {2*OCT}, v{C_VK1}")
    a.e(f"v_add_u32 v{C_VV1}, 14336, v{C_VV}", f"v_lshlrev_b32 v{C}, 4, v{B}", f"v_add_u32 v{C}, {V_PAD - 28*16}, v{C}", f"v_cmp_gt_u32 vcc, 28, v{B}",
        f"v_cndmask_b32 v{C_VV}, v{C}, v{C_VV}, vcc", f"v_cndmask_b32 v{C_VV1}, v{C}, v{C_VV1}, vcc")
    a.e(f"s_mul_i32 s4, s{S_W}, {16*V_TB}", f"s_add_u32 s4, s4, {WS_V}", f"v_add_u32 v{C_VV}, s4, v{C_VV}", f"v_add_u32 v{C_VV1}, s4, v{C_VV1}")
    if O.rotc:
        a.e(f"s_lshl_b32 s{SC_K}, s{SC_QT}, 9")
    else:
        a.e(f"s_mov_b32 s{SC_K}, 0")
    a.e(f"s_mul_i32 s{SC_V0}, s{SC_K}, 57")
    a.e(f"s_and_b32 s{S_T0}, s{SC_HEAD}, 1", f"v_cmp_le_u32 vcc, s{S_T0}, v{A}", f"v_cndmask_b32 v{C_MA}, 0, -1, vcc",
        f"v_cmp_ge_u32 vcc, s{S_T0}, v{A}", f"v_cndmask_b32 v{C_MB}, 0, -1, vcc")
    a.e(f"s_add_u32 s4, s{SC_O}, 56", "s_lshr_b32 s4, s4, 2", f"s_add_u32 s5, s{SC_O}, 59", "s_lshr_b32 s5, s5, 2",
        f"s_mul_i32 s6, s{SC_HEAD}, 28", "s_add_u32 s7, s6, 27", "s_lshr_b32 s6, s6, 5", "s_lshr_b32 s7, s7, 5",
        "s_add_u32 s6, s6, 28", "s_add_u32 s7, s7, 28")
    a.e(f"v_mov_b32 v{C_PA}, s7", f"v_mov_b32 v{C}, s6", f"v_cmp_gt_u32 vcc, 48, v{L}", f"v_cndmask_b32 v{C_PA}, v{C_PA}, v{C}, vcc",
        f"v_mov_b32 v{C}, s5", f"v_cmp_gt_u32 vcc, 32, v{L}", f"v_cndmask_b32 v{C_PA}, v{C_PA}, v{C}, vcc",
        f"v_mov_b32 v{C}, s4", f"v_cmp_gt_u32 vcc, 16, v{L}", f"v_cndmask_b32 v{C_PA}, v{C_PA}, v{C}, vcc")
    a.e(f"v_and_b32 v{C}, 15, v{L}", f"v_lshl_add_u32 v{C_PA}, v{C_PA}, 6, v{C}", f"s_lshl_b32 s4, s{S_W}, 4",
        f"v_add_u32 v{C_PA}, s4, v{C_PA}", f"v_lshlrev_b32 v{C_PA}, 3, v{C_PA}")
    a.e(f"s_lshr_b32 s4, s{SC_O}, 2", f"s_add_u32 s5, s{SC_O}, 3", "s_lshr_b32 s5, s5, 2", f"s_lshl_b32 s6, s{SC_QT}, 2")
    a.e(f"v_and_b32 v{C}, 3, v{L}", f"v_add_u32 v{C}, s6, v{C}")
    a.e(f"v_mov_b32 v{C_PB}, s5", f"v_mov_b32 v{V_T0}, s4", f"v_cmp_gt_u32 vcc, 4, v{L}", f"v_cndmask_b32 v{C_PB}, v{C_PB}, v{V_T0}, vcc",
        f"v_lshl_add_u32 v{C_PB}, v{C_PB}, 6, v{C}", f"v_lshlrev_b32 v{C_PB}, 3, v{C_PB}")
    a.e(f"v_lshlrev_b32 v{C}, 9, v{C}", f"v_add_u32 v{C}, {F_H + 56*8}, v{C}", f"v_cmp_gt_u32 vcc, 8, v{L}",
        f"v_cndmask_b32 v{C_PB}, v{C}, v{C_PB}, vcc")

def role_d(a):
    L = V_LANE
    A, B, C = 204, 205, 206
    done = uid("rdone")
    a.e(f"s_cmp_lt_u32 s{S_W}, 4", f"s_cbranch_scc1 {done}")
    a.e(f"v_lshrrev_b32 v{A}, 5, v{L}", f"v_and_b32 v{B}, 31, v{L}")
    a.e(f"s_and_b32 s{S_T0}, s2, 7", f"s_lshr_b32 s{S_T1}, s2, 3")
    a.e(f"s_mul_i32 s{SD_RT}, s{S_T1}, 37", f"s_lshr_b32 s{SD_RT}, s{SD_RT}, 8",
        f"s_mul_i32 s{SD_CT}, s{SD_RT}, 7", f"s_sub_u32 s{SD_CT}, s{S_T1}, s{SD_CT}", f"s_lshl_b32 s{S_T0}, s{S_T0}, 2",
        f"s_add_u32 s{SD_RT}, s{SD_RT}, s{S_T0}", f"s_and_b32 s{S_T0}, s{S_W}, 3", f"s_mul_i32 s{SD_LDS}, s{S_T0}, {L_DREG}")
    a.e(f"v_lshrrev_b32 v{C}, 3, v{L}", f"v_mul_u32_u24 v{D_VW}, 896, v{C}", f"v_and_b32 v{C}, 7, v{L}", f"v_bfe_u32 v{V_T0}, v{L}, 4, 1",
        f"v_lshlrev_b32 v{V_T0}, 2, v{V_T0}", f"v_xor_b32 v{C}, v{C}, v{V_T0}", f"v_lshl_add_u32 v{D_VW}, v{C}, 4, v{D_VW}")
    a.e(f"v_bfe_u32 v{C}, v{L}, 2, 2", f"v_lshl_add_u32 v{V_T0}, v{A}, 2, v{C}", f"v_lshlrev_b32 v{D_TR}, 7, v{V_T0}",
        f"v_lshrrev_b32 v{C}, 1, v{C}", f"v_lshl_add_u32 v{D_TR}, v{C}, 6, v{D_TR}", f"v_bfe_u32 v{C}, v{L}, 4, 1",
        f"v_lshl_add_u32 v{D_TR}, v{C}, 5, v{D_TR}", f"v_and_b32 v{C}, 3, v{L}", f"v_lshl_add_u32 v{D_TR}, v{C}, 3, v{D_TR}",
        f"v_xor_b32 v{D_TR+1}, 64, v{D_TR}", f"v_add_u32 v{D_TR}, s{SD_LDS}, v{D_TR}", f"v_add_u32 v{D_TR+1}, s{SD_LDS}, v{D_TR+1}")
    if O.f16: a.e(f"v_lshl_add_u32 v{D_TRN}, v{A}, 9, v{D_TR}", f"v_lshl_add_u32 v{D_TRN+1}, v{A}, 9, v{D_TR+1}")
    if O.rotd:
        a.e(f"s_and_b32 s4, s{SD_RT}, 3", "s_lshl_b32 s4, s4, 1", f"s_add_u32 s6, s4, s{SD_CT}", "s_cmp_ge_u32 s6, 7", "s_cselect_b32 s4, 7, 0",
            "s_sub_u32 s6, s6, s4", "s_lshl_b32 s6, s6, 2", f"s_mov_b32 s4, {ROT7 & 0xffffffff:#x}", f"s_mov_b32 s5, {ROT7 >> 32:#x}",
            "s_lshr_b64 s[4:5], s[4:5], s6", f"s_mov_b32 s{SD_CP}, s4")
    else:
        a.e(f"s_mov_b32 s{SD_CP}, 0x6543210")
    a.e(f"s_mul_i32 s{SD_WB}, s{S_T0}, {28*16*896}", f"s_lshl_b32 s4, s{SD_CT}, 7", f"s_add_u32 s{SD_WB}, s{SD_WB}, s4")
    a.e(f"s_mul_i32 s4, s{S_T0}, 14", f"v_add_u32 v{C}, s4, v{B}", f"v_cmp_gt_u32 vcc, 14, v{B}", f"v_cndmask_b32 v{C}, 56, v{C}, vcc",
        f"s_lshl_b32 s5, s{SD_RT}, 1", f"v_add_u32 v{V_T0}, s5, v{A}", f"v_lshl_add_u32 v{D_PH}, v{V_T0}, 6, v{C}",
        f"v_lshlrev_b32 v{D_PH}, 3, v{D_PH}", f"v_add_u32 v{D_PH}, {F_H}, v{D_PH}")
    a.e(f"s_lshl_b32 s4, s{S_T0}, 2", f"v_and_b32 v{C}, 3, v{L}", f"v_add_u32 v{C}, s4, v{C}", f"v_lshl_add_u32 v{D_PO}, v{V_T0}, 4, v{C}",
        f"v_lshlrev_b32 v{D_PO}, {O.fo_sh}, v{D_PO}", f"v_add_u32 v{D_PO}, {F_O if O.fo_sh == 3 else 0x11D0000 - WS_F}, v{D_PO}")
    a.label(done)

def pref_weights(a, vm, which, force=False):
    if not O.pref_w and not force: return
    end = uid("pw")
    a.e(f"s_lshl_b32 s{S_T0}, s2, 13", f"v_lshlrev_b32 v{T}, 7, v{V_LANE}")
    for w, s in which:
        nx = uid("pwn")
        a.e(f"s_cmp_lg_u32 s{S_W}, {w}", f"s_cbranch_scc1 {nx}", f"buffer_load_dword v{V_DUM}, v{T}, {sr(s,4)}, s{S_T0} offen")
        a.label(nx)

def group_params(a, gi, kind, nreg):
    col, ob, fl = S_COL + gi, S_OB + gi, S_FL + gi
    if kind == "G":
        a.e(f"s_lshl_b32 s{fl}, s{S_TB}, 9", f"s_add_u32 s{fl}, s{fl}, {WS_F + F_H + 56*8}")
        return
    if kind == "S":
        a.e(f"s_mov_b32 s{col}, {14*128}", f"s_sub_u32 s{S_T1}, s{S_J}, 13", f"s_lshr_b32 s{S_T1}, s{S_T1}, 1", f"s_add_u32 s{S_T1}, s{S_T1}, 28")
        a.e(f"s_lshl_b32 s{ob}, s{S_T1}, 9", f"s_mul_i32 s{S_T0}, s{S_TB}, {V_TB}", f"s_add_u32 s{ob}, s{ob}, s{S_T0}",
            f"s_add_u32 s{ob}, s{ob}, {WS_V - 14*1024}")
        a.e(f"s_lshl_b32 s{fl}, s{S_T1}, 6", f"s_add_u32 s{fl}, s{fl}, s{S_TB}", f"s_lshl_b32 s{fl}, s{fl}, 3", f"s_add_u32 s{fl}, s{fl}, {WS_F + F_T}")
        a.e(f"s_lshl_b32 s{S_T0}, s{S_TB}, 9", f"s_add_u32 s{S_T0}, s{S_T0}, {WS_F + F_H + 56*8}", f"s_cmp_ge_u32 s{S_W}, 4",
            f"s_cselect_b32 s{fl}, s{S_T0}, s{fl}")
        return
    if False:
        pass
    else:
        a.e(f"s_lshl_b32 s{col}, s{nreg}, 7", f"s_lshl_b32 s{S_T1}, s{nreg}, 1")
        if gi: a.e(f"s_add_u32 s{S_T1}, s{S_T1}, s{S_CH}")
    if kind == "QK":
        a.e(f"s_lshl_b32 s{ob}, s{S_T1}, 17")
        a.e(f"s_cmp_lt_u32 s{nreg}, 7", f"s_cselect_b32 s{S_SC}, {f2u(QSCALE):#x}, 1.0")
    elif kind == "V":
        a.e(f"s_lshl_b32 s{ob}, s{S_T1}, 9", f"s_mul_i32 s{S_T0}, s{S_TB}, {V_TB}", f"s_add_u32 s{ob}, s{ob}, s{S_T0}",
            f"s_add_u32 s{ob}, s{ob}, {WS_V - 14*1024}")
    elif kind == "F":
        a.e(f"s_lshl_b32 s{ob}, s{S_T1}, 11", f"s_mul_i32 s{S_T0}, s{S_TB}, {HO_TB}", f"s_add_u32 s{ob}, s{ob}, s{S_T0}",
            f"s_add_u32 s{ob}, s{ob}, {WS_HO}")
    if kind == "F":
        a.e(f"s_lshl_b32 s{fl}, s{S_TB}, 6", f"s_add_u32 s{fl}, s{fl}, s{S_T1}", f"s_lshl_b32 s{fl}, s{fl}, 3", f"s_add_u32 s{fl}, s{fl}, {WS_F + F_H}")
    else:
        a.e(f"s_lshl_b32 s{fl}, s{S_T1}, 6", f"s_add_u32 s{fl}, s{fl}, s{S_TB}", f"s_lshl_b32 s{fl}, s{fl}, 3", f"s_add_u32 s{fl}, s{fl}, {WS_F + F_T}")

def vadd(a, d, x, y, n):
    if O.pk:
        for i in range(0, n, 2): a.e(f"v_pk_add_f32 {vr(d+i,2)}, {vr(x+i,2)}, {vr(y+i,2)}")
    else:
        for i in range(n): a.e(f"v_add_f32 v{d+i}, v{x+i}, v{y+i}")
def vscale(a, d, x, sc, n):
    if O.pk:
        hi = sc % 2
        for i in range(0, n, 2): a.e(f"v_pk_mul_f32 {vr(d+i,2)}, {vr(x+i,2)}, {vr(sc-hi,2)} op_sel:[0,{hi}] op_sel_hi:[1,{hi}]")
    else:
        for i in range(n): a.e(f"v_mul_f32 v{d+i}, v{x+i}, v{sc}")

def epi_F(a, vm, ob, T=T):
    A0, A1 = ACC, ACC + 16
    for i in range(16):
        a.e(f"v_max_f32 v{A0+i}, 0, v{A0+i}")
    if O.pk:
        for i in range(0, 16, 2): a.e(f"v_pk_mul_f32 {vr(A0+i,2)}, {vr(A0+i,2)}, {vr(A1+i,2)}")
    else:
        for i in range(16):
            a.e(f"v_mul_f32 v{A0+i}, v{A0+i}, v{A1+i}")
    for k in range(8):
        a.e(f"v_cvt_pk_bf16_f32 v{T+k}, v{A0+2*k}, v{A0+2*k+1}")
        if k == (5 if O.f16 else 3):
            if O.f16: a.e(f"v_permlane16_swap_b32 v{T}, v{T+2}", f"v_permlane16_swap_b32 v{T+1}, v{T+3}")
            a.e(f"buffer_store_dwordx4 {vr(T,4)}, v{V_SH}, {sr(S_WS,4)}, s{ob} offen {SC1}"); vm.issue()
    if O.f16: a.e(f"v_permlane16_swap_b32 v{T+4}, v{T+6}", f"v_permlane16_swap_b32 v{T+5}, v{T+7}")
    a.e(f"buffer_store_dwordx4 {vr(T+4,4)}, v{V_SH}, {sr(S_WS,4)}, s{ob} offen offset:1024 {SC1}")
    return vm.issue()

def epilogue(a, vm, gi, kind, A0=ACC):
    ob = S_OB + gi
    if kind == "QK":
        if O.pk:
            a.e(f"v_mov_b32 v{V_T0}, s{S_SC}")
            vscale(a, A0, A0, V_T0, 16)
        else:
            for i in range(16):
                a.e(f"v_mul_f32 v{A0+i}, s{S_SC}, v{A0+i}")
        for k in range(8):
            a.e(f"v_cvt_pk_bf16_f32 v{T+k}, v{A0+2*k}, v{A0+2*k+1}")
        for p in range(2):
            a.e(f"v_permlane32_swap_b32 v{T+4*p}, v{T+4*p+2}", f"v_permlane32_swap_b32 v{T+4*p+1}, v{T+4*p+3}")
            a.e(f"s_add_u32 s{S_T0}, s{ob}, {2*p*OCT}")
            a.e(f"buffer_store_dwordx4 {vr(T+4*p,4)}, v{V_SQ}, {sr(S_WS,4)}, s{S_T0} offen {SC1}"); t = vm.issue()
        return t
    if kind in ("V", "H"):
        for k in range(8):
            a.e(f"v_cvt_pk_bf16_f32 v{T+k}, v{A0+2*k}, v{A0+2*k+1}")
            if k == 3:
                a.e(f"buffer_store_dwordx4 {vr(T,4)}, v{V_SV}, {sr(S_WS,4)}, s{ob} offen {SC1}"); vm.issue()
        a.e(f"s_add_u32 s{S_T0}, s{ob}, 14336")
        a.e(f"buffer_store_dwordx4 {vr(T+4,4)}, v{V_SV}, {sr(S_WS,4)}, s{S_T0} offen {SC1}"); vm.issue()
        a.e(f"v_cmp_gt_u32 vcc, 4, v{V_LANE}", f"v_mov_b32 v{V_T0}, 0x3f803f80", f"v_lshlrev_b32 v207, 2, v{V_LANE}", f"s_mul_i32 s{S_T0}, s{S_TB}, {V_TB}",
            f"v_cndmask_b32 v{V_T0}, 0, v{V_T0}, vcc", f"s_add_u32 s{S_T0}, s{S_T0}, {WS_V + V_PAD}", "s_mov_b64 exec, 0xffff",
            f"buffer_store_dword v{V_T0}, v207, {sr(S_WS,4)}, s{S_T0} offen {SC1}", "s_mov_b64 exec, -1")
        return vm.issue()
    if kind == "F":
        return epi_F(a, vm, ob)
    a.e(f"v_mul_f32 v{T}, {f2u(-math.log2(math.e)):#x}, v{A0}", f"v_exp_f32 v{T}, v{T}", f"v_add_f32 v{T}, 1.0, v{T}",
        f"v_rcp_f32 v{T}, v{T}", f"s_mov_b32 s{S_T0}, {WS_G}", "s_nop 0")
    a.e(f"buffer_store_dword v{T}, v{V_GS}, {sr(S_WS,4)}, s{S_T0} offen {SC1}")
    return vm.issue()

def get_tag(a):
    ok, top = uid("tagok"), uid("tagspin")
    a.e(f"v_readfirstlane_b32 s{S_TAG}, v{V_NONCE}", f"s_cmp_lg_u32 s{S_TAG}, 0", f"s_cbranch_scc1 {ok}", f"s_mov_b32 s{S_SPIN}, 0x8000")
    a.label(top)
    a.e(f"buffer_load_dword v{V_NONCE}, v{V_ZERO}, {sr(S_DBG,4)}, 0 offen {SC1}", "s_waitcnt vmcnt(0)",
        f"v_readfirstlane_b32 s{S_TAG}, v{V_NONCE}", f"s_cmp_lg_u32 s{S_TAG}, 0", f"s_cbranch_scc1 {ok}", "s_sleep 2",
        f"s_sub_u32 s{S_SPIN}, s{S_SPIN}, 1", f"s_cmp_lg_u32 s{S_SPIN}, 0", f"s_cbranch_scc1 {top}")
    a.label(ok)
    a.e(f"s_xor_b32 s{S_TAG+1}, s{S_TAG}, {TAGX:#x}", f"v_mov_b32 v{V_FD}, s{S_TAG}", f"v_mov_b32 v{V_FD+1}, s{S_TAG+1}")

def wd_piece(n, h):
    L_ = []
    if n % 4 == 0 and h == 0:
        L_ += [f"s_bfe_u32 s{SD_W}, s{SD_CP}, {(4 << 16) | n:#x}", f"s_mul_i32 s{SD_W}, s{SD_W}, {64*896}", f"s_add_u32 s{SD_W}, s{SD_W}, s{SD_WB}"]
    return L_ + [f"s_add_u32 m0, s{SD_LDS}, {n*2048 + h*1024}", f"s_add_u32 s97, s{SD_W}, {(16*(n%4) + 8*h)*896}",
                 f"buffer_load_dwordx4 v{D_VW}, {sr(S_WD,4)}, s97 offen lds"]

def ab_program(a, kinds, params, solo=None):
    vm, lg = Vm2(), Lg()
    stages = []
    for gi, kind in enumerate(kinds):
        if gi == 0: continue
        if kind == "F":
            for k0, nk in (O.fbig if O.fbig else [(4 * c, 4) for c in range(7)]):
                stages.append(dict(gi=gi, k0=k0, nk=nk, kind=kind, nu=nk // 2))
        elif kind == "S" and solo == "G":
            stages.append(dict(gi=gi, k0=0, nk=28, kind=kind, nu=1))
        else:
            for k0, nk in ((0, 8), (8, 8), (16, 8), (24, 4)):
                stages.append(dict(gi=gi, k0=k0, nk=nk, kind=kind, nu=nk // 4))
    mf = []
    for si, st in enumerate(stages):
        st["first"] = len(mf)
        for s in range(st["k0"], st["k0"] + st["nk"]):
            for tile in range(2 if st["kind"] == "F" else 1):
                mf.append(dict(si=si, s=s, tile=tile, kind=st["kind"], gi=st["gi"]))
    g0 = [dict(u=14 + c if c < 6 else 14) for c in range(7)]
    for c in range(O.la0):
        g0[c]["t"] = vm.issue_lo(6)
    free = []
    state = dict(next_dma=0, tag=False, nonce=None)
    pend, dq, wq = [], [], []
    def issue_dma(si, lo):
        st = stages[si]
        gi, kind = st["gi"], st["kind"]
        if O.wpre:
            NS = len(stages)
            if si >= NS - 3: free.sort(key=lambda q: (not 13 <= q <= 18))
            elif si >= NS - 9: free.sort(key=lambda q: (q >= 13))
            if si >= NS - 3: assert all(13 <= q <= 18 for q in free[:st["nu"]]), (kinds, si, free)
        elif si >= len(stages) - 2 and 19 in free[:st["nu"]] and len(free) > st["nu"]:
            free.remove(19); free.append(19)
        st["u"] = [free.pop(0) for _ in range(st["nu"])]
        u = st["u"]
        c = st["k0"] // 4
        if lo:
            if kind == "F":
              for p_ in range(st["nk"] // 4):
                a.e(*koff(S_T0, c + p_, 64 * 3584, S_COL + gi), f"s_add_u32 s{S_T1}, s{S_T0}, {8*3584}")
                for q, w in enumerate((S_WG, S_WU)):
                    a.e(f"s_add_u32 m0, s{S_W2K}, {u[2*p_+q]*8192}", "s_nop 0", f"buffer_load_dwordx4 v{V_LWF}, {sr(w,4)}, s{S_T0} offen lds")
                    a.e(f"s_add_u32 m0, s{S_W2K}, {u[2*p_+q]*8192+1024}", "s_nop 0", f"buffer_load_dwordx4 v{V_LWF}, {sr(w,4)}, s{S_T1} offen lds")
            else:
                for q in range(st["nu"]):
                    a.e(f"s_add_u32 m0, s{S_W2K}, {u[q]*8192}", *koff(S_T0, c + q, 64 * 2688, S_COL + gi), f"buffer_load_dwordx4 v{V_LW}, {sr(S_WQ,4)}, s{S_T0} offen lds")
                    a.e(f"s_add_u32 m0, s{S_W2K}, {u[q]*8192+1024}", f"s_add_u32 s{S_T0}, s{S_T0}, {8*2688}", f"buffer_load_dwordx4 v{V_LW}, {sr(S_WQ,4)}, s{S_T0} offen lds")
            st["t"] = vm.issue_lo(2 * st["nu"])
        elif kind == "F":
            for p_ in range(st["nk"] // 4):
                a.e(f"s_add_u32 m0, s{S_W1K}, {u[2*p_]*8192}", *koff(96, c + p_, 64 * 3584, S_COL + gi))
                a.e(f"buffer_load_dwordx4 v{V_WF}, {sr(S_WG,4)}, s96 offen lds"); vm.issue()
                a.e(f"s_add_u32 m0, s{S_W1K}, {u[2*p_+1]*8192}", "s_nop 0")
                a.e(f"buffer_load_dwordx4 v{V_WF}, {sr(S_WU,4)}, s96 offen lds"); st["t"] = vm.issue()
        else:
            for q in range(st["nk"] // 4 if not (kind == "S" and solo == "G") else 0):
                a.e(f"s_add_u32 m0, s{S_W1K}, {u[q]*8192}", *koff(S_T0, c + q, 64 * 2688, S_COL + gi))
                a.e(f"buffer_load_dwordx4 v{V_WQ}, {sr(S_WQ,4)}, s{S_T0} offen lds"); st["t"] = vm.issue()
            if kind == "S" and solo == "G":
                state["gu"] = st["u"][0]
                a.e(f"s_and_b32 s{S_T0}, s{S_CP}, 15", f"s_lshl_b32 s{S_T0}, s{S_T0}, 7", f"v_add_u32 v{V_T0}, s{S_T0}, v{V_SH}",
                    f"v_subrev_u32 v207, 896, v{V_T0}", f"v_min_u32 v{V_T0}, v{V_T0}, v207")
                a.e(f"s_add_u32 m0, s{S_W1K}, {state['gu']*8192}", "s_nop 0")
                a.e(f"buffer_load_dwordx4 v{V_T0}, {sr(S_GW,4)}, 0 offen lds"); st["t"] = vm.issue()
    def fill(pos, lo=False, si=-9):
        if si >= 0 and stages[si]["kind"] == "S": pos += 8 if solo == "H" else 24
        while state["next_dma"] < len(stages):
            st = stages[state["next_dma"]]
            if len(free) < st["nu"] or (st["first"] - pos > O.la and state["next_dma"] > si + O.minla) or (lo and st["kind"] == "S"):
                break
            issue_dma(state["next_dma"], lo); state["next_dma"] += 1
    def xreads(c):
        for q in range(4):
            a.e(f"v_add_u32 v{V_XC+q}, {c*16384}, v{V_XR+q}")
        return [f"ds_read_b128 {vr(X+16*c+4*q,4)}, v{V_XC+q}" for q in range(4)]
    def xconv(pairs):
        for S2 in pairs:
            for i in range(4): a.e(f"v_permlane16_swap_b32 v{X+8*S2+i}, v{X+8*S2+4+i}")
    cv0 = O.f16 and kinds[1] == "F"
    def g0_mfma(c, i):
        s_, t_ = 4 * c + i // 2, i % 2
        f = (FB0 if c % 2 == 0 else FR) + 4 * i
        acc = ACC + 16 * t_
        cin = "0" if s_ == 0 else vr(acc, 16)
        if kinds[0] == "V":
            return f"{MFMA} {vr(acc,16)}, {vr(X+4*s_,4)}, {vr(f,4)}, {cin}"
        return f"{MFMA} {vr(acc,16)}, {vr(f,4)}, {vr(X+4*s_,4)}, {cin}"
    params(a, range(len(kinds)))
    a.e(f"s_mov_b32 s{S_LOB}, s{S_OB+len(kinds)-1}", f"s_mov_b32 s{S_LFL}, s{S_FL+len(kinds)-1}")
    lc, lj = uid("g0c"), uid("g0j")
    a.e(f"s_cmp_ge_u32 s{S_W}, 4", f"s_cbranch_scc1 {lc}")
    if O.prio_ld: a.e(f"s_setprio {O.prio_ld}")
    for c in range(7):
        a.e(f"s_waitcnt vmcnt({vm.n[0] - g0[c]['t'][0]}) lgkmcnt(4)", "s_barrier")
        if O.bars == 1: stamp(a, 16 + c)
        if c >= 2:
            if c != 2: free.append(g0[c-2]["u"])
            free.extend([2 * (c - 2), 2 * (c - 2) + 1])
        if not O.xlast: a.e(*xreads(c))
        for q in range(7):
            if "t" not in g0[q] and q <= c + O.la1 and (q < 6 or c >= 2):
                g0[q]["t"] = vm.issue_lo(dma_g0(a, q, g0[q]["u"]))
        if "t" in g0[6]: fill(8 * (c - 7), lo=True)
        if O.xlast: a.e(*xreads(c))
    if O.prio_ld: a.e("s_setprio 0")
    a.e(f"s_branch {lj}")
    a.label(lc)
    def ftouch():
        a.e(f"s_and_b32 s{S_T0}, s{S_RB}, 7", f"s_lshl_b32 s{S_T0}, s{S_T0}, 3", f"v_lshrrev_b32 v{T}, 3, v{V_LANE}", f"v_min_u32 v{T}, 6, v{T}",
            f"v_lshlrev_b32 v{T}, 6, v{T}", f"v_and_b32 v{T+1}, 7, v{V_LANE}", f"v_add3_u32 v{T}, v{T}, v{T+1}, s{S_T0}")
        for wv, (sd, stride, gi) in enumerate([(S_WG, 3584, 1), (S_WU, 3584, 1)] if kinds[1] == "F" else [(S_WQ, 2688, 1)]):
            nx = uid("ft")
            a.e(f"s_cmp_lg_u32 s{S_W}, {5+wv}", f"s_cbranch_scc1 {nx}", f"v_mul_u32_u24 v{T}, {stride}, v{T}",
                f"buffer_load_dword v{V_DUM}, v{T}, {sr(sd,4)}, s{S_COL+gi} offen")
            a.label(nx)
    if O.ftouch == -2: ftouch()
    for c in range(7):
        a.e("s_barrier")
        if O.ftouch == c: ftouch()
        if O.bars == 1: stamp(a, 16 + c)
        if O.pref_f >= 2 and c == O.pref_f - 2: pref_weights(a, None, [(4, S_WG), (5, S_WU)], True)
        rd = xreads(c)
        for i in range(8):
            f = (FB0 if c % 2 == 0 else FR) + 4 * i
            for u in range(2):
                off = g0[c]["u"] * 8192 + (16 * (i // 2) + 4 * u) * 128
                base = (V_TR + off // 65536) if i % 2 else (V_TRX + off // 65536 - 1)
                rd.append(f"ds_read_b64_tr_b16 {vr(f+2*u,2)}, v{base} offset:{off % 65536}")
        if c == 0:
            a.e(*rd)
        else:
            new = 0
            for i in range(8):
                a.e(f"s_waitcnt lgkmcnt({min(15, 2 * (7 - i) + new)})", g0_mfma(c - 1, i))
                k = 3 if i < 4 else 2
                a.e(*rd[:k]); rd = rd[k:]; new += k
                if cv0 and c >= 2: a.e(f"v_permlane16_swap_b32 v{X+16*(c-2)+8*(i//4)+i%4}, v{X+16*(c-2)+8*(i//4)+4+i%4}")
            assert not rd
    a.label(lj)
    rel = [[g0[5]["u"], 10, 11], [g0[6]["u"], 12, 13]]
    def bar(si, m):
        st = stages[si]
        due = [p for p in pend if p[0] <= si]
        tk = [st["t"]] + [p[1] for p in due] + ([state["nonce"]] if due and not state["tag"] else [])
        if st.get("sg"):
            nx = uid("sb")
            a.e(f"s_cmp_ge_u32 s{S_W}, 4", f"s_cbranch_scc1 {nx}")
            t0 = st["t"][0]
            a.e(f"s_waitcnt vmcnt({min(63, vm.n[0] - t0) if t0 else 63})", "s_barrier")
            a.label(nx)
            if len(tk) > 1: vm.wait(a, tk[1:])
        else:
            vm.wait(a, tk)
            a.e("s_barrier")
        if O.bars == 1 and si < 6: stamp(a, 23 + si)
        if O.bars == 2 and si < 13: stamp(a, 16 + si)
        if si < 2: free.extend(rel[si])
        for q_ in range(si - 1):
            o = stages[q_]
            if not o.get("rel") and stages[q_ + 1]["first"] - 1 <= st["first"] - PD - (O.sg if st.get("sg") else 0):
                o["rel"] = True; free.extend(o["u"])
        if O.dsplit and stages[si]["kind"] != "S" and si + 1 < len(stages) and stages[si + 1]["kind"] != "S":
            sub = Asm(); keep = a.lines; a.lines = sub.lines
            n0, d0 = list(vm.n), state["next_dma"]
            fill(m - PD, si=si)
            a.lines = keep
            vm.n = n0
            cur, k = [], 0
            for l in sub.lines:
                cur.append(l)
                if "buffer_load" in l:
                    dq.append([min(m + O.dq_off + k * O.dsplit, stages[si + 1]["first"] - 1), cur, None]); cur = []; k += 1
            idx = len(dq) - k
            for q in range(d0, state["next_dma"]):
                idx += stages[q]["nu"]
                dq[idx - 1][2] = q
        else:
            fill(m - PD, si=si)
        for p in due:
            if not state["tag"]:
                get_tag(a); state["tag"] = True
            if p[2] == 0:
                nx = uid("p0")
                a.e(f"s_cmp_lt_u32 s{S_W}, 4", f"s_cbranch_scc1 {nx}", f"s_add_u32 s{S_T0}, s{S_FL}, 512")
                publish(a, f"s{S_FL}"); publish(a, f"s{S_T0}"); vm.n[1] += 2
                a.label(nx)
            elif kinds[p[2]] == "S":
                nx = uid("p0")
                a.e(f"s_cmp_ge_u32 s{S_W}, 4" if solo == "H" else f"s_cmp_lt_u32 s{S_W}, 4", f"s_cbranch_scc1 {nx}")
                publish(a, f"s{S_FL+p[2]}"); vm.n[solo == "G"] += 1
                a.label(nx)
            else:
                publish(a, f"s{S_FL+p[2]}"); vm.issue()
            pend.remove(p)
        if si == 0:
            a.e(f"buffer_load_dword v{V_NONCE}, v{V_ZERO}, {sr(S_DBG,4)}, 0 offen {SC1}"); state["nonce"] = vm.issue()
        if si == 3:
            role_d(a)
        if si == len(stages) - (2 if O.wpre else 1):
            u = [q for q in free if q * 8192 >= L_XCH + 49152][0]
            a.e(f"s_mov_b32 s{S_CNT}, {u*8192 + 4096}", f"v_mov_b32 v204, s{S_CNT}", f"ds_write_b32 v204, v{V_ZERO}", f"ds_write_b32 v204, v{V_ZERO} offset:4"); lg.issue(); lg.issue()
            if O.wpre:
                assert all(q in free for q in range(13)), (kinds, free)
                a.e(f"ds_write_b32 v204, v{V_ZERO} offset:8"); lg.issue()
                for k_ in range(2 * O.wpre): wq.append((m - PD + 1 + (k_ * O.wpre_e) // 2, k_))
        if si == O.mall_at:
            pref_weights(a, vm, [(0, S_WD), (1, S_WO)])
        if si == len(stages) - O.poll_back:
            a.e(f"s_mov_b32 s{S_T0}, {WS_F}")
            a.e(f"buffer_load_dwordx2 {vr(V_PD,2)}, v{C_PA}, {sr(S_WS,4)}, s{S_T0} offen {SC1}"); vm.issue()
            a.e(f"buffer_load_dwordx2 {vr(V_PD+2,2)}, v{C_PB}, {sr(S_WS,4)}, s{S_T0} offen {SC1}"); state["poll"] = vm.issue()
    def hibar(si):
        t1 = stages[si]["t"][1]
        a.e(f"s_waitcnt vmcnt({min(63, vm.n[1] - t1) if t1 else 63})", "s_barrier")
    if O.sg:
        for q_, st_ in enumerate(stages):
            st_["sg"] = q_ >= 1 and st_["kind"] != "S" and stages[q_ - 1]["kind"] != "S"
    blocks = {}
    def flush_dq(m):
        while dq and dq[0][0] <= m:
            _, ls, q = dq.pop(0)
            a.lines.extend(ls); t = vm.issue()
            if q is not None: stages[q]["t"] = t
    def reads(m, hi=False):
        e = mf[m]; st = stages[e["si"]]
        if e["si"] + 1 < len(stages) and e["si"] >= 1 and stages[e["si"] + 1].get("sg") and m == max(st["first"] + 0, stages[e["si"] + 1]["first"] - O.sg) and m != st["first"]:
            nx = uid("hb")
            a.e(f"s_cmp_lt_u32 s{S_W}, 4", f"s_cbranch_scc1 {nx}"); hibar(e["si"] + 1); a.label(nx)
        if m == st["first"]:
            if hi:
                labs = [l[:-1] for l in blocks[m] if l.endswith(":")]
                for l in blocks[m]:
                    for q in labs: l = re.sub(rf"\b{q}\b", q + "h", l)
                    a.lines.append(l)
            else:
                n0 = len(a.lines); bar(e["si"], m); blocks[m] = a.lines[n0:]
                if e["si"] + 1 < len(stages) and e["si"] >= 1 and stages[e["si"] + 1].get("sg") and stages[e["si"] + 1]["first"] - O.sg <= m:
                    stages[e["si"] + 1]["sg"] = False
        if O.dq_first: flush_dq(m)
        f = FR + 4 * (m % NFR)
        if st["kind"] == "S" and hi != (solo == "G"):
            return
        if hi:
            for u in range(2):
                a.e(f"ds_read_b64 {vr(f+2*u,2)}, v{V_XC+3} offset:{32*e['s']+8*u}"); e["t"] = lg.issue()
        else:
            kk = e["s"] - st["k0"]
            if O.f16 and st["kind"] == "F":
                if m == st["first"] and st["k0"] == 0 and not state.get("tf"):
                    state["tf"] = True
                    a.e(f"v_bfe_u32 v{V_T0}, v{V_LANE}, 4, 1", f"v_lshlrev_b32 v{V_T0}, 11, v{V_T0}")
                    for q in range(3): a.e(f"v_add_u32 v{V_TR+q}, v{V_TR+q}, v{V_T0}", f"v_xor_b32 v{V_TF1+q}, 32, v{V_TR+q}")
                idx = m - st["first"]
                for u in range(2):
                    off = st["u"][(idx % 4) // 2] * 8192 + (32 * (idx // 4) + 4 * u) * 128
                    a.e(f"ds_read_b64_tr_b16 {vr(f+2*u,2)}, v{(V_TF1 if idx % 2 else V_TR) + off // 65536} offset:{off % 65536}"); e["t"] = lg.issue()
                flush_dq(m)
                return
            unit = st["u"][2 * (kk // 4) + e["tile"]] if st["kind"] == "F" else st["u"][kk // 4]
            for u in range(2):
                off = unit * 8192 + (16 * (kk % 4) + 4 * u) * 128
                a.e(f"ds_read_b64_tr_b16 {vr(f+2*u,2)}, v{(V_XC if st['kind'] == 'S' else V_TR) + off // 65536} offset:{off % 65536}"); e["t"] = lg.issue()
        flush_dq(m)
    for m in range(PD):
        reads(m)
    nx, ny = uid("e0"), uid("e0")
    a.e(f"s_cmp_ge_u32 s{S_W}, 4", f"s_cbranch_scc1 {ny}")
    role_c(a)
    if cv0:
        a.e(f"s_waitcnt lgkmcnt({2*PD})"); xconv(range(14))
    a.e(f"s_branch {nx}")
    a.label(ny)
    for i in range(8):
        a.e(f"s_waitcnt lgkmcnt({min(15, 2 * (7 - i) + 2 * PD)})", g0_mfma(6, i))
        if cv0: a.e(f"v_permlane16_swap_b32 v{X+80+8*(i//4)+i%4}, v{X+80+8*(i//4)+4+i%4}")
    if O.sg: hibar(1)
    if cv0: xconv([12, 13])
    dummy = Vm()
    epilogue(a, dummy, 0, kinds[0], ACC)
    a.e(f"s_add_u32 s{S_OB}, s{S_OB}, {131072 if kinds[0] == 'QK' else 512}")
    epilogue(a, dummy, 0, kinds[0], ACC + 16)
    vm.n[1] += dummy.n
    pend.append((O.pubd, (0, vm.n[1]), 0))
    a.label(nx)
    stamp(a, 3)
    def mfma(m, hi=False):
        e = mf[m]
        if e["kind"] == "S" and hi != (solo == "G"): return
        if O.f16 and e["kind"] == "F":
            st = stages[e["si"]]
            if not state.get("xc"):
                state["xc"] = True
                if e["gi"] > 1: xconv(range(14))
            idx = m - st["first"]
            S2 = st["k0"] // 2 + idx // 4
            lg.wait(a, e["t"])
            f = FR + 4 * (m % NFR)
            for tau in range(2):
                acc = ACC + 8 * (idx % 4) + 4 * tau
                a.e(f"{MFMA16} {vr(acc,4)}, {vr(f,4)}, {vr(X+8*S2+4*tau,4)}, {'0' if S2 == 0 else vr(acc,4)}")
            return
        if not e.get("w"): lg.wait(a, e["t"])
        f = FR + 4 * (m % NFR)
        acc = ACC + 16 * e["tile"]
        cin = "0" if e["s"] == 0 else vr(acc, 16)
        xa = vr(X + 4 * e["s"], 4)
        if e["kind"] in ("V", "S") and not hi:
            a.e(f"{MFMA} {vr(acc,16)}, {xa}, {vr(f,4)}, {cin}")
        else:
            a.e(f"{MFMA} {vr(acc,16)}, {vr(f,4)}, {xa}, {cin}")
        if O.wfirst and e["kind"] != "S" and m + 1 < len(mf) and mf[m + 1]["gi"] == e["gi"]:
            lg.wait(a, mf[m + 1]["t"]); mf[m + 1]["w"] = True
    m = 0
    while m < len(mf):
        e = mf[m]
        if e["kind"] == "S":
            m1 = m + 28
            lh, lj2 = uid("sh"), uid("sj")
            if solo == "H":
                a.e(f"s_sub_u32 s{S_T0}, s{S_J}, 13", f"s_lshl_b32 s{S_T0}, s{S_T0}, 5")
                for q in range(3): a.e(f"v_xor_b32 v{V_XC+q}, s{S_T0}, v{V_TR+q}")
            else:
                a.e(f"v_lshrrev_b32 v{V_XC+3}, 5, v{V_LANE}", f"v_lshlrev_b32 v{V_XC+3}, 4, v{V_XC+3}",
                    f"s_add_u32 s{S_T0}, s{S_W1K}, {state['gu']*8192}", f"v_add_u32 v{V_XC+3}, s{S_T0}, v{V_XC+3}")
            a.e(f"s_cmp_ge_u32 s{S_W}, 4", f"s_cbranch_scc1 {lh}")
            lg0 = lg.n
            epi = {}
            for hi in (False, True):
                lg.n = lg0
                if hi: a.label(lh)
                for q in range(m, m + PD): reads(q, hi)
                if not hi:
                    n0 = len(a.lines); state["epi"](); epi = a.lines[n0:]
                else:
                    a.lines.extend(epi)
                for q in range(m, m1):
                    mfma(q, hi)
                    if q + PD < m1: reads(q + PD, hi)
                if not hi: a.e(f"s_branch {lj2}")
            a.label(lj2)
            lg.n = lg0 + 200
            for q in range(m1, m1 + PD): reads(q)
            lj2 = uid("sj")
            d0 = Vm()
            a.e(f"s_cmp_ge_u32 s{S_W}, 4" if solo == "H" else f"s_cmp_lt_u32 s{S_W}, 4", f"s_cbranch_scc1 {lj2}", "s_nop 7")
            epilogue(a, d0, e["gi"], "V" if solo == "H" else "G")
            a.label(lj2)
            vm.n[solo == "G"] += d0.n
            pend.append((mf[m1]["si"] + O.pubd_s, (vm.n[0], 0) if solo == "H" else (0, vm.n[1]), e["gi"]))
            stamp(a, 3 + e["gi"])
            m = m1
            continue
        mfma(m)
        if m + PD < len(mf) and mf[m + PD]["kind"] != "S":
            n0 = len(a.lines)
            reads(m + PD)
            if O.f16 and O.il16 and e["kind"] == "F" and len(a.lines) - n0 == 2:
                a.lines[n0 - 1], a.lines[n0] = a.lines[n0], a.lines[n0 - 1]
        if wq and (wq[0][0] <= m or m == len(mf) - 1):
            nx = uid("wp")
            a.e(f"s_cmp_lt_u32 s{S_W}, 4", f"s_cbranch_scc1 {nx}")
            while wq and (wq[0][0] <= m or m == len(mf) - 1):
                k_ = wq.pop(0)[1]
                a.e(*wd_piece(k_ // 2, k_ % 2)); vm.n[1] += 1
            a.label(nx)
        if O.sg and m == len(mf) - 1 - PD:
            nx = uid("tb")
            a.e(f"s_cmp_lt_u32 s{S_W}, 4", f"s_cbranch_scc1 {nx}", "s_waitcnt lgkmcnt(0)", "s_barrier"); a.label(nx)
        if O.early and m == len(mf) - O.hook_back:
            early_hook(a, vm.n[0] - state["poll"][0])
        if m + 1 < len(mf) and mf[m + 1]["gi"] != e["gi"]:
            def do_epi(e=e, m=m):
                t = epilogue(a, vm, e["gi"], e["kind"])
                pend.append((mf[m + 1]["si"] + O.pubd, t, e["gi"]))
                stamp(a, 3 + e["gi"])
            if mf[m + 1]["kind"] == "S": state["epi"] = do_epi
            else: do_epi()
        m += 1
    assert not pend and state["tag"]
    assert kinds[-1] == "F"

def c_adv(a):
    a.e(f"s_add_u32 s{SC_K}, s{SC_K}, 512", f"s_and_b32 s{SC_K}, s{SC_K}, 8191", f"s_mul_i32 s{SC_V0}, s{SC_K}, 57")

def c_loads(a, buf, imm=0):
    for w in range(4):
        c_load1(a, buf, 0, w, masked=(w == 3))

def c_smfma(a, i, half):
    kt, qs = (i // 4) % 4, i % 4
    S = CS + 16 * (i % 2)
    a.e(f"{MFMA} {vr(S,16)}, {vr(CKV+16*kt+4*half,4)}, {vr(CQ+8*qs+4*half,4)}, {'0' if half == 0 else vr(S,16)}")
def c_pv(a, i, half, first=False):
    if first and i < 0: return
    i %= 16
    kt, qs = i // 4, i % 4
    Oq = CO + 16 * qs
    a.e(f"{MFMA} {vr(Oq,16)}, {vr(CKV+16*kt+8+4*half,4)}, {vr(CP+8*(i%2)+4*half,4)}, {'0' if first and half == 0 else vr(Oq,16)}")

def c_load1(a, buf, imm, which, masked=False):
    kb, vb = CKV + 16 * buf, CKV + 16 * buf + 8
    if which < 2:
        a.e(f"buffer_load_dwordx4 {vr(kb+4*which,4)}, v{C_VK1 if which else C_VK}, {sr(S_KV,4)}, s{SC_K} offen {SC1}")
    else:
        a.e(f"buffer_load_dwordx4 {vr(vb+4*(which-2),4)}, v{C_VV1 if which == 3 else C_VV}, {sr(S_KV,4)}, s{SC_V0} offen {SC1}")
        if which == 3: c_adv(a)

def c_step(a, i, first=False, extra=None):
    S, P = CS + 16 * (i % 2), CP + 8 * (i % 2)
    ex = lambda k: a.e(f"v_exp_f32 v{S+k}, v{S+k}")
    cv = lambda k: a.e(f"v_cvt_pk_bf16_f32 v{P+k}, v{S+2*k}, v{S+2*k+1}")
    kt = i // 4
    def mem():
        if i == 4:
            a.e(f"s_cmp_eq_u32 s{SC_IT}, 1", f"s_cselect_b32 s{S_KV+2}, 0, s{S_KV+2}")
        if O.noload:
            pass
        elif O.spread:
            c_load1(a, (kt + 3) % 4, 512 * (kt + 3), i % 4)
        elif i % 4 == 0:
            c_loads(a, (kt + 3) % 4, 512 * (kt + 3))
    def wt():
        if O.delay_d and i == O.d_go[1]:
            sk = uid("go")
            a.e(f"s_cmp_lg_u32 s{SC_IT}, {O.d_go[0]}", f"s_cbranch_scc1 {sk}", f"ds_write_b32 v{C_T+15}, v{C_T+15} offset:4")
            if O.wpre: a.e(f"ds_read_b32 v{C_T+6}, v{C_T+15} offset:8", "s_waitcnt lgkmcnt(0)", f"v_readfirstlane_b32 s{S_HD}, v{C_T+6}")
            a.label(sk)
        if first and i == 3:
            a.e("s_waitcnt vmcnt(8)", "s_mov_b64 exec, 1", f"buffer_store_dwordx2 {vr(C_T,2)}, v{V_ZERO}, {sr(S_WS,4)}, s{S_LFL} offen {SC1}", "s_mov_b64 exec, -1")
        elif i % 4 == 3:
            a.e(f"s_waitcnt vmcnt({7 if O.spread and O.pack != 6 else 8})")
            if i == 3 and not O.peel:
                sk = uid("pub")
                a.e(f"s_cmp_lg_u32 s{SC_IT}, 4", f"s_cbranch_scc1 {sk}")
                a.e("s_mov_b64 exec, 1", f"buffer_store_dwordx2 {vr(C_T,2)}, v{V_ZERO}, {sr(S_WS,4)}, s{S_LFL} offen {SC1}")
                if O.poison: a.e(f"buffer_store_dwordx2 {vr(C_T,2)}, v{V_ZERO}, {sr(S_WS,4)}, s{S_OFL} offen {SC1}")
                a.e("s_mov_b64 exec, -1")
                if O.plite:
                    a.e(f"buffer_store_dwordx4 {vr(C_T+4,4)}, v{V_SH}, {sr(S_WS,4)}, s{S_OST} offen {SC1}",
                        f"buffer_store_dwordx4 {vr(C_T+4,4)}, v{V_SH}, {sr(S_WS,4)}, s{S_OST} offen offset:1024 {SC1}")
                a.label(sk)
            if i == 11 and O.plite:
                sk = uid("pub")
                a.e(f"s_cmp_lg_u32 s{SC_IT}, 4", f"s_cbranch_scc1 {sk}")
                a.e("s_mov_b64 exec, 1", f"buffer_store_dwordx2 {vr(C_T,2)}, v{V_ZERO}, {sr(S_WS,4)}, s{S_OFL} offen {SC1}", "s_mov_b64 exec, -1")
                a.label(sk)
    if O.pack == 0:
        wt()
        c_smfma(a, i + 1, 0)
        for k in range(4): ex(k)
        c_smfma(a, i + 1, 1)
        ex(4); ex(5); cv(0); cv(1); ex(6); ex(7)
        c_pv(a, i - 1, 0)
        ex(8); ex(9); cv(2); cv(3); ex(10); ex(11)
        c_pv(a, i - 1, 1)
        mem()
        for k in range(12, 16): ex(k)
        cv(4); cv(5); cv(6); cv(7)
    elif O.pack == 1:
        c_pv(a, i - 1, 0, first)
        ex(0); ex(1); ex(2)
        c_pv(a, i - 1, 1, first)
        ex(3); ex(4); ex(5)
        wt()
        c_smfma(a, i + 1, 0)
        ex(6); ex(7); cv(0); cv(1)
        c_smfma(a, i + 1, 1)
        mem()
        if extra: extra()
        ex(8); ex(9); cv(2); ex(10); ex(11); cv(3); ex(12); ex(13); cv(4); ex(14); ex(15); cv(5); cv(6); cv(7)
    elif O.pack == 6:
        buf = (kt + 3) % 4
        kb, vb = CKV + 16 * buf, CKV + 16 * buf + 8
        sl = [[], [], [], []]
        if i == 4:
            sl[0].append(f"s_cmp_eq_u32 s{SC_IT}, 1"); sl[1].append(f"s_cselect_b32 s{S_KV+2}, 0, s{S_KV+2}")
        ld = [f"buffer_load_dwordx4 {vr(kb,4)}, v{C_VK}, {sr(S_KV,4)}, s{SC_K} offen {SC1}", f"buffer_load_dwordx4 {vr(kb+4,4)}, v{C_VK1}, {sr(S_KV,4)}, s{SC_K} offen {SC1}",
              f"buffer_load_dwordx4 {vr(vb,4)}, v{C_VV}, {sr(S_KV,4)}, s{SC_V0} offen {SC1}", f"buffer_load_dwordx4 {vr(vb+4,4)}, v{C_VV1}, {sr(S_KV,4)}, s{SC_V0} offen {SC1}"]
        if O.ldm == 0:
            if i % 4 == 0: sl[3] += ld[:2]
            if i % 4 == 1: sl[3] += ld[2:]
        elif i % 4 == 1:
            for q in range(4): sl[q].append(ld[q])
        if i % 4 == 2:
            sl[0].append(f"s_add_u32 s{SC_K}, s{SC_K}, 512"); sl[1].append(f"s_and_b32 s{SC_K}, s{SC_K}, 8191"); sl[2].append(f"s_mul_i32 s{SC_V0}, s{SC_K}, 57")
        if i == 15 and O.wt_early:
            sl[2].append(f"s_sub_u32 s{SC_IT}, s{SC_IT}, 1"); sl[3].append(f"s_cmp_eq_u32 s{SC_IT}, 0" if O.peel else f"s_cmp_lg_u32 s{SC_IT}, 0")
        em = lambda k: [a.e(l) for l in sl[k]]
        c_pv(a, i - 1, 0, first); em(0)
        ex(0); ex(1); ex(2)
        c_pv(a, i - 1, 1, first); em(1)
        if O.wt_early: wt()
        ex(3); ex(4); ex(5)
        if not O.wt_early: wt()
        c_smfma(a, i + 1, 0); em(2)
        ex(6); ex(7); cv(0); cv(1)
        c_smfma(a, i + 1, 1); em(3)
        if extra: extra()
        ex(8); ex(9); cv(2); ex(10); ex(11); cv(3); ex(12); ex(13); cv(4); ex(14); ex(15); cv(5); cv(6); cv(7)
    elif O.pack == 4:
        c_pv(a, i - 1, 0)
        ex(0); ex(1); ex(2)
        c_pv(a, i - 1, 1)
        ex(3); ex(4); cv(0); ex(5); cv(1); ex(6); ex(7); cv(2); cv(3)
        wt()
        c_smfma(a, i + 1, 0)
        ex(8); ex(9); ex(10)
        c_smfma(a, i + 1, 1)
        mem()
        ex(11); ex(12); cv(4); ex(13); cv(5); ex(14); ex(15); cv(6); cv(7)
    elif O.pack == 5:
        c_pv(a, i - 1, 0)
        ex(0); ex(1); ex(2)
        c_pv(a, i - 1, 1)
        ex(3); ex(4); cv(0); ex(5); cv(1); ex(6); ex(7); ex(8); cv(2); cv(3)
        wt()
        c_smfma(a, i + 1, 0)
        ex(9); ex(10); ex(11)
        c_smfma(a, i + 1, 1)
        mem()
        ex(12); cv(4); ex(13); cv(5); ex(14); ex(15); cv(6); cv(7)
    elif O.pack == 3:
        sub = Asm(); keep = a.lines; a.lines = sub.lines; mem(); a.lines = keep
        ml = sub.lines
        grp = []
        k = 0
        while k < len(ml):
            if "s_mov_b64 exec, s[" in ml[k]: grp.append(ml[k:k+3]); k += 3
            elif "s_cmp_eq" in ml[k]: grp.append(ml[k:k+2]); k += 2
            else: grp.append([ml[k]]); k += 1
        def nx():
            if grp: a.lines.extend(grp.pop(0))
        c_pv(a, i - 1, 0)
        ex(0); ex(1); ex(2)
        c_pv(a, i - 1, 1)
        ex(3); ex(4); ex(5)
        wt()
        c_smfma(a, i + 1, 0)
        ex(6); ex(7); cv(0); cv(1)
        c_smfma(a, i + 1, 1)
        ex(8); nx(); ex(9); nx(); cv(2); ex(10); nx(); ex(11); nx(); cv(3); ex(12); nx(); ex(13); cv(4); ex(14); ex(15); cv(5); cv(6); cv(7)
        assert not grp
    elif O.pack == 2:
        c_pv(a, i - 1, 0)
        ex(0); ex(1)
        c_pv(a, i - 1, 1)
        ex(2); ex(3); cv(0)
        wt()
        c_smfma(a, i + 1, 0)
        ex(4); ex(5); cv(1)
        c_smfma(a, i + 1, 1)
        mem()
        ex(6); ex(7); cv(2); ex(8); ex(9); cv(3); ex(10); ex(11); cv(4); ex(12); ex(13); cv(5); ex(14); ex(15); cv(6); cv(7)

def vinit(a, b):
    if b == 3:
        for k in range(8):
            a.e(f"v_mov_b32 v{CKV+16*b+8+k}, 0")

def first_loads(a):
    vinit(a, 0)
    c_loads(a, 0, 0)
    a.e(f"s_lshl_b32 s4, s{SC_O}, 15", f"s_lshl_b32 s5, s{SC_QT}, 11", "s_add_u32 s4, s4, s5")
    for i in range(4):
        a.e(f"s_add_u32 s5, s{S_W}, {i+1}", "s_and_b32 s5, s5, 3", "s_lshl_b32 s5, s5, 9", "s_add_u32 s5, s5, s4", f"s_add_u32 s6, s5, {2*OCT}")
        a.e(f"buffer_load_dwordx4 {vr(CQ+8*i,4)}, v{C_QA}, {sr(S_WS,4)}, s5 offen {SC1}")
        a.e(f"buffer_load_dwordx4 {vr(CQ+8*i+4,4)}, v{C_QA}, {sr(S_WS,4)}, s6 offen {SC1}")
    a.e(f"s_lshl_b32 s4, s{SC_QT}, 2", f"s_add_u32 s4, s4, s{S_W}", "s_lshl_b32 s4, s4, 7", f"s_add_u32 s4, s4, {WS_G}",
        f"v_and_b32 v{C_G}, 31, v{V_LANE}", f"v_lshlrev_b32 v{C_G}, 2, v{C_G}")
    a.e(f"buffer_load_dword v{C_G}, v{C_G}, {sr(S_WS,4)}, s4 offen {SC1}")

def early_hook(a, k):
    sk = uid("eh")
    a.e(f"s_mov_b32 s{S_EARLY}, 0", f"s_cmp_ge_u32 s{S_W}, 4", f"s_cbranch_scc1 {sk}")
    a.e(f"s_waitcnt vmcnt({k})")
    poll_check(a, V_PD, sk); poll_check(a, V_PD + 2, sk)
    first_loads(a)
    a.e(f"s_mov_b32 s{S_EARLY}, 1")
    a.label(sk)

def fallback(a):
    TT = C_T
    KB, VB, M, VA = CKV, CKV + 8, TT + 7, TT + 10
    SK, SK1, SV, SV1, SN = 4, 5, 6, 7, SC_IT
    def kbase():
        a.e(f"s_add_u32 s{SK}, s{SC_O}, 56", f"s_lshl_b32 s{SK}, s{SK}, 15", f"s_add_u32 s{SK1}, s{SK}, {2*OCT}", f"s_mov_b32 s{SN}, 64")
    def kload():
        a.e(f"buffer_load_dwordx4 {vr(KB,4)}, v{C_QA}, {sr(S_WS,4)}, s{SK} offen {SC1}", f"buffer_load_dwordx4 {vr(KB+4,4)}, v{C_QA}, {sr(S_WS,4)}, s{SK1} offen {SC1}",
            f"s_add_u32 s{SK}, s{SK}, 512", f"s_add_u32 s{SK1}, s{SK1}, 512")
    def scores():
        a.e("s_waitcnt vmcnt(0)", f"{MFMA} {vr(CS,16)}, {vr(KB,4)}, {vr(CQ+24,4)}, 0", f"{MFMA} {vr(CS,16)}, {vr(KB+4,4)}, {vr(CQ+28,4)}, {vr(CS,16)}")
    a.label("L_fallback")
    a.e(f"v_mov_b32 v{M}, 0xff800000")
    kbase()
    a.label("L_fb1")
    kload(); scores()
    for i in range(8):
        a.e(f"v_max3_f32 v{M}, v{M}, v{CS+2*i}, v{CS+2*i+1}")
    a.e(f"s_sub_u32 s{SN}, s{SN}, 1", f"s_cmp_lg_u32 s{SN}, 0", "s_cbranch_scc1 L_fb1")
    a.e(f"v_mov_b32 v{M+1}, v{M}", f"v_permlane32_swap_b32 v{M}, v{M+1}", f"v_max_f32 v{M}, v{M}, v{M+1}")
    for i in range(16):
        a.e(f"v_mov_b32 v{CO+i}, 0")
    kbase()
    a.e(f"s_mul_i32 s{SV}, s{S_W}, {16*V_TB}", f"v_subrev_u32 v{VA}, s{SV}, v{C_VV}", f"v_subrev_u32 v{VA+1}, s{SV}, v{C_VV1}", f"s_mov_b32 s{SV}, 0")
    a.label("L_fb2")
    kload()
    a.e(f"buffer_load_dwordx4 {vr(VB,4)}, v{VA}, {sr(S_WS,4)}, s{SV} offen {SC1}",
        f"buffer_load_dwordx4 {vr(VB+4,4)}, v{VA+1}, {sr(S_WS,4)}, s{SV} offen {SC1}", f"s_add_u32 s{SV}, s{SV}, {V_TB}")
    scores()
    for i in range(16):
        a.e(f"v_sub_f32 v{CS+i}, v{CS+i}, v{M}")
    for i in range(16):
        a.e(f"v_exp_f32 v{CS+i}, v{CS+i}")
    for k in range(8):
        a.e(f"v_cvt_pk_bf16_f32 v{CP+k}, v{CS+2*k}, v{CS+2*k+1}")
    a.e(f"{MFMA} {vr(CO,16)}, {vr(VB,4)}, {vr(CP,4)}, {vr(CO,16)}", f"{MFMA} {vr(CO,16)}, {vr(VB+4,4)}, {vr(CP+4,4)}, {vr(CO,16)}")
    a.e("s_nop 7", "s_nop 7", f"s_sub_u32 s{SN}, s{SN}, 1", f"s_cmp_lg_u32 s{SN}, 0", "s_cbranch_scc1 L_fb2")
    a.e(f"v_mov_b32 v{TT+5}, v{CO+12}", f"v_mov_b32 v{TT+6}, v{CO+12}", f"v_permlane32_swap_b32 v{TT+5}, v{TT+6}", f"s_mov_b32 s{SN}, 1", "s_nop 1", "s_branch L_fb_done")

def attention(a):
    L, TT = V_LANE, C_T
    vm = Vm()
    spin, go, go2 = uid("aspin"), uid("ago"), uid("ago")
    if O.prio_attn: a.e(f"s_setprio {O.prio_attn}")
    if O.early:
        a.e(f"s_cmp_eq_u32 s{S_EARLY}, 0", f"s_cbranch_scc1 {spin}")
    else:
        a.e("s_waitcnt vmcnt(0)")
        poll_check(a, V_PD, spin); poll_check(a, V_PD + 2, spin)
        a.label(go2)
        first_loads(a)
    a.label(go)
    stamp(a, 8)
    if O.peel:
        assert O.pack == 6 and O.early and not O.poison and not O.plite
        a.e(f"v_mov_b32 v{TT}, v{V_FD}", f"v_mov_b32 v{TT+1}, v{V_FD+1}")
        if O.peel == 2:
            epi_F(a, vm, S_LOB, CP)
            c_loads(a, 1)
        od, dn = uid("qm"), uid("qm")
        a.e(f"s_bitcmp1_b32 s{SC_HEAD}, 0", f"s_waitcnt vmcnt({6 if O.peel == 2 else 0})", f"s_cbranch_scc1 {od}")
        for qs in range(4): a.e(f"v_and_b32 v{CQ+8*qs+6}, v{CQ+8*qs+6}, v{C_MB}", f"v_and_b32 v{CQ+8*qs+7}, v{CQ+8*qs+7}, v{C_MB}")
        a.e(f"s_branch {dn}")
        a.label(od)
        for qs in range(4): a.e(f"v_and_b32 v{CQ+8*qs}, v{CQ+8*qs}, v{C_MA}", f"v_and_b32 v{CQ+8*qs+1}, v{CQ+8*qs+1}, v{C_MA}")
        a.label(dn)
        a.e("s_nop 1")
        c_smfma(a, 0, 0); c_smfma(a, 0, 1)
        if O.peel != 2:
            epi_F(a, vm, S_LOB, CP)
            c_loads(a, 1)
        c_loads(a, 2)
        for i in range(16): a.e(f"v_mov_b32 v{CO+48+i}, 0")
        stamp(a, 9)
        def x0():
            a.e(f"s_lshl_b32 s{S_TB}, s{SC_QT}, 2", f"s_add_u32 s{S_TB}, s{S_TB}, s{S_W}", f"s_mov_b32 s{SC_IT}, 4")
            a.e(f"s_mul_i32 s{S_OST}, s{S_TB}, {HO_TB}", f"s_lshl_b32 s{S_T1}, s{SC_HEAD}, 11", f"s_add_u32 s{S_OST}, s{S_OST}, s{S_T1}",
                f"s_add_u32 s{S_OST}, s{S_OST}, {WS_HO + 112*1024}")
            a.e(f"s_lshl_b32 s{S_OFL}, s{S_TB}, 4", f"s_add_u32 s{S_OFL}, s{S_OFL}, s{SC_HEAD}", f"s_lshl_b32 s{S_OFL}, s{S_OFL}, 3",
                f"s_add_u32 s{S_OFL}, s{S_OFL}, {WS_F + F_O}")
        def x1():
            for i in range(3):
                a.e(f"s_add_u32 s{S_T1}, s{S_W}, {i+1}", f"s_and_b32 s{S_T1}, s{S_T1}, 3", f"s_mul_i32 s{S_T1}, s{S_T1}, 12288",
                    f"s_add_u32 s{S_T1}, s{S_T1}, {L_XCH + i*4096}", f"v_add_u32 v{TT+11+i}, s{S_T1}, v{V_SH}")
            a.e(f"s_mul_i32 s{S_T1}, s{S_W}, 12288", f"s_add_u32 s{S_T1}, s{S_T1}, {L_XCH}", f"v_add_u32 v{TT+14}, s{S_T1}, v{V_SH}", f"v_mov_b32 v{TT+15}, s{S_CNT}")
        for i in range(4):
            c_step(a, i, first=True, extra=[x0, x1, None, None][i])
        a.raw(".p2align 3")
        a.label("L_c_loop")
        for i in range(4, 16):
            c_step(a, i)
        a.e("s_cbranch_scc1 L_c_out", )
        for i in range(4):
            c_step(a, i)
        a.e("s_branch L_c_loop")
        a.label("L_c_out")
        a.e("s_nop 0")
    else:
        a.e(f"v_and_b32 v{TT+2}, 31, v{L}", f"s_lshl_b32 s{S_TB}, s{SC_QT}, 2", f"s_add_u32 s{S_TB}, s{S_TB}, s{S_W}")
        epi_F(a, vm, S_LOB)
        a.e(f"v_mov_b32 v{TT}, v{V_FD}", f"v_mov_b32 v{TT+1}, v{V_FD+1}")
        a.e(f"s_mul_i32 s{S_OST}, s{S_TB}, {HO_TB}", f"s_lshl_b32 s{S_T1}, s{SC_HEAD}, 11", f"s_add_u32 s{S_OST}, s{S_OST}, s{S_T1}",
            f"s_add_u32 s{S_OST}, s{S_OST}, {WS_HO + 112*1024}")
        a.e(f"s_lshl_b32 s{S_OFL}, s{S_TB}, 4", f"s_add_u32 s{S_OFL}, s{S_OFL}, s{SC_HEAD}", f"s_lshl_b32 s{S_OFL}, s{S_OFL}, {O.fo_sh}",
            f"s_add_u32 s{S_OFL}, s{S_OFL}, {WS_F + F_O if O.fo_sh == 3 else 0x11D0000}")
        if O.poison:
            for k in range(4): a.e(f"v_mov_b32 v{CP+k}, -1")
            a.e(f"buffer_store_dwordx4 {vr(CP,4)}, v{V_SH}, {sr(S_WS,4)}, s{S_OST} offen {SC1}",
                f"buffer_store_dwordx4 {vr(CP,4)}, v{V_SH}, {sr(S_WS,4)}, s{S_OST} offen offset:1024 {SC1}")
        for b in range(1, 4): vinit(a, b)
        if O.plite:
            for k in range(4): a.e(f"v_mov_b32 v{TT+4+k}, -1")
        c_loads(a, 1, 512)
        for i in range(64):
            a.e(f"v_mov_b32 v{CO+i}, 0")
        for i in range(8):
            a.e(f"v_mov_b32 v{CP+8+i}, 0")
        c_loads(a, 2, 1024)
        for i in range(3):
            a.e(f"s_add_u32 s{S_T1}, s{S_W}, {i+1}", f"s_and_b32 s{S_T1}, s{S_T1}, 3", f"s_mul_i32 s{S_T1}, s{S_T1}, 12288",
                f"s_add_u32 s{S_T1}, s{S_T1}, {L_XCH + i*4096}", f"v_add_u32 v{TT+11+i}, s{S_T1}, v{V_SH}")
        a.e(f"s_mul_i32 s{S_T1}, s{S_W}, 12288", f"s_add_u32 s{S_T1}, s{S_T1}, {L_XCH}", f"v_add_u32 v{TT+14}, s{S_T1}, v{V_SH}", f"v_mov_b32 v{TT+15}, s{S_CNT}")
        a.e(f"s_mov_b32 s{SC_IT}, 4")
        a.e(f"s_waitcnt vmcnt({12 if O.poison else 10})")
        for qs in range(4):
            a.e(f"v_and_b32 v{CQ+8*qs}, v{CQ+8*qs}, v{C_MA}", f"v_and_b32 v{CQ+8*qs+1}, v{CQ+8*qs+1}, v{C_MA}",
                f"v_and_b32 v{CQ+8*qs+6}, v{CQ+8*qs+6}, v{C_MB}", f"v_and_b32 v{CQ+8*qs+7}, v{CQ+8*qs+7}, v{C_MB}")
        stamp(a, 9)
        c_smfma(a, 0, 0); c_smfma(a, 0, 1)
        a.e("s_nop 7")
        a.raw(f".p2align {O.lalign}")
        a.label("L_c_loop")
        for i in range(16):
            c_step(a, i)
        if O.stamp == 1 and O.bars == 3:
            a.e("s_memtime s[6:7]", "s_waitcnt lgkmcnt(0)", "s_sub_u32 s6, s6, s100", f"s_add_u32 m0, s{SC_IT}, 15", "s_nop 0", f"v_writelane_b32 v255, s6, m0")
        if not (O.wt_early and O.pack == 6): a.e(f"s_sub_u32 s{SC_IT}, s{SC_IT}, 1", f"s_cmp_lg_u32 s{SC_IT}, 0")
        a.e("s_cbranch_scc1 L_c_loop")
    stamp(a, 10)
    if O.wpre:
        t_, d_ = uid("hw"), uid("hw")
        a.e(f"s_cmp_ge_u32 s{S_HD}, 8", f"s_cbranch_scc1 {d_}", f"s_mov_b32 s{S_SPIN}, 0x100000")
        a.label(t_)
        a.e(f"ds_read_b32 v{TT+6}, v{TT+15} offset:8", "s_waitcnt lgkmcnt(0)", f"v_readfirstlane_b32 s{S_HD}, v{TT+6}", f"s_cmp_ge_u32 s{S_HD}, 8",
            f"s_cbranch_scc1 {d_}", f"s_sub_u32 s{S_SPIN}, s{S_SPIN}, 1", f"s_cmp_lg_u32 s{S_SPIN}, 0", f"s_cbranch_scc1 {t_}")
        a.label(d_)
    for i in range(3):
        if i < 2: c_pv(a, 15, i)
        for q in range(4):
            a.e(f"ds_write_b128 v{TT+11+i}, {vr(CO+16*i+4*q,4)} offset:{q*1024}")
    a.e(f"v_mov_b32 v{TT+6}, 1", "s_waitcnt lgkmcnt(0)", "s_mov_b64 exec, 1",
        f"ds_add_u32 v{TT+15}, v{TT+6}", "s_mov_b64 exec, -1", f"s_mov_b32 s{S_SPIN}, 0x100000")
    top, dn = uid("xs"), uid("xd")
    a.label(top)
    a.e(f"ds_read_b32 v{TT+6}, v{TT+15}", "s_waitcnt lgkmcnt(0)", f"v_readfirstlane_b32 s{S_T1}, v{TT+6}", f"s_cmp_ge_u32 s{S_T1}, 4",
        f"s_cbranch_scc1 {dn}", f"s_sub_u32 s{S_SPIN}, s{S_SPIN}, 1", f"s_cmp_lg_u32 s{S_SPIN}, 0", f"s_cbranch_scc1 {top}")
    a.label(dn)
    stamp(a, 11)
    for i in range(3):
        for q in range(4):
            a.e(f"ds_read_b128 {vr(CO+16*i+4*q,4)}, v{TT+14} offset:{i*4096+q*1024}")
    a.e("s_waitcnt lgkmcnt(8)")
    vadd(a, CO, CO, CO + 48, 16)
    a.e("s_waitcnt lgkmcnt(4)")
    vadd(a, CO, CO, CO + 16, 16)
    a.e("s_waitcnt lgkmcnt(0)")
    vadd(a, CO, CO, CO + 32, 16)
    def check():
        a.e(f"v_pk_mul_f32 {vr(TT+8,2)}, {vr(CO,2)}, 0 op_sel_hi:[1,0]", f"v_pk_mul_f32 {vr(TT+10,2)}, {vr(CO+2,2)}, 0 op_sel_hi:[1,0]")
        for i in range(2, 8):
            r = TT + 8 + 2 * (i % 2)
            a.e(f"v_pk_fma_f32 {vr(r,2)}, {vr(CO+2*i,2)}, 0, {vr(r,2)} op_sel_hi:[1,0,1]")
        a.e(f"v_cmp_nle_f32 vcc, {f2u(2.0**-30):#x}, v{TT+6}", f"v_cmp_nge_f32 s[4:5], s{SC_BIG}, v{TT+6}", f"v_pk_add_f32 {vr(TT+8,2)}, {vr(TT+8,2)}, {vr(TT+10,2)}",
            "s_or_b64 vcc, vcc, s[4:5]", f"v_cmp_u_f32 s[6:7], v{TT+8}, v{TT+9}", "s_or_b64 vcc, vcc, s[6:7]")
        if O.force_fb: a.e("s_mov_b64 vcc, -1")
        if not (O.poison or O.plite): a.e(f"s_cmp_lg_u32 s{SC_IT}, 0", "s_cselect_b64 vcc, 0, vcc")
        a.e("s_cbranch_vccnz L_fallback")
    a.e(f"v_mov_b32 v{TT+5}, v{CO+12}", f"v_mov_b32 v{TT+6}, v{CO+12}", f"s_mov_b32 s{SC_IT}, 0", f"v_permlane32_swap_b32 v{TT+5}, v{TT+6}")
    if O.poison or O.plite: check()
    a.label("L_fb_done")
    a.e(f"v_rcp_f32 v{TT+5}, v{TT+6}", f"v_mul_f32 v{TT+5}, v{TT+5}, v{C_G}")
    def fin(k):
        a.e(f"v_cvt_pk_bf16_f32 v{CP+k}, v{CO+16+2*k}, v{CO+17+2*k}")
        if O.poison or O.plite: a.e(f"v_min_u32 v{CP+k}, -2, v{CP+k}")
    for k in range(8):
        vscale(a, CO + 16 + 2 * k, CO + 2 * k, TT + 5, 2)
        if k: fin(k - 1)
        if k == 4:
            a.e(f"buffer_store_dwordx4 {vr(CP,4)}, v{V_SH}, {sr(S_WS,4)}, s{S_OST} offen {SC1}")
    fin(7)
    a.e("s_mov_b32 exec_lo, 0", f"v_mov_b32 v{CP+6}, 0", f"v_mov_b32 v{CP+7}, 0", "s_mov_b32 exec_lo, -1")
    a.e(f"buffer_store_dwordx4 {vr(CP+4,4)}, v{V_SH}, {sr(S_WS,4)}, s{S_OST} offen offset:1024 {SC1}")
    if not (O.poison or O.plite):
        check()
        a.e("s_waitcnt vmcnt(0)", "s_mov_b64 exec, 1")
        a.e(f"buffer_store_dwordx2 {vr(TT,2)}, v{V_ZERO}, {sr(S_WS,4)}, s{S_OFL} offen {SC1}")
    stamp(a, 12)
    if O.red8:
        sk = uid("r8")
        a.e("s_mov_b64 exec, -1", "s_setprio 0", "s_cmp_ge_u32 s2, 224", f"s_cbranch_scc1 {sk}")
        a.e("s_and_b32 s4, s2, 7", "s_lshr_b32 s5, s2, 3", "s_mul_i32 s6, s5, 37", "s_lshr_b32 s6, s6, 8", "s_mul_i32 s7, s6, 7", "s_sub_u32 s7, s5, s7",
            "s_lshl_b32 s4, s4, 2", "s_add_u32 s6, s6, s4")
        red_addr(a, TT, 6, 7)
        a.e("s_barrier")
        red_pass(a, TT, [0])
        a.label(sk)
    stamp_end(a)
    a.e("s_endpgm")
    fallback(a)
    a.label(spin)
    poll_spin(a, [C_PA, C_PB], V_PD)
    if O.early:
        first_loads(a)
        a.e(f"s_branch {go}")
    else:
        a.e(f"s_branch {go2}")

def red_addr(a, TT, rt, ct):
    a.e(f"v_and_b32 v{TT+4}, 255, v0", f"v_lshrrev_b32 v{TT}, 3, v{TT+4}", f"v_and_b32 v{TT+1}, 7, v0", f"v_mul_u32_u24 v{TT+5}, 272, v{TT}",
        f"v_lshl_add_u32 v{TT+5}, v{TT+1}, 5, v{TT+5}")
    a.e(f"v_mul_u32_u24 v{TT+3}, 896, v{TT}", f"v_lshl_add_u32 v{TT+3}, v{TT+1}, 4, v{TT+3}")
    a.e(f"s_mul_i32 s{S_T0}, s{rt}, {64*896}", f"s_lshl_b32 s{S_T1}, s{ct}, 7", f"s_add_u32 s{S_T0}, s{S_T0}, s{S_T1}",
        f"s_add_u32 s{S_T1}, s{S_T0}, {32*896}")
    a.e(f"v_add_u32 v{TT+6}, {2*L_DREG}, v{TT+5}")

def red_pass(a, TT, ps):
    for p in ps:
        for w in range(4):
            for q in range(2):
                a.e(f"ds_read_b128 {vr(DACC+32*p+8*w+4*q,4)}, v{TT+5+w//2} offset:{(w%2)*L_DREG + p*32*272 + q*16}")
    for p in ps:
        b = DACC + 32 * p
        left = 8 * (len(ps) - 1 - ps.index(p))
        a.e(f"s_waitcnt lgkmcnt({left + 4})")
        vadd(a, b, b, b + 8, 8)
        a.e(f"s_waitcnt lgkmcnt({left})")
        vadd(a, b + 16, b + 16, b + 24, 8)
        vadd(a, b, b, b + 16, 8)
        for k in range(4):
            a.e(f"v_cvt_pk_bf16_f32 v{b+8+k}, v{b+2*k}, v{b+2*k+1}")
        a.e(f"buffer_store_dwordx4 {vr(b+8,4)}, v{TT+3}, {sr(S_OUT,4)}, s{S_T0 if p == 0 else S_T1} offen {O.outf}")

def dphase(a):
    L, TT = V_LANE, D_T
    vm, lg = Vm(), Lg()
    RW, RB = O.rw, O.rb
    ts = epi_F(a, vm, S_LOB)
    fin = uid("dfin")
    a.e(f"s_cmp_ge_u32 s2, 224", f"s_cbranch_scc1 {fin}")
    a.e(f"s_and_b32 s{S_W}, s{S_W}, 3")
    a.e(f"s_mul_i32 s{SD_BB}, s{SD_RT}, {2*HO_TB}", f"s_mul_i32 s{S_T0}, s{S_W}, {28*1024}", f"s_add_u32 s{SD_BB}, s{SD_BB}, s{S_T0}",
        f"s_add_u32 s{SD_BB}, s{SD_BB}, {WS_HO}")
    NK = 36
    wt, bt = {}, {}
    pace = [O.d_pace >= 0]
    def wload(n):
        if n == 28:
            a.e(f"s_mul_i32 s{SD_W}, s{S_W}, {112*896}", f"s_lshl_b32 s{S_T0}, s{SD_CT}, 7", f"s_add_u32 s{SD_W}, s{SD_W}, s{S_T0}")
        elif n < 28 and n % 4 == 0:
            a.e(f"s_bfe_u32 s{SD_W}, s{SD_CP}, {(4 << 16) | n:#x}", f"s_mul_i32 s{SD_W}, s{SD_W}, {64*896}", f"s_add_u32 s{SD_W}, s{SD_W}, s{SD_WB}")
        row = 16 * (n % 4) if n < 28 else 28 * ((n - 28) // 2) + 16 * (n % 2)
        w = S_WD if n < 28 else S_WO
        slot = n % RW
        a.e(f"s_add_u32 m0, s{SD_LDS}, {slot*2048}", f"s_add_u32 s{S_T0}, s{SD_W}, {row*896}")
        a.e(f"buffer_load_dwordx4 v{D_VW}, {sr(w,4)}, s{S_T0} offen lds"); vm.issue()
        a.e(f"s_add_u32 m0, s{SD_LDS}, {slot*2048+1024}", f"s_add_u32 s{S_T0}, s{S_T0}, {8*896}")
        a.e(f"buffer_load_dwordx4 v{D_VW}, {sr(w,4)}, s{S_T0} offen lds"); wt[n] = vm.issue()
        if pace[0]: a.e(f"s_waitcnt vmcnt({O.d_pace})")
    def bload(n):
        if n == 28:
            a.e(f"s_mul_i32 s{SD_B0}, s{SD_RT}, {2*HO_TB}", f"s_mul_i32 s{S_T0}, s{S_W}, {8*1024}", f"s_add_u32 s{SD_B0}, s{SD_B0}, s{S_T0}",
                f"s_add_u32 s{SD_B0}, s{SD_B0}, {WS_HO + 112*1024}", f"s_add_u32 s{SD_B1}, s{SD_B0}, {HO_TB}")
        elif n == 32:
            a.e(f"s_add_u32 s{SD_B0}, s{SD_B0}, 4096", f"s_add_u32 s{SD_B1}, s{SD_B1}, 4096")
        elif n % 4 == 0:
            a.e(f"s_bfe_u32 s{SD_B0}, s{SD_CP}, {(4 << 16) | n:#x}", f"s_lshl_b32 s{SD_B0}, s{SD_B0}, 12", f"s_add_u32 s{SD_B0}, s{SD_B0}, s{SD_BB}",
                f"s_add_u32 s{SD_B1}, s{SD_B0}, {HO_TB}")
        slot = n % RB
        a.e(f"buffer_load_dwordx4 {vr(DB+8*slot,4)}, v{V_SH}, {sr(S_WS,4)}, s{SD_B0} offen offset:{(n%4)*1024} {SC1}"); vm.issue()
        a.e(f"buffer_load_dwordx4 {vr(DB+8*slot+4,4)}, v{V_SH}, {sr(S_WS,4)}, s{SD_B1} offen offset:{(n%4)*1024} {SC1}"); bt[n] = vm.issue()
        if pace[0]: a.e(f"s_waitcnt vmcnt({O.d_pace})")
    lt = {}
    def areads(n):
        vm.wait(a, wt[n])
        slot = n % RW
        for nb in range(2):
            for u in range(2):
                a.e(f"ds_read_b64_tr_b16 {vr(DA+8*(n%2)+4*nb+2*u,2)}, v{(D_TRN if O.f16 and n < 28 else D_TR)+nb} offset:{slot*2048+u*(512 if O.f16 and n < 28 else 1024)}"); lt[(n, nb)] = lg.issue()
    keep_pace = pace[0]; pace[0] = False
    for n in range(O.d_first):
        wload(n)
    pace[0] = keep_pace
    vm.wait(a, ts)
    publish(a, f"s{S_LFL}"); vm.issue()
    for n in range(O.wpre): wt[n] = ts
    for n in range(max(O.d_first, O.wpre), RW):
        wload(n)
    stamp(a, 8)
    poll_spin(a, [D_PH], V_PD)
    stamp(a, 9)
    a.e(f"buffer_load_dwordx2 {vr(V_PD,2)}, v{D_PO}, {sr(S_WS,4)}, s{S_T0} offen {SC1}"); vm.issue()
    if O.h_touch:
        a.e(f"v_lshrrev_b32 v{TT+3}, 4, v{L}", f"v_mul_u32_u24 v{TT+3}, 7168, v{TT+3}", f"v_bfe_u32 v{TT+4}, v{L}, 3, 1",
            f"v_mul_u32_u24 v{TT+4}, {HO_TB}, v{TT+4}", f"v_add_u32 v{TT+3}, v{TT+3}, v{TT+4}", f"v_and_b32 v{TT+4}, 7, v{L}",
            f"v_lshl_add_u32 v{TT+3}, v{TT+4}, 7, v{TT+3}", f"s_mul_i32 s{S_T0}, s{S_W}, 28", f"s_add_u32 s{S_T0}, s{S_T0}, s{SD_CT}",
            f"s_lshl_b32 s{S_T0}, s{S_T0}, 10", f"s_mul_i32 s{S_T1}, s{SD_RT}, {2*HO_TB}", f"s_add_u32 s{S_T0}, s{S_T0}, s{S_T1}",
            f"s_add_u32 s{S_T0}, s{S_T0}, {WS_HO}", f"buffer_load_dword v{TT+5}, v{TT+3}, {sr(S_WS,4)}, s{S_T0} offen {SC1}"); vm.issue()
    a.e(f"v_and_b32 v{TT+1}, 31, v{L}", f"v_lshlrev_b32 v{TT+2}, 2, v{TT+1}", f"s_lshl_b32 s{S_T0}, s{SD_RT}, 8", f"s_add_u32 s{S_T0}, s{S_T0}, {WS_G}")
    a.e(f"buffer_load_dword v{D_G}, v{TT+2}, {sr(S_WS,4)}, s{S_T0} offen {SC1}"); vm.issue()
    a.e(f"buffer_load_dword v{D_G+1}, v{TT+2}, {sr(S_WS,4)}, s{S_T0} offen offset:128 {SC1}"); vm.issue()
    for n in range(RB):
        bload(n)
    if O.wo_touch:
        a.e(f"s_and_b32 s4, s{SD_RT}, 3", "s_mul_i32 s4, s4, 28", f"s_mul_i32 s5, s{S_W}, 112", "s_add_u32 s4, s4, s5", f"v_min_u32 v{TT+3}, 27, v{L}",
            f"v_add_u32 v{TT+3}, s4, v{TT+3}", f"v_mul_u32_u24 v{TT+3}, 896, v{TT+3}", f"s_lshl_b32 s4, s{SD_CT}, 7",
            f"buffer_load_dword v{TT+4}, v{TT+3}, {sr(S_WO,4)}, s4 offen"); vm.issue()
    if O.poison or O.plite:
        poll_spin(a, [D_PO], V_PD)
    if O.plite:
        a.e(f"v_lshrrev_b32 v{TT+3}, 5, v{L}", f"v_mul_u32_u24 v{TT+3}, {HO_TB}, v{TT+3}", f"v_and_b32 v{D_PO}, 3, v{L}",
            f"v_lshl_add_u32 v{D_PO}, v{D_PO}, 11, v{TT+3}", f"v_add_u32 v{D_PO}, 2032, v{D_PO}")
    if O.poison or O.wo2:
        NK = 28
    def gowait():
        pace[0] = False
        if O.delay_d:
            top, dn = uid("dg"), uid("dg")
            a.e(f"v_mov_b32 v{TT+3}, s{S_CNT}", f"s_mov_b32 s{S_SPIN}, 0x40000")
            a.label(top)
            a.e(f"ds_read_b32 v{TT+4}, v{TT+3} offset:4", "s_waitcnt lgkmcnt(0)", f"v_readfirstlane_b32 s{S_T0}, v{TT+4}", f"s_cmp_lg_u32 s{S_T0}, 0",
                f"s_cbranch_scc1 {dn}", f"s_sleep {O.dsleep}", f"s_sub_u32 s{S_SPIN}, s{S_SPIN}, 1", f"s_cmp_lg_u32 s{S_SPIN}, 0", f"s_cbranch_scc1 {top}")
            a.label(dn)
            if O.prio_d: a.e(f"s_setprio {O.prio_d}")
            stamp(a, 15)
    DONE, RDY, SO = SD_CP, SD_WB, 4
    OBH = [DB + 96, DB + 112, DB, DB + 16]
    AW = DB + 32
    def oload(i):
        for s_ in range(2):
            for tb in range(2):
                a.e(f"buffer_load_dwordx4 {vr(OBH[i]+8*s_+4*tb,4)}, v{V_SH}, {sr(S_WS,4)}, s{SO + 2*(i//2) + tb} offen offset:{((2*i+s_)%4)*1024} {SC1}"); vm.issue()
    def ofirst():
        a.e(f"s_mul_i32 s{SO}, s{SD_RT}, {2*HO_TB}", f"s_mul_i32 s{S_T0}, s{S_W}, {8*1024}", f"s_add_u32 s{SO}, s{SO}, s{S_T0}",
            f"s_add_u32 s{SO}, s{SO}, {WS_HO + 112*1024}", f"s_add_u32 s{SO+1}, s{SO}, {HO_TB}",
            f"s_add_u32 s{SO+2}, s{SO}, 4096", f"s_add_u32 s{SO+3}, s{SO+1}, 4096")
        for i in range(4): oload(i)
    if O.d_pre == 0: gowait()
    areads(0)
    for n in range(NK):
        if n == O.d_pre and n > 0:
            gowait()
        if n == 28:
            stamp(a, 10)
            poll_spin(a, [D_PO], V_PD, sleep=O.o_sleep)
            stamp(a, 11)
            for k in range(28, NK):
                bload(k)
            a.e(f"v_sub_f32 v{D_G}, 1.0, v{D_G}", f"v_sub_f32 v{D_G+1}, 1.0, v{D_G+1}")
            for nb in range(2):
                for tb in range(2):
                    for i in range(16):
                        r = DACC + 32 * nb + 16 * tb + i
                        a.e(f"v_mul_f32 v{r}, v{r}, v{D_G+tb}")
        if O.bars == 4 and n % 4 == 0 and n < 28: stamp(a, 16 + n // 4)
        if n + 1 < NK:
            areads(n + 1)
        vm.wait(a, bt[n])
        slot = n % RB
        parts = []
        if O.d_il and n >= 1:
            sub = Asm(); keep = a.lines; a.lines = sub.lines
            if n - 1 + RW < 36: wload(n - 1 + RW)
            if n - 1 + RB < 28: bload(n - 1 + RB)
            a.lines = keep
            cur = []
            for l in sub.lines:
                cur.append(l)
                if "buffer_load" in l: parts.append(cur); cur = []
            if cur: parts[-1].extend(cur)
        for nb in range(2):
            lg.wait(a, lt[(n, nb)])
            for tb in range(2):
                acc = DACC + 32 * nb + 16 * tb
                a.e(f"{MFMA} {vr(acc,16)}, {vr(DA+8*(n%2)+4*nb,4)}, {vr(DB+8*slot+4*tb,4)}, {'0' if n == 0 else vr(acc,16)}")
                if parts: a.lines.extend(parts.pop(0))
        if not O.d_il:
            if n + RW < 36:
                wload(n + RW)
            if n + RB < 28:
                bload(n + RB)
        if O.poison and n == O.o_early: ofirst()
        if O.wo2 and n == O.o_pre:
            a.e(f"s_mov_b32 s{S_T0}, {WS_F}", f"buffer_load_dwordx2 {vr(V_PD,2)}, v{D_PO}, {sr(S_WS,4)}, s{S_T0} offen {SC1}"); vm.issue()
        if O.wo2 and n == O.o_poll:
            a.e(f"s_mov_b32 s{S_T0}, {WS_F}", f"buffer_load_dwordx2 {vr(V_PD,2)}, v{D_PO}, {sr(S_WS,4)}, s{S_T0} offen {SC1}"); optk = vm.issue()
        if O.wo2 and n == O.o_chk:
            sk = uid("oe")
            vm.wait(a, optk)
            a.e(f"s_mov_b32 s{DONE}, 0")
            poll_check(a, V_PD, sk)
            n0 = vm.n; ofirst(); vm.n = n0
            a.e(f"s_mov_b32 s{DONE}, 1")
            a.label(sk)
    if O.wo2:
        stamp(a, 10)
        lw = uid("ow")
        a.e(f"v_sub_f32 v{D_G}, 1.0, v{D_G}", f"v_sub_f32 v{D_G+1}, 1.0, v{D_G+1}")
        if O.o_poll < 28:
            a.e(f"s_cmp_eq_u32 s{DONE}, 0", f"s_cbranch_scc1 L_olate", "s_waitcnt vmcnt(16)")
            a.label("L_oback")
        else:
            def oloads():
                a.e(f"s_mul_i32 s{SO}, s{SD_RT}, {2*HO_TB}", f"s_mul_i32 s{S_T0}, s{S_W}, {8*1024}", f"s_add_u32 s{SO}, s{SO}, s{S_T0}",
                    f"s_add_u32 s{SO}, s{SO}, {WS_HO + 112*1024}", f"s_add_u32 s{SO+1}, s{SO}, {HO_TB}",
                    f"s_add_u32 s{SO+2}, s{SO}, 4096", f"s_add_u32 s{SO+3}, s{SO+1}, 4096")
                for tb in range(2):
                    for k in range(8):
                        a.e(f"buffer_load_dwordx4 {vr(OBH[k//2]+8*(k%2)+4*tb,4)}, v{V_SH}, {sr(S_WS,4)}, s{SO + 2*(k//4) + tb} offen offset:{(k%4)*1024} {SC1}")
            if O.o_pre < 28:
                a.e("s_waitcnt vmcnt(0)", f"s_mov_b32 s{DONE}, 0")
                poll_check(a, V_PD, "L_onot")
                oloads()
                a.e(f"s_mov_b32 s{DONE}, 1")
                a.label("L_onot")
            else:
                vm.wait(a, wt[35])
        for n in range(28, 36):
            for nb in range(2):
                for u in range(2):
                    a.e(f"ds_read_b64_tr_b16 {vr(AW+8*(n-28)+4*nb+2*u,2)}, v{D_TR+nb} offset:{(n%RW)*2048+u*1024}")
        for nb in range(2):
            for tb in range(2):
                vscale(a, DACC + 32 * nb + 16 * tb, DACC + 32 * nb + 16 * tb, D_G + tb, 16)
        a.e(f"v_lshrrev_b32 v{TT}, 5, v{L}", f"v_mul_u32_u24 v{TT+2}, 272, v{TT+1}", f"v_lshl_add_u32 v{TT+2}, v{TT}, 4, v{TT+2}",
            f"v_add_u32 v{TT+2}, s{SD_LDS}, v{TT+2}")
        if O.o_poll >= 28:
            if O.plite:
                a.e(f"s_mul_i32 s{SO}, s{SD_RT}, {2*HO_TB}", f"s_mul_i32 s{S_T0}, s{S_W}, {8*1024}", f"s_add_u32 s{SO}, s{SO}, s{S_T0}",
                    f"s_add_u32 s{SO}, s{SO}, {WS_HO + 112*1024}", f"s_add_u32 s{SO+1}, s{SO}, {HO_TB}",
                    f"s_add_u32 s{SO+2}, s{SO}, 4096", f"s_add_u32 s{SO+3}, s{SO+1}, 4096", f"s_mov_b32 s{S_SPIN}, 0x10000")
                a.label("L_probe")
                a.e(f"buffer_load_dword v{V_PD}, v{D_PO}, {sr(S_WS,4)}, s{SO} offen {SC1}", f"s_sub_u32 s{S_SPIN}, s{S_SPIN}, 1", f"s_cmp_eq_u32 s{S_SPIN}, 0",
                    "s_cbranch_scc1 L_probed", "s_waitcnt vmcnt(0)", f"v_cmp_eq_u32 vcc, -1, v{V_PD}", "s_and_b64 vcc, vcc, exec", "s_cbranch_vccnz L_probe")
                a.label("L_probed")
                stamp(a, 11)
                if O.stamp == 1:
                    a.e(f"s_mul_i32 s{SO}, s{SD_RT}, {2*HO_TB}", f"s_mul_i32 s{S_T0}, s{S_W}, {8*1024}", f"s_add_u32 s{SO}, s{SO}, s{S_T0}",
                        f"s_add_u32 s{SO}, s{SO}, {WS_HO + 112*1024}", f"s_add_u32 s{SO+1}, s{SO}, {HO_TB}",
                        f"s_add_u32 s{SO+2}, s{SO}, 4096", f"s_add_u32 s{SO+3}, s{SO+1}, 4096")
                def tbloads(tb):
                    for k in range(8):
                        a.e(f"buffer_load_dwordx4 {vr(OBH[k//2]+8*(k%2)+4*tb,4)}, v{V_SH}, {sr(S_WS,4)}, s{SO + 2*(k//4) + tb} offen offset:{(k%4)*1024} {SC1}")
                def vchk(tb, k):
                    b = OBH[k // 2] + 8 * (k % 2) + 4 * tb
                    r = TT + 6 + tb
                    return [f"v_max3_u32 v{r}, v{b}, v{b+1}, " + (f"v{r}" if k else f"v{b+2}"), f"v_max3_u32 v{r}, v{b+2}, v{b+3}, v{r}"]
                a.label("L_oa")
                tbloads(0); tbloads(1)
                for k in range(8):
                    a.e(f"s_waitcnt vmcnt({15 - k})", *vchk(0, k))
                a.e(f"v_cmp_eq_u32 vcc, -1, v{TT+6}", "s_waitcnt lgkmcnt(0)", "s_and_b64 vcc, vcc, exec", "s_cbranch_vccnz L_oa_retry")
                a.label("L_oa_ok")
            else:
                if O.o_pre < 28: a.e(f"s_cmp_lg_u32 s{DONE}, 0", "s_cbranch_scc1 L_ogot")
                poll_spin(a, [D_PO], V_PD, sleep=O.o_sleep)
                oloads()
                if O.o_pre < 28: a.label("L_ogot")
                stamp(a, 11)
                a.e("s_waitcnt lgkmcnt(0)")
        else:
            a.e("s_waitcnt vmcnt(0) lgkmcnt(0)")
            stamp(a, 11)
        def wr(q, g):
            nb, tb = q % 2, q // 2
            a.e(f"ds_write_b128 v{TT+2}, {vr(DACC+32*nb+16*tb+4*g,4)} offset:{tb*32*272 + nb*128 + g*32}")
        for q in range(4):
            nb, tb = q % 2, q // 2
            acc = DACC + 32 * nb + 16 * tb
            for k in range(8):
                if O.o_poll >= 28 and nb == 0 and not O.plite: a.e(f"s_waitcnt vmcnt({15 - 8 * tb - k})")
                if O.plite and q == 2 and k == 0:
                    a.e(f"v_cmp_eq_u32 vcc, -1, v{TT+7}", "s_nop 0", "s_and_b64 vcc, vcc, exec", "s_cbranch_vccnz L_ob_retry")
                    a.label("L_ob_ok")
                a.e(f"{MFMA} {vr(acc,16)}, {vr(AW+8*k+4*nb,4)}, {vr(OBH[k//2]+8*(k%2)+4*tb,4)}, {vr(acc,16)}")
                if O.plite and q == 0: a.e(f"s_waitcnt vmcnt({7 - k})", *vchk(1, k))
                if q and k >= 4:
                    if k == 4: a.e("s_nop 7")
                    wr(q - 1, k - 4)
                if O.red8 and q == 3 and k == 1: a.e("s_waitcnt lgkmcnt(0)", "s_barrier")
        for g in range(4): wr(3, g)
    if O.poison:
        a.e(f"v_sub_f32 v{D_G}, 1.0, v{D_G}", f"v_sub_f32 v{D_G+1}, 1.0, v{D_G+1}")
        vm.wait(a, wt[35])
        for n in range(28, 36):
            for nb in range(2):
                for u in range(2):
                    a.e(f"ds_read_b64_tr_b16 {vr(AW+8*(n-28)+4*nb+2*u,2)}, v{D_TR+nb} offset:{(n%RW)*2048+u*1024}")
        for nb in range(2):
            for tb in range(2):
                for i in range(16):
                    r = DACC + 32 * nb + 16 * tb + i
                    a.e(f"v_mul_f32 v{r}, v{r}, v{D_G+tb}")
        a.e("s_waitcnt lgkmcnt(0)")
        a.e(f"s_mov_b32 s{DONE}, 0", f"s_mov_b32 s{S_SPIN}, 0x10000")
        a.label("L_oround")
        a.e(f"s_mov_b32 s{RDY}, 0")
        for i in range(4):
            sk, bad = uid("oc"), uid("oc")
            a.e(f"s_bitcmp1_b32 s{DONE}, {i}", f"s_cbranch_scc1 {sk}")
            if i == 0: pass
            a.e(f"s_waitcnt vmcnt(0)" if i == 0 or True else "")
            b = OBH[i]
            a.e(f"v_max3_u32 v{TT}, v{b}, v{b+1}, v{b+2}", f"v_max3_u32 v{TT+4}, v{b+3}, v{b+4}, v{b+5}")
            for k in range(6, 14, 4):
                a.e(f"v_max3_u32 v{TT}, v{TT}, v{b+k}, v{b+k+1}", f"v_max3_u32 v{TT+4}, v{TT+4}, v{b+k+2}, v{b+k+3}")
            a.e(f"v_max3_u32 v{TT}, v{TT}, v{b+14}, v{b+15}", f"v_max_u32 v{TT}, v{TT}, v{TT+4}", f"v_cmp_eq_u32 vcc, -1, v{TT}", f"s_cbranch_vccnz {sk}",
                f"s_bitset1_b32 s{RDY}, {i}")
            a.label(sk)
        a.e(f"s_or_b32 s{DONE}, s{DONE}, s{RDY}")
        for i in range(4):
            sk = uid("or")
            a.e(f"s_bitcmp1_b32 s{DONE}, {i}", f"s_cbranch_scc1 {sk}")
            oload(i)
            a.label(sk)
        for i in range(4):
            sk = uid("om")
            a.e(f"s_bitcmp0_b32 s{RDY}, {i}", f"s_cbranch_scc1 {sk}")
            for s_ in range(2):
                for nb in range(2):
                    for tb in range(2):
                        acc = DACC + 32 * nb + 16 * tb
                        a.e(f"{MFMA} {vr(acc,16)}, {vr(AW+8*(2*i+s_)+4*nb,4)}, {vr(OBH[i]+8*s_+4*tb,4)}, {vr(acc,16)}")
            a.label(sk)
        a.e(f"s_cmp_eq_u32 s{DONE}, 15", "s_cbranch_scc1 L_odone", f"s_sub_u32 s{S_SPIN}, s{S_SPIN}, 1", f"s_cmp_lg_u32 s{S_SPIN}, 0", "s_cbranch_scc1 L_oround")
        a.label("L_odone")
        a.e("s_nop 7", "s_nop 7")
    stamp(a, 12)
    if not O.wo2:
        a.e(f"v_lshrrev_b32 v{TT}, 5, v{L}", f"v_mul_u32_u24 v{TT+2}, 272, v{TT+1}", f"v_lshl_add_u32 v{TT+2}, v{TT}, 4, v{TT+2}",
            f"v_add_u32 v{TT+2}, s{SD_LDS}, v{TT+2}")
        for nb in range(2):
            for tb in range(2):
                for g in range(4):
                    a.e(f"ds_write_b128 v{TT+2}, {vr(DACC+32*nb+16*tb+4*g,4)} offset:{tb*32*272 + nb*128 + g*32}")
    red_addr(a, TT, SD_RT, SD_CT)
    a.e("s_waitcnt lgkmcnt(0)", "s_barrier")
    red_pass(a, TT, [1] if O.red8 else [0, 1])
    if O.stamp: a.e(f"s_add_u32 s{S_W}, s{S_W}, 4")
    stamp_end(a)
    a.e("s_endpgm")
    if O.plite:
        a.label("L_oa_retry")
        a.e(f"s_sub_u32 s{S_SPIN}, s{S_SPIN}, 1", f"s_cmp_gt_i32 s{S_SPIN}, 0", "s_waitcnt vmcnt(0)", "s_cbranch_scc1 L_oa", "s_branch L_oa_ok")
        a.label("L_ob_retry")
        tbloads(1)
        a.e("s_waitcnt vmcnt(0)")
        for k in range(8): a.e(*vchk(1, k))
        a.e(f"v_cmp_eq_u32 vcc, -1, v{TT+7}", f"s_sub_u32 s{S_SPIN}, s{S_SPIN}, 1", "s_and_b64 vcc, vcc, exec", "s_cbranch_vccz L_ob_ok",
            f"s_cmp_gt_i32 s{S_SPIN}, 0", "s_cbranch_scc1 L_ob_retry", "s_branch L_ob_ok")
    if O.wo2 and O.o_poll < 28:
        a.label("L_olate")
        poll_spin(a, [D_PO], V_PD, sleep=O.o_sleep)
        ofirst()
        a.e("s_branch L_oback")
    a.label(fin)
    a.e("s_waitcnt vmcnt(0)")
    publish(a, f"s{S_LFL}")
    stamp_end(a)
    a.e("s_endpgm")

def gen(a):
    K = NAME + "_kernel"
    a.label(K)
    a.e("s_cmp_ge_u32 s2, 256", "s_cbranch_scc1 L_exit")
    stamp_start(a)
    prologue(a)
    N = S_N
    a.e(f"s_cmp_eq_u32 s{S_J}, 12", "s_cbranch_scc1 L_B", f"s_cmp_eq_u32 s{S_J}, 14", "s_cbranch_scc1 L_C",
        f"s_cmp_gt_u32 s{S_J}, 12", "s_cbranch_scc1 L_D")
    def paramsA(a, gis):
        nf = 0
        for gi, k in enumerate(O.order_A):
            if gi in gis:
                if k == "QK": a.e(f"s_mov_b32 s{N}, s{S_J}")
                else: a.e(f"s_lshl_b32 s{N}, s{S_J}, 1", f"s_add_u32 s{N}, s{N}, {nf}")
                group_params(a, gi, k, N)
            if k == "F": nf += 1
    ab_program(a, O.order_A, paramsA)
    a.label("L_tail")
    if not O.sg and not O.wpre: a.e("s_waitcnt lgkmcnt(0)", "s_barrier")
    if O.wpre:
        a.e("v_mov_b32 v205, 1", "s_waitcnt lgkmcnt(0)", "s_mov_b64 exec, 1", "ds_add_u32 v204, v205 offset:8", "s_mov_b64 exec, -1")
    stamp(a, 7)
    a.e(f"s_cmp_ge_u32 s{S_W}, 4", "s_cbranch_scc1 L_dphase")
    if O.sg: a.e("s_waitcnt lgkmcnt(0)", "s_barrier")
    attention(a)
    a.label("L_dphase")
    a.e("s_nop 7", "s_nop 7")
    dphase(a)
    for lab, kinds in (("C", ["V", "V", "S", "F"]), ("D", ["V", "V", "S", "F"])):
        a.label(f"L_{lab}")
        def params(a, gis, kinds=kinds):
            for gi in gis:
                k = kinds[gi]
                if k == "V": a.e(f"s_lshl_b32 s{N}, s{S_J}, 1", f"s_sub_u32 s{N}, s{N}, {11 - gi}")
                if k == "F": a.e(f"s_add_u32 s{N}, s{S_J}, 12")
                group_params(a, gi, k, N)
        ab_program(a, kinds, params, solo="G" if lab == "C" else "H")
        a.e("s_branch L_tail")
    a.label("L_B")
    kb, nb = ["QK", "QK", "F"], [12, 13, 24]
    def paramsB(a, gis):
        for gi in gis:
            a.e(f"s_mov_b32 s{N}, {nb[gi]}"); group_params(a, gi, kb[gi], N)
    ab_program(a, kb, paramsB)
    a.e("s_branch L_tail")
    a.label("L_exit")
    a.e("s_endpgm")
    a.label("L_code_end")

DOC = """;
; One persistent launch, 256 workgroups x 8 waves (one workgroup per CU), three phases chained by tagged flags in d_ws:
;  GEMM phase : x rows stationary in registers; wqkv / W_gate / W_up streamed HBM -> LDS (LDS-DMA) and read with
"""

def main(out):
    head = open("cdna_kernels/" + NAME + ".s.ref").read().split("; Override launch")[0]
    K = NAME + "_kernel"
    txt = head + "; @launch grid=(256,1,1) block=(512,1,1) lds=163840\n" + DOC
    txt += '.amdgcn_target "amdgcn-amd-amdhsa--gfx950"\n.text\n'
    a = Asm()
    gen(a)
    if O.dmaf or O.dmad:
        k0 = a.lines.index("L_dphase:"); k1 = a.lines.index("L_C:")
        for i_, l_ in enumerate(a.lines):
            if l_.endswith(" offen lds"):
                f_ = O.dmad if k0 < i_ < k1 else O.dmaf
                if f_: a.lines[i_] = l_[:-4] + f" {f_} lds"
    lines = fix_hazards(a.lines)
    for l_ in ("L_c_loop", "L_fb1", "L_fb2"): check_loop(lines, l_)
    txt += f".globl {K}\n.p2align 8\n.type {K},@function\n" + "\n".join(lines) + "\n"
    txt += f""".section .rodata,"a"
.p2align 6
.amdhsa_kernel {K}
  .amdhsa_next_free_vgpr 256
  .amdhsa_next_free_sgpr 102
  .amdhsa_accum_offset 256
  .amdhsa_group_segment_fixed_size 0
  .amdhsa_kernarg_size 88
  .amdhsa_user_sgpr_count 2
  .amdhsa_user_sgpr_kernarg_segment_ptr 1
  .amdhsa_system_sgpr_workgroup_id_x 1
.end_amdhsa_kernel
"""
    open(out, "w").write(txt)

if __name__ == "__main__":
    args = sys.argv[1:]
    out = "cdna_kernels/" + NAME + ".s"
    for x in args:
        if "=" in x:
            k, v = x.split("=", 1)
            setattr(O, k, eval(v))
        else:
            out = x
    set_rw(); set_pd()
    main(out)
```

```python
import sys, math, struct, re
from asmlib import *

NAME = "gated_mix__mha_block__glu_gated_reglu__prompt"
WS_QK, WS_HO, WS_G, WS_F, WS_END, WS_V, WS_ALL = 0, 0x540000, 0xE40000, 0xE50000, 0xE60000, 0x1000000, 0x1200000
F_T, F_H, F_O = 0, 0x6000, 0xE000
HO_TB = 144 * 1024
V_TB = 57 * 512
V_PAD = 4 * 448 * 16
OCT = 32768
QSCALE = (28 ** -0.5) * math.log2(math.e)
TAGX = 0x5bd1e995
def f2u(x): return struct.unpack("<I", struct.pack("<f", x))[0]

class Opt:
    stamp = False
    bars = False
    diag = None
    pubd_s = 2
    pubd = 3
    prio_attn = 1
    pref_code = 1
    pref_w = True
    mall_at = 5
    pack = 6
    spread = 1
    poll_back = 2
    pref_f = 0
    la1 = 3
    xlast = False
    dsplit = 4
    dq_first = True
    dq_off = 1
    wfirst = False
    wpre = 0
    wpre_e = 2
    sg = 0
    fbig = False
    minla = 2
    pd = 4
    ftouch = -1
    la0 = 2
    hsplit = True
    la = 36
    rot = True
    rotc = True
    rotd = True
    early = True
    hook_back = 5
    delay_d = True
    rw = 13
    rb = 16
    d_pre = 4
    d_go = (1, 5)
    d_first = 0
    o_sleep = 0
    ldm = 1
    lalign = 3
    f16 = False
    il16 = True
    plite = False
    fo_sh = 3
    dmaf = ''
    dmad = ''
    pk = False
    wt_early = True
    prio_d = 0
    prio_ld = 0
    peel = False
    poison = False
    wo_touch = False
    wo2 = True
    map48 = 2
    outf = ''
    d_il = True
    o_poll = 99
    o_pre = 99
    o_chk = 99
    o_early = 24
    red8 = False
    force_fb = False
    d_pace = 3
    noload = False
    dsleep = 4
    nod = False
    h_touch = False
    order_A = ["QK", "F", "F"]
O = Opt()

S_X, S_WQ, S_WG, S_WU, S_WS, S_WD, S_WO, S_OUT, S_GW, S_KV, S_DBG = 8, 12, 16, 20, 24, 28, 32, 36, 40, 44, 48
S_RB, S_J, S_W, S_W1K, S_T0, S_T1, S_XOFF, S_TB, S_CH, S_W2K = 56, 57, 58, 59, 60, 61, 62, 63, 64, 65
S_COL, S_OB, S_SC, S_N = 66, 70, 74, 7
S_TAG, S_FL, S_SPIN, S_LOB, S_LFL = 76, 78, 52, 53, 54
SC_HEAD, SC_QT, SC_K, SC_V0, SC_V1, SC_IT, SC_O, SC_EX = 82, 83, 84, 86, 87, 88, 89, 92
SD_RT, SD_CT, SD_B0, SD_B1, SD_W, SD_LDS, SD_CP, SD_WB, SD_BB = 82, 83, 84, 85, 86, 87, 88, 89, 90
MFMA = "v_mfma_f32_32x32x16_bf16"
MFMA16 = "v_mfma_f32_16x16x32_bf16"
V_TF1, D_TRN = 208, 248
SC1 = "sc1"

X, ACC, FR, T = 16, 128, 160, 192
V_LANE, V_WQ, V_WF, V_X0, V_X1, V_TR, V_SQ, V_SV, V_SH, V_T0, V_GS = 1, 2, 3, 4, 5, 6, 9, 10, 11, 12, 13
V_ZERO, V_T56 = 14, 15
V_XR, V_XC = 208, 212
V_LWF, V_LW, V_TRX, FB0 = 201, 202, 204, 216
S_W4K = 55
S_CP = 75
ROT7 = 0x0065432106543210
V_PD, V_NONCE, V_FD, V_DUM = 216, 200, 222, 203
CQ, CKV, CO, CS, CP = 16, 48, 128, 192, 224
C_VK, C_VV, C_PA, C_PB, C_MA, C_MB, C_G, C_T = 240, 241, 242, 243, 244, 245, 246, 112
C_ONE, C_VK1, C_VV1, C_QA = 247, 248, 249, 250
DACC, DB, DA = 16, 80, 224
D_VW, D_TR, D_PH, D_PO, D_G, D_T = 240, 242, 244, 245, 246, 208
PD, NUNIT, NFR = 4, 20, 8
def set_pd():
    global PD
    PD = O.pd
L_DREG = 22528
L_XCH = 4 * L_DREG
def set_rw():
    global L_DREG, L_XCH
    L_DREG = max(17408, O.rw * 2048); L_XCH = 4 * L_DREG
    assert L_XCH + 49152 <= 19 * 8192
S_EARLY, SC_BIG, S_OST, S_OFL, S_HD = 91, 87, 94, 95, 93
S_CNT = 3
EXEC_V = 0x0FFFFFFF

def srd(a, dst, src, nbytes):
    a.e(f"s_mov_b32 s{dst}, s{src}", f"s_and_b32 s{dst+1}, s{src+1}, 0xffff",
        f"s_mov_b32 s{dst+2}, {nbytes:#x}", f"s_mov_b32 s{dst+3}, 0x20000")

_uid = [0]
def uid(p):
    _uid[0] += 1
    return f"L_{p}{_uid[0]}"

def stamp_start(a):
    if O.stamp:
        a.e("s_memrealtime s[98:99]", "s_memtime s[100:101]")
def stamp(a, idx):
    if O.stamp == 1:
        a.e("s_memtime s[6:7]", "s_memrealtime s[4:5]", "s_waitcnt lgkmcnt(0)", "s_sub_u32 s6, s6, s100", f"v_writelane_b32 v255, s6, {idx}",
            f"v_writelane_b32 v255, s4, {32+idx}")
def stamp_end(a):
    if O.diag:
        idx, wg, wv = O.diag
        sk, top = uid("dg"), uid("dg")
        a.e("s_waitcnt vmcnt(0)", "s_mov_b64 exec, -1", f"s_cmp_lg_u32 s{S_W}, {wv}", f"s_cbranch_scc1 {sk}")
        if wg >= 0: a.e(f"s_cmp_lg_u32 s2, {wg}", f"s_cbranch_scc1 {sk}")
        if idx == -1: a.e("s_mov_b32 s6, s98")
        elif idx == -2: a.e("s_memrealtime s[6:7]", "s_waitcnt lgkmcnt(0)")
        elif idx == -3: a.e(f"s_add_u32 s6, s98, 500", f"s_mov_b32 s98, s{S_TAG}")
        else: a.e(f"v_readlane_b32 s6, v255, {32+idx}", "s_nop 3")
        a.e("s_sub_u32 s6, s6, s98", "s_min_u32 s6, s6, 10000", "s_mul_i32 s6, s6, 10", "s_add_u32 s6, s6, 6000")
        a.label(top)
        a.e("s_memrealtime s[4:5]", "s_waitcnt lgkmcnt(0)", "s_sub_u32 s4, s4, s98", "s_cmp_lt_u32 s4, s6", f"s_cbranch_scc1 {top}")
        a.label(sk)
        return
    if O.stamp:
        a.e("s_waitcnt vmcnt(0)", "s_memrealtime s[4:5]", "s_memtime s[6:7]", "s_waitcnt lgkmcnt(0)", "s_sub_u32 s6, s6, s100")
        a.e("v_writelane_b32 v255, s6, 29", "v_writelane_b32 v255, s98, 30", "v_writelane_b32 v255, s4, 31")
        a.e("s_mov_b64 exec, -1", "s_lshl_b32 s4, s2, 11", f"s_lshl_b32 s5, s{S_W}, 8", "s_add_u32 s4, s4, s5", f"s_add_u32 s4, s4, {WS_END}")
        a.e(f"v_lshlrev_b32 v254, 2, v{V_LANE}")
        a.e(f"buffer_store_dword v255, v254, {sr(S_WS,4)}, s4 offen")

class Cnt:
    def __init__(self, name, mx): self.n = 0; self.name = name; self.mx = mx
    def issue(self): self.n += 1; return self.n
    def wait(self, a, ticket):
        k = self.n - ticket
        a.e(f"s_waitcnt {self.name}({min(k, self.mx)})")
def Vm(): return Cnt("vmcnt", 63)
def Lg(): return Cnt("lgkmcnt", 15)

def publish(a, soff):
    a.e("s_mov_b64 exec, 1", f"buffer_store_dwordx2 {vr(V_FD,2)}, v{V_ZERO}, {sr(S_WS,4)}, {soff} offen {SC1}", "s_mov_b64 exec, -1")

def poll_check(a, data, fail_label):
    a.e(f"v_cmp_ne_u32 vcc, s{S_TAG}, v{data}", f"v_cmp_ne_u32 s[4:5], s{S_TAG+1}, v{data+1}", "s_or_b64 vcc, vcc, s[4:5]",
        f"s_cbranch_vccnz {fail_label}")

def poll_spin(a, addrs, data, sleep=2):
    top, done = uid("spin"), uid("spind")
    a.e(f"s_mov_b32 s{S_SPIN}, 0x8000")
    a.label(top)
    a.e(f"s_mov_b32 s{S_T0}, {WS_F}")
    for i, ad in enumerate(addrs):
        a.e(f"buffer_load_dwordx2 {vr(data+2*i,2)}, v{ad}, {sr(S_WS,4)}, s{S_T0} offen {SC1}")
    a.e("s_waitcnt vmcnt(0)", "s_mov_b64 s[6:7], 0")
    for i in range(len(addrs)):
        a.e(f"v_cmp_ne_u32 vcc, s{S_TAG}, v{data+2*i}", f"v_cmp_ne_u32 s[4:5], s{S_TAG+1}, v{data+2*i+1}",
            "s_or_b64 s[6:7], s[6:7], vcc", "s_or_b64 s[6:7], s[6:7], s[4:5]")
    a.e("s_cmp_eq_u64 s[6:7], 0", f"s_cbranch_scc1 {done}", f"s_sleep {sleep}" if sleep else "s_nop 0", f"s_sub_u32 s{S_SPIN}, s{S_SPIN}, 1",
        f"s_cmp_lg_u32 s{S_SPIN}, 0", f"s_cbranch_scc1 {top}")
    a.label(done)

def code_pref(a):
    a.e("s_getpc_b64 s[4:5]")
    a.label("L_pc")
    a.e(f"v_cmp_le_u32 vcc, 448, v0", "s_cbranch_vccz L_nocp")
    a.e(f"s_lshr_b32 s6, s2, 3", "s_lshl_b32 s6, s6, 11", f"v_and_b32 v{T}, 15, v0", f"v_lshlrev_b32 v{T}, 7, v{T}", f"v_add_u32 v{T}, s6, v{T}",
        f"v_min_u32 v{T}, L_code_end-L_pc-4, v{T}", f"global_load_dword v{V_DUM}, v{T}, s[4:5]")
    a.label("L_nocp")

def prologue(a):
    L = V_LANE
    A, B, C = T + 1, T + 2, T + 3
    a.e("s_load_dwordx4 s[76:79], s[0:1], 0")
    a.e(f"v_lshrrev_b32 v{V_T0}, 6, v0", f"v_and_b32 v{V_LANE}, 63, v0", f"v_readfirstlane_b32 s{S_W}, v{V_T0}")
    if O.map48 == 1:
        a.e(f"s_bfe_u32 s{S_RB}, s2, 0x20000", f"s_lshl_b32 s{S_RB}, s{S_RB}, 2", f"s_bfe_u32 s{S_T0}, s2, 0x20003", f"s_add_u32 s{S_RB}, s{S_RB}, s{S_T0}",
            f"s_bfe_u32 s{S_J}, s2, 0x10002", f"s_lshr_b32 s{S_T0}, s2, 5", f"s_lshl_b32 s{S_T0}, s{S_T0}, 1", f"s_add_u32 s{S_J}, s{S_J}, s{S_T0}")
    elif O.map48 == 2:
        a.e(f"s_and_b32 s{S_RB}, s2, 1", f"s_lshl_b32 s{S_RB}, s{S_RB}, 3", f"s_bfe_u32 s{S_T0}, s2, 0x30003", f"s_add_u32 s{S_RB}, s{S_RB}, s{S_T0}",
            f"s_bfe_u32 s{S_J}, s2, 0x20001", f"s_lshr_b32 s{S_T0}, s2, 6", f"s_lshl_b32 s{S_T0}, s{S_T0}, 2", f"s_add_u32 s{S_J}, s{S_J}, s{S_T0}")
    else:
        a.e(f"s_and_b32 s{S_RB}, s2, 1", f"s_lshl_b32 s{S_RB}, s{S_RB}, 3", f"s_bfe_u32 s{S_T0}, s2, 0x30003", f"s_add_u32 s{S_RB}, s{S_RB}, s{S_T0}",
            f"s_bfe_u32 s{S_J}, s2, 0x20001", f"s_lshl_b32 s{S_J}, s{S_J}, 2", f"s_lshr_b32 s{S_T0}, s2, 6", f"s_add_u32 s{S_J}, s{S_J}, s{S_T0}")
    a.e(f"s_lshl_b32 s{S_N}, s{S_J}, 1", f"s_sub_u32 s{S_N}, s{S_N}, 11", f"s_cmp_le_u32 s{S_J}, 12", f"s_cselect_b32 s{S_N}, s{S_J}, s{S_N}",
        f"s_lshl_b32 s{S_COL}, s{S_N}, 7", f"s_mul_i32 s{S_XOFF}, s{S_RB}, {128*896}")
    if O.rot == 2 or O.rot == 4 or O.rot == 3:
        tab = {2: 0x0404 << 0, 4: 0x5420, 3: 0x5050}[O.rot]
        tab = {2: 0x4040, 4: 0x5420, 3: 0x3030}[O.rot]
        a.e(f"s_add_u32 s{S_T0}, s{S_J}, s{S_RB}", f"s_and_b32 s{S_T0}, s{S_T0}, 3", f"s_lshl_b32 s{S_T0}, s{S_T0}, 2",
            f"s_lshr_b32 s{S_T0}, {tab:#x}, s{S_T0}", f"s_and_b32 s{S_T0}, s{S_T0}, 15", f"s_lshl_b32 s{S_T0}, s{S_T0}, 2",
            f"s_mov_b32 s4, {ROT7 & 0xffffffff:#x}", f"s_mov_b32 s5, {ROT7 >> 32:#x}", f"s_lshr_b64 s[4:5], s[4:5], s{S_T0}", f"s_mov_b32 s{S_CP}, s4")
    elif O.rot:
        if O.map48 == 1:
            a.e(f"s_and_b32 s{S_T0}, s{S_RB}, 3", f"s_lshl_b32 s{S_T0}, s{S_T0}, 1", f"s_lshr_b32 s{S_T1}, s{S_J}, 1")
        elif O.map48 == 2:
            a.e(f"s_lshr_b32 s{S_T0}, s{S_J}, 2", f"s_lshl_b32 s{S_T0}, s{S_T0}, 1", f"s_and_b32 s{S_T1}, s{S_RB}, 7")
        else:
            a.e(f"s_and_b32 s{S_T0}, s{S_J}, 3", f"s_lshl_b32 s{S_T0}, s{S_T0}, 1", f"s_and_b32 s{S_T1}, s{S_RB}, 7")
        a.e(f"s_add_u32 s{S_T0}, s{S_T0}, s{S_T1}",
            f"s_cmp_ge_u32 s{S_T0}, 7", f"s_cselect_b32 s{S_T1}, 7, 0", f"s_sub_u32 s{S_T0}, s{S_T0}, s{S_T1}", f"s_lshl_b32 s{S_T0}, s{S_T0}, 2",
            f"s_mov_b32 s4, {ROT7 & 0xffffffff:#x}", f"s_mov_b32 s5, {ROT7 >> 32:#x}", f"s_lshr_b64 s[4:5], s[4:5], s{S_T0}", f"s_mov_b32 s{S_CP}, s4")
    else:
        a.e(f"s_mov_b32 s{S_CP}, 0x6543210")
    a.e(f"s_mov_b32 s{S_X+2}, {2048*896:#x}", f"s_mov_b32 s{S_X+3}, 0x20000", f"s_mov_b32 s{S_WQ+2}, {448*2688:#x}", f"s_mov_b32 s{S_WQ+3}, 0x20000")
    a.e(f"v_lshrrev_b32 v{A}, 3, v{L}", f"v_and_b32 v{B}, 7, v{L}")
    a.e(f"s_lshl_b32 s{S_W2K}, s{S_W}, 11", f"s_lshl_b32 s{S_W4K}, s{S_W}, 12")
    a.e(f"v_bfe_u32 v{C}, v{L}, 4, 1", f"v_lshlrev_b32 v{C}, 2, v{C}", f"v_xor_b32 v{T+4}, v{C}, v{B}",
        f"s_lshl_b32 s{S_T0}, s{S_W}, 4", f"v_add_u32 v{T+5}, s{S_T0}, v{A}", f"v_mul_u32_u24 v{V_LW}, 2688, v{T+5}",
        f"v_lshl_add_u32 v{V_LW}, v{T+4}, 4, v{V_LW}")
    a.e(f"v_lshrrev_b32 v{C}, 4, v{L}", f"v_xor_b32 v{C}, v{C}, v{B}", f"v_add_u32 v{V_T0}, s{S_T0}, v{T+5}", f"v_mul_u32_u24 v{V_T0}, 896, v{V_T0}",
        f"v_lshl_add_u32 v{V_X0}, v{C}, 4, v{V_T0}", f"v_xor_b32 v{C}, 4, v{C}", f"v_lshl_add_u32 v{V_X1}, v{C}, 4, v{V_T0}",
        f"v_add_u32 v{V_X1}, {8*896}, v{V_X1}")
    a.e("s_waitcnt lgkmcnt(0)")
    a.e(f"s_mov_b32 s{S_X}, s76", f"s_and_b32 s{S_X+1}, s77, 0xffff", f"s_mov_b32 s{S_WQ}, s78", f"s_and_b32 s{S_WQ+1}, s79, 0xffff")
    stamp(a, 13)
    a.e("s_load_dwordx8 s[80:87], s[0:1], 16", "s_load_dwordx8 s[88:95], s[0:1], 48", "s_load_dwordx2 s[96:97], s[0:1], 80")
    a.e(f"s_cmp_ge_u32 s{S_W}, 4", "s_cbranch_scc1 L_nold")
    for c in range(O.la0):
        dma_g0(a, c, 14 + c)
    a.label("L_nold")
    stamp(a, 0)
    if O.pref_code: code_pref(a)
    a.e("s_waitcnt lgkmcnt(0)")
    srd(a, S_WG, 84, 448 * 3584); srd(a, S_WU, 86, 448 * 3584)
    a.e(f"s_lshl_b32 s{S_W1K}, s{S_W}, 10", f"s_lshr_b32 s{S_CH}, s{S_W}, 2",
        f"s_and_b32 s{S_T0}, s{S_W}, 3", f"s_lshl_b32 s{S_TB}, s{S_RB}, 2", f"s_add_u32 s{S_TB}, s{S_TB}, s{S_T0}")
    if O.f16:
        a.e(f"s_lshl_b32 s{S_T0}, s{S_W}, 1", f"s_and_b32 s{S_T0}, s{S_T0}, 2", f"v_xor_b32 v{T+6}, s{S_T0}, v{T+4}",
            f"s_and_b32 s{S_T0}, s{S_W}, 2", f"v_xor_b32 v{T+7}, s{S_T0}, v{T+4}")
    a.e(f"v_mul_u32_u24 v{V_LWF}, 3584, v{T+5}", f"v_lshl_add_u32 v{V_LWF}, v{T+6 if O.f16 else T+4}, 4, v{V_LWF}")
    a.e(f"s_lshl_b32 s{S_T0}, s{S_W}, 3", f"v_add_u32 v{V_T0}, s{S_T0}, v{A}")
    a.e(f"v_mul_u32_u24 v{V_WQ}, 2688, v{V_T0}", f"v_lshl_add_u32 v{V_WQ}, v{T+4}, 4, v{V_WQ}")
    a.e(f"v_mul_u32_u24 v{V_WF}, 3584, v{V_T0}", f"v_lshl_add_u32 v{V_WF}, v{T+7 if O.f16 else T+4}, 4, v{V_WF}")
    a.e(f"v_lshlrev_b32 v{V_SH}, 4, v{L}")
    prologue2(a)
    a.e(f"v_xor_b32 v{V_TRX}, 64, v{V_TR+1}", f"v_xor_b32 v{V_TRX+1}, 64, v{V_TR+2}")
    if O.pref_f == 1: pref_weights(a, None, [(4, S_WG), (5, S_WU)], True)
    stamp(a, 1)

def koff(dst, p, mul, base):
    return [f"s_bfe_u32 s{dst}, s{S_CP}, {(4 << 16) | (4 * p):#x}", f"s_mul_i32 s{dst}, s{dst}, {mul}", f"s_add_u32 s{dst}, s{dst}, s{base}"]

def dma_g0(a, c, unit, parts="xw"):
    xs, ws = [], []
    if "x" in parts:
        xs = [(f"s_add_u32 m0, s{S_W4K}, {c*16384}", *koff(S_T0, c, 128, S_XOFF), f"buffer_load_dwordx4 v{V_X0}, {sr(S_X,4)}, s{S_T0} offen lds"),
              (f"s_add_u32 m0, s{S_W4K}, {c*16384+1024}", "s_nop 0", f"buffer_load_dwordx4 v{V_X1}, {sr(S_X,4)}, s{S_T0} offen lds"),
              (f"s_add_u32 m0, s{S_W4K}, {c*16384+2048}", f"s_add_u32 s{S_T0}, s{S_T0}, {16*896}", f"buffer_load_dwordx4 v{V_X0}, {sr(S_X,4)}, s{S_T0} offen lds"),
              (f"s_add_u32 m0, s{S_W4K}, {c*16384+3072}", "s_nop 0", f"buffer_load_dwordx4 v{V_X1}, {sr(S_X,4)}, s{S_T0} offen lds")]
    if "w" in parts:
        ws = [(f"s_add_u32 m0, s{S_W2K}, {unit*8192}", *koff(S_T1, c, 64 * 2688, S_COL), f"buffer_load_dwordx4 v{V_LW}, {sr(S_WQ,4)}, s{S_T1} offen lds"),
              (f"s_add_u32 m0, s{S_W2K}, {unit*8192+1024}", f"s_add_u32 s{S_T1}, s{S_T1}, {8*2688}", f"buffer_load_dwordx4 v{V_LW}, {sr(S_WQ,4)}, s{S_T1} offen lds")]
    for g_ in ws + xs: a.e(*g_)
    return len(xs) + len(ws)

class Vm2:
    def __init__(self): self.n = [0, 0]; self.lo_only = False
    def issue(self):
        self.n[0] += 1
        if self.lo_only: return (self.n[0], None)
        self.n[1] += 1; return tuple(self.n)
    def issue_lo(self, k): self.n[0] += k; return (self.n[0], 0)
    def wait(self, a, tickets):
        t = [max(x[i] for x in tickets) for i in range(2)]
        k = [min(63, self.n[i] - t[i]) if t[i] else 63 for i in range(2)]
        if k[0] == k[1]:
            a.e(f"s_waitcnt vmcnt({k[0]})")
        elif k[1] == 63:
            nx = uid("vw")
            a.e(f"s_cmp_ge_u32 s{S_W}, 4", f"s_cbranch_scc1 {nx}", f"s_waitcnt vmcnt({k[0]})")
            a.label(nx)
        elif abs(k[0] - k[1]) <= 2:
            a.e(f"s_waitcnt vmcnt({min(k)})")
        elif k[1] < k[0]:
            nx = uid("vw")
            a.e(f"s_waitcnt vmcnt({k[0]})", f"s_cmp_lt_u32 s{S_W}, 4", f"s_cbranch_scc1 {nx}", f"s_waitcnt vmcnt({k[1]})")
            a.label(nx)
        else:
            nx = uid("vw")
            a.e(f"s_waitcnt vmcnt({k[1]})", f"s_cmp_ge_u32 s{S_W}, 4", f"s_cbranch_scc1 {nx}", f"s_waitcnt vmcnt({k[0]})")
            a.label(nx)

def prologue2(a):
    L = V_LANE
    A, B, C = T + 1, T + 2, T + 3
    srd(a, S_WO, 80, 448 * 896); srd(a, S_WD, 88, 1792 * 896); srd(a, S_GW, 90, 896); srd(a, S_OUT, 92, 2048 * 896)
    srd(a, S_DBG, 94, 256); srd(a, S_WS, 96, WS_ALL); srd(a, S_KV, 96, WS_ALL)
    a.e(f"v_mov_b32 v{V_ZERO}, 0")
    for r_ in range(240, 251): a.e(f"v_mov_b32 v{r_}, 0")
    skip = uid("nn")
    a.e(f"s_or_b32 s{S_T0}, s2, s{S_W}", f"s_cmp_lg_u32 s{S_T0}, 0", f"s_cbranch_scc1 {skip}")
    a.e("s_memrealtime s[4:5]", "s_waitcnt lgkmcnt(0)", "s_or_b32 s4, s4, 1", f"v_mov_b32 v{V_NONCE}, s4",
        "s_mov_b64 exec, 1", f"buffer_store_dword v{V_NONCE}, v{V_ZERO}, {sr(S_DBG,4)}, 0 offen {SC1}", "s_mov_b64 exec, -1")
    a.label(skip)
    a.e(f"v_lshrrev_b32 v{A}, 5, v{L}", f"v_bfe_u32 v{B}, v{L}, 2, 2", f"v_lshl_add_u32 v{C}, v{A}, 3, v{B}",
        f"v_lshlrev_b32 v{V_TR}, 7, v{C}", f"v_lshrrev_b32 v{B}, 1, v{B}", f"v_xor_b32 v{B}, s{S_CH}, v{B}",
        f"v_lshl_add_u32 v{V_TR}, v{B}, 6, v{V_TR}", f"v_bfe_u32 v{B}, v{L}, 4, 1", f"v_lshl_add_u32 v{V_TR}, v{B}, 5, v{V_TR}",
        f"v_and_b32 v{B}, 3, v{L}", f"v_lshl_add_u32 v{V_TR}, v{B}, 3, v{V_TR}",
        f"v_add_u32 v{V_TR+1}, 0x10000, v{V_TR}", f"v_add_u32 v{V_TR+2}, 0x20000, v{V_TR}")
    a.e(f"v_and_b32 v{B}, 31, v{L}", f"s_and_b32 s{S_T0}, s{S_W}, 3", f"s_lshl_b32 s{S_T0}, s{S_T0}, 5",
        f"v_add_u32 v{C}, s{S_T0}, v{B}", f"v_lshlrev_b32 v{V_T0}, 7, v{C}", f"v_bfe_u32 v{V_GS}, v{L}, 1, 3",
        f"v_xor_b32 v{V_GS}, v{V_GS}, v{A}")
    for e in range(4):
        a.e(f"v_xor_b32 v{V_XR+e}, {2*e}, v{V_GS}", f"v_lshl_add_u32 v{V_XR+e}, v{V_XR+e}, 4, v{V_T0}")
    a.e(f"s_lshl_b32 s{S_T0}, s{S_TB}, 5", f"v_add_u32 v{C}, s{S_T0}, v{B}", f"v_lshlrev_b32 v{V_SQ}, 4, v{C}",
        f"v_lshl_add_u32 v{V_SQ}, v{A}, 15, v{V_SQ}", f"v_lshlrev_b32 v{V_GS}, 2, v{C}")
    a.e(f"v_mul_u32_u24 v{V_SV}, 7168, v{A}", f"v_lshl_add_u32 v{V_SV}, v{B}, 4, v{V_SV}")

def role_c(a):
    L = V_LANE
    A, B, C = 204, 205, 206
    a.e(f"v_lshrrev_b32 v{A}, 5, v{L}", f"v_and_b32 v{B}, 31, v{L}")
    a.e(f"s_and_b32 s{S_T0}, s2, 7", f"s_lshr_b32 s{S_T1}, s2, 3")
    a.e(f"s_and_b32 s{SC_HEAD}, s{S_T1}, 1", f"s_lshl_b32 s{SC_HEAD}, s{SC_HEAD}, 3", f"s_add_u32 s{SC_HEAD}, s{SC_HEAD}, s{S_T0}",
        f"s_lshr_b32 s{SC_QT}, s{S_T1}, 1", f"s_mul_i32 s{SC_O}, s{SC_HEAD}, 7", f"s_lshr_b32 s{SC_O}, s{SC_O}, 1")
    a.e(f"v_lshlrev_b32 v{C_VK}, 4, v{B}", f"v_lshl_add_u32 v{C_VK}, v{A}, 15, v{C_VK}")
    a.e(f"s_mul_i32 s{S_T0}, s{SC_HEAD}, 448", f"v_add_u32 v{C_VV}, s{S_T0}, v{V_SV}")
    a.e(f"s_mov_b32 s{SC_BIG}, {f2u(2.0**30):#x}")
    a.e(f"s_add_u32 s4, s{SC_O}, 56", "s_lshl_b32 s4, s4, 15", f"s_lshl_b32 s5, s{S_W}, 13", "s_add_u32 s4, s4, s5",
        f"s_mov_b32 s{SC_K+1}, s4", f"v_add_u32 v{C_VK1}, s4, v{C_VK}", f"v_mov_b32 v{C_QA}, v{C_VK}", f"v_mov_b32 v{C_VK}, v{C_VK1}",
        f"v_add_u32 v{C_VK1}, {2*OCT}, v{C_VK1}")
    a.e(f"v_add_u32 v{C_VV1}, 14336, v{C_VV}", f"v_lshlrev_b32 v{C}, 4, v{B}", f"v_add_u32 v{C}, {V_PAD - 28*16}, v{C}", f"v_cmp_gt_u32 vcc, 28, v{B}",
        f"v_cndmask_b32 v{C_VV}, v{C}, v{C_VV}, vcc", f"v_cndmask_b32 v{C_VV1}, v{C}, v{C_VV1}, vcc")
    a.e(f"s_mul_i32 s4, s{S_W}, {16*V_TB}", f"s_add_u32 s4, s4, {WS_V}", f"v_add_u32 v{C_VV}, s4, v{C_VV}", f"v_add_u32 v{C_VV1}, s4, v{C_VV1}")
    if O.rotc:
        a.e(f"s_lshl_b32 s{SC_K}, s{SC_QT}, 9")
    else:
        a.e(f"s_mov_b32 s{SC_K}, 0")
    a.e(f"s_mul_i32 s{SC_V0}, s{SC_K}, 57")
    a.e(f"s_and_b32 s{S_T0}, s{SC_HEAD}, 1", f"v_cmp_le_u32 vcc, s{S_T0}, v{A}", f"v_cndmask_b32 v{C_MA}, 0, -1, vcc",
        f"v_cmp_ge_u32 vcc, s{S_T0}, v{A}", f"v_cndmask_b32 v{C_MB}, 0, -1, vcc")
    a.e(f"s_add_u32 s4, s{SC_O}, 56", "s_lshr_b32 s4, s4, 2", f"s_add_u32 s5, s{SC_O}, 59", "s_lshr_b32 s5, s5, 2",
        f"s_mul_i32 s6, s{SC_HEAD}, 28", "s_add_u32 s7, s6, 27", "s_lshr_b32 s6, s6, 5", "s_lshr_b32 s7, s7, 5",
        "s_add_u32 s6, s6, 28", "s_add_u32 s7, s7, 28")
    a.e(f"v_mov_b32 v{C_PA}, s7", f"v_mov_b32 v{C}, s6", f"v_cmp_gt_u32 vcc, 48, v{L}", f"v_cndmask_b32 v{C_PA}, v{C_PA}, v{C}, vcc",
        f"v_mov_b32 v{C}, s5", f"v_cmp_gt_u32 vcc, 32, v{L}", f"v_cndmask_b32 v{C_PA}, v{C_PA}, v{C}, vcc",
        f"v_mov_b32 v{C}, s4", f"v_cmp_gt_u32 vcc, 16, v{L}", f"v_cndmask_b32 v{C_PA}, v{C_PA}, v{C}, vcc")
    a.e(f"v_and_b32 v{C}, 15, v{L}", f"v_lshl_add_u32 v{C_PA}, v{C_PA}, 6, v{C}", f"s_lshl_b32 s4, s{S_W}, 4",
        f"v_add_u32 v{C_PA}, s4, v{C_PA}", f"v_lshlrev_b32 v{C_PA}, 3, v{C_PA}")
    a.e(f"s_lshr_b32 s4, s{SC_O}, 2", f"s_add_u32 s5, s{SC_O}, 3", "s_lshr_b32 s5, s5, 2", f"s_lshl_b32 s6, s{SC_QT}, 2")
    a.e(f"v_and_b32 v{C}, 3, v{L}", f"v_add_u32 v{C}, s6, v{C}")
    a.e(f"v_mov_b32 v{C_PB}, s5", f"v_mov_b32 v{V_T0}, s4", f"v_cmp_gt_u32 vcc, 4, v{L}", f"v_cndmask_b32 v{C_PB}, v{C_PB}, v{V_T0}, vcc",
        f"v_lshl_add_u32 v{C_PB}, v{C_PB}, 6, v{C}", f"v_lshlrev_b32 v{C_PB}, 3, v{C_PB}")
    a.e(f"v_lshlrev_b32 v{C}, 9, v{C}", f"v_add_u32 v{C}, {F_H + 56*8}, v{C}", f"v_cmp_gt_u32 vcc, 8, v{L}",
        f"v_cndmask_b32 v{C_PB}, v{C}, v{C_PB}, vcc")

def role_d(a):
    L = V_LANE
    A, B, C = 204, 205, 206
    done = uid("rdone")
    a.e(f"s_cmp_lt_u32 s{S_W}, 4", f"s_cbranch_scc1 {done}")
    a.e(f"v_lshrrev_b32 v{A}, 5, v{L}", f"v_and_b32 v{B}, 31, v{L}")
    a.e(f"s_and_b32 s{S_T0}, s2, 7", f"s_lshr_b32 s{S_T1}, s2, 3")
    a.e(f"s_mul_i32 s{SD_RT}, s{S_T1}, 37", f"s_lshr_b32 s{SD_RT}, s{SD_RT}, 8",
        f"s_mul_i32 s{SD_CT}, s{SD_RT}, 7", f"s_sub_u32 s{SD_CT}, s{S_T1}, s{SD_CT}", f"s_lshl_b32 s{S_T0}, s{S_T0}, 2",
        f"s_add_u32 s{SD_RT}, s{SD_RT}, s{S_T0}", f"s_and_b32 s{S_T0}, s{S_W}, 3", f"s_mul_i32 s{SD_LDS}, s{S_T0}, {L_DREG}")
    a.e(f"v_lshrrev_b32 v{C}, 3, v{L}", f"v_mul_u32_u24 v{D_VW}, 896, v{C}", f"v_and_b32 v{C}, 7, v{L}", f"v_bfe_u32 v{V_T0}, v{L}, 4, 1",
        f"v_lshlrev_b32 v{V_T0}, 2, v{V_T0}", f"v_xor_b32 v{C}, v{C}, v{V_T0}", f"v_lshl_add_u32 v{D_VW}, v{C}, 4, v{D_VW}")
    a.e(f"v_bfe_u32 v{C}, v{L}, 2, 2", f"v_lshl_add_u32 v{V_T0}, v{A}, 2, v{C}", f"v_lshlrev_b32 v{D_TR}, 7, v{V_T0}",
        f"v_lshrrev_b32 v{C}, 1, v{C}", f"v_lshl_add_u32 v{D_TR}, v{C}, 6, v{D_TR}", f"v_bfe_u32 v{C}, v{L}, 4, 1",
        f"v_lshl_add_u32 v{D_TR}, v{C}, 5, v{D_TR}", f"v_and_b32 v{C}, 3, v{L}", f"v_lshl_add_u32 v{D_TR}, v{C}, 3, v{D_TR}",
        f"v_xor_b32 v{D_TR+1}, 64, v{D_TR}", f"v_add_u32 v{D_TR}, s{SD_LDS}, v{D_TR}", f"v_add_u32 v{D_TR+1}, s{SD_LDS}, v{D_TR+1}")
    if O.f16: a.e(f"v_lshl_add_u32 v{D_TRN}, v{A}, 9, v{D_TR}", f"v_lshl_add_u32 v{D_TRN+1}, v{A}, 9, v{D_TR+1}")
    if O.rotd:
        a.e(f"s_and_b32 s4, s{SD_RT}, 3", "s_lshl_b32 s4, s4, 1", f"s_add_u32 s6, s4, s{SD_CT}", "s_cmp_ge_u32 s6, 7", "s_cselect_b32 s4, 7, 0",
            "s_sub_u32 s6, s6, s4", "s_lshl_b32 s6, s6, 2", f"s_mov_b32 s4, {ROT7 & 0xffffffff:#x}", f"s_mov_b32 s5, {ROT7 >> 32:#x}",
            "s_lshr_b64 s[4:5], s[4:5], s6", f"s_mov_b32 s{SD_CP}, s4")
    else:
        a.e(f"s_mov_b32 s{SD_CP}, 0x6543210")
    a.e(f"s_mul_i32 s{SD_WB}, s{S_T0}, {28*16*896}", f"s_lshl_b32 s4, s{SD_CT}, 7", f"s_add_u32 s{SD_WB}, s{SD_WB}, s4")
    a.e(f"s_mul_i32 s4, s{S_T0}, 14", f"v_add_u32 v{C}, s4, v{B}", f"v_cmp_gt_u32 vcc, 14, v{B}", f"v_cndmask_b32 v{C}, 56, v{C}, vcc",
        f"s_lshl_b32 s5, s{SD_RT}, 1", f"v_add_u32 v{V_T0}, s5, v{A}", f"v_lshl_add_u32 v{D_PH}, v{V_T0}, 6, v{C}",
        f"v_lshlrev_b32 v{D_PH}, 3, v{D_PH}", f"v_add_u32 v{D_PH}, {F_H}, v{D_PH}")
    a.e(f"s_lshl_b32 s4, s{S_T0}, 2", f"v_and_b32 v{C}, 3, v{L}", f"v_add_u32 v{C}, s4, v{C}", f"v_lshl_add_u32 v{D_PO}, v{V_T0}, 4, v{C}",
        f"v_lshlrev_b32 v{D_PO}, {O.fo_sh}, v{D_PO}", f"v_add_u32 v{D_PO}, {F_O if O.fo_sh == 3 else 0x11D0000 - WS_F}, v{D_PO}")
    a.label(done)

def pref_weights(a, vm, which, force=False):
    if not O.pref_w and not force: return
    end = uid("pw")
    a.e(f"s_lshl_b32 s{S_T0}, s2, 13", f"v_lshlrev_b32 v{T}, 7, v{V_LANE}")
    for w, s in which:
        nx = uid("pwn")
        a.e(f"s_cmp_lg_u32 s{S_W}, {w}", f"s_cbranch_scc1 {nx}", f"buffer_load_dword v{V_DUM}, v{T}, {sr(s,4)}, s{S_T0} offen")
        a.label(nx)

def group_params(a, gi, kind, nreg):
    col, ob, fl = S_COL + gi, S_OB + gi, S_FL + gi
    if kind == "G":
        a.e(f"s_lshl_b32 s{fl}, s{S_TB}, 9", f"s_add_u32 s{fl}, s{fl}, {WS_F + F_H + 56*8}")
        return
    if kind == "S":
        a.e(f"s_mov_b32 s{col}, {14*128}", f"s_sub_u32 s{S_T1}, s{S_J}, 13", f"s_lshr_b32 s{S_T1}, s{S_T1}, 1", f"s_add_u32 s{S_T1}, s{S_T1}, 28")
        a.e(f"s_lshl_b32 s{ob}, s{S_T1}, 9", f"s_mul_i32 s{S_T0}, s{S_TB}, {V_TB}", f"s_add_u32 s{ob}, s{ob}, s{S_T0}",
            f"s_add_u32 s{ob}, s{ob}, {WS_V - 14*1024}")
        a.e(f"s_lshl_b32 s{fl}, s{S_T1}, 6", f"s_add_u32 s{fl}, s{fl}, s{S_TB}", f"s_lshl_b32 s{fl}, s{fl}, 3", f"s_add_u32 s{fl}, s{fl}, {WS_F + F_T}")
        a.e(f"s_lshl_b32 s{S_T0}, s{S_TB}, 9", f"s_add_u32 s{S_T0}, s{S_T0}, {WS_F + F_H + 56*8}", f"s_cmp_ge_u32 s{S_W}, 4",
            f"s_cselect_b32 s{fl}, s{S_T0}, s{fl}")
        return
    if False:
        pass
    else:
        a.e(f"s_lshl_b32 s{col}, s{nreg}, 7", f"s_lshl_b32 s{S_T1}, s{nreg}, 1")
        if gi: a.e(f"s_add_u32 s{S_T1}, s{S_T1}, s{S_CH}")
    if kind == "QK":
        a.e(f"s_lshl_b32 s{ob}, s{S_T1}, 17")
        a.e(f"s_cmp_lt_u32 s{nreg}, 7", f"s_cselect_b32 s{S_SC}, {f2u(QSCALE):#x}, 1.0")
    elif kind == "V":
        a.e(f"s_lshl_b32 s{ob}, s{S_T1}, 9", f"s_mul_i32 s{S_T0}, s{S_TB}, {V_TB}", f"s_add_u32 s{ob}, s{ob}, s{S_T0}",
            f"s_add_u32 s{ob}, s{ob}, {WS_V - 14*1024}")
    elif kind == "F":
        a.e(f"s_lshl_b32 s{ob}, s{S_T1}, 11", f"s_mul_i32 s{S_T0}, s{S_TB}, {HO_TB}", f"s_add_u32 s{ob}, s{ob}, s{S_T0}",
            f"s_add_u32 s{ob}, s{ob}, {WS_HO}")
    if kind == "F":
        a.e(f"s_lshl_b32 s{fl}, s{S_TB}, 6", f"s_add_u32 s{fl}, s{fl}, s{S_T1}", f"s_lshl_b32 s{fl}, s{fl}, 3", f"s_add_u32 s{fl}, s{fl}, {WS_F + F_H}")
    else:
        a.e(f"s_lshl_b32 s{fl}, s{S_T1}, 6", f"s_add_u32 s{fl}, s{fl}, s{S_TB}", f"s_lshl_b32 s{fl}, s{fl}, 3", f"s_add_u32 s{fl}, s{fl}, {WS_F + F_T}")

def vadd(a, d, x, y, n):
    if O.pk:
        for i in range(0, n, 2): a.e(f"v_pk_add_f32 {vr(d+i,2)}, {vr(x+i,2)}, {vr(y+i,2)}")
    else:
        for i in range(n): a.e(f"v_add_f32 v{d+i}, v{x+i}, v{y+i}")
def vscale(a, d, x, sc, n):
    if O.pk:
        hi = sc % 2
        for i in range(0, n, 2): a.e(f"v_pk_mul_f32 {vr(d+i,2)}, {vr(x+i,2)}, {vr(sc-hi,2)} op_sel:[0,{hi}] op_sel_hi:[1,{hi}]")
    else:
        for i in range(n): a.e(f"v_mul_f32 v{d+i}, v{x+i}, v{sc}")

def epi_F(a, vm, ob, T=T):
    A0, A1 = ACC, ACC + 16
    for i in range(16):
        a.e(f"v_max_f32 v{A0+i}, 0, v{A0+i}")
    if O.pk:
        for i in range(0, 16, 2): a.e(f"v_pk_mul_f32 {vr(A0+i,2)}, {vr(A0+i,2)}, {vr(A1+i,2)}")
    else:
        for i in range(16):
            a.e(f"v_mul_f32 v{A0+i}, v{A0+i}, v{A1+i}")
    for k in range(8):
        a.e(f"v_cvt_pk_bf16_f32 v{T+k}, v{A0+2*k}, v{A0+2*k+1}")
        if k == (5 if O.f16 else 3):
            if O.f16: a.e(f"v_permlane16_swap_b32 v{T}, v{T+2}", f"v_permlane16_swap_b32 v{T+1}, v{T+3}")
            a.e(f"buffer_store_dwordx4 {vr(T,4)}, v{V_SH}, {sr(S_WS,4)}, s{ob} offen {SC1}"); vm.issue()
    if O.f16: a.e(f"v_permlane16_swap_b32 v{T+4}, v{T+6}", f"v_permlane16_swap_b32 v{T+5}, v{T+7}")
    a.e(f"buffer_store_dwordx4 {vr(T+4,4)}, v{V_SH}, {sr(S_WS,4)}, s{ob} offen offset:1024 {SC1}")
    return vm.issue()

def epilogue(a, vm, gi, kind, A0=ACC):
    ob = S_OB + gi
    if kind == "QK":
        if O.pk:
            a.e(f"v_mov_b32 v{V_T0}, s{S_SC}")
            vscale(a, A0, A0, V_T0, 16)
        else:
            for i in range(16):
                a.e(f"v_mul_f32 v{A0+i}, s{S_SC}, v{A0+i}")
        for k in range(8):
            a.e(f"v_cvt_pk_bf16_f32 v{T+k}, v{A0+2*k}, v{A0+2*k+1}")
        for p in range(2):
            a.e(f"v_permlane32_swap_b32 v{T+4*p}, v{T+4*p+2}", f"v_permlane32_swap_b32 v{T+4*p+1}, v{T+4*p+3}")
            a.e(f"s_add_u32 s{S_T0}, s{ob}, {2*p*OCT}")
            a.e(f"buffer_store_dwordx4 {vr(T+4*p,4)}, v{V_SQ}, {sr(S_WS,4)}, s{S_T0} offen {SC1}"); t = vm.issue()
        return t
    if kind in ("V", "H"):
        for k in range(8):
            a.e(f"v_cvt_pk_bf16_f32 v{T+k}, v{A0+2*k}, v{A0+2*k+1}")
            if k == 3:
                a.e(f"buffer_store_dwordx4 {vr(T,4)}, v{V_SV}, {sr(S_WS,4)}, s{ob} offen {SC1}"); vm.issue()
        a.e(f"s_add_u32 s{S_T0}, s{ob}, 14336")
        a.e(f"buffer_store_dwordx4 {vr(T+4,4)}, v{V_SV}, {sr(S_WS,4)}, s{S_T0} offen {SC1}"); vm.issue()
        a.e(f"v_cmp_gt_u32 vcc, 4, v{V_LANE}", f"v_mov_b32 v{V_T0}, 0x3f803f80", f"v_lshlrev_b32 v207, 2, v{V_LANE}", f"s_mul_i32 s{S_T0}, s{S_TB}, {V_TB}",
            f"v_cndmask_b32 v{V_T0}, 0, v{V_T0}, vcc", f"s_add_u32 s{S_T0}, s{S_T0}, {WS_V + V_PAD}", "s_mov_b64 exec, 0xffff",
            f"buffer_store_dword v{V_T0}, v207, {sr(S_WS,4)}, s{S_T0} offen {SC1}", "s_mov_b64 exec, -1")
        return vm.issue()
    if kind == "F":
        return epi_F(a, vm, ob)
    a.e(f"v_mul_f32 v{T}, {f2u(-math.log2(math.e)):#x}, v{A0}", f"v_exp_f32 v{T}, v{T}", f"v_add_f32 v{T}, 1.0, v{T}",
        f"v_rcp_f32 v{T}, v{T}", f"s_mov_b32 s{S_T0}, {WS_G}", "s_nop 0")
    a.e(f"buffer_store_dword v{T}, v{V_GS}, {sr(S_WS,4)}, s{S_T0} offen {SC1}")
    return vm.issue()

def get_tag(a):
    ok, top = uid("tagok"), uid("tagspin")
    a.e(f"v_readfirstlane_b32 s{S_TAG}, v{V_NONCE}", f"s_cmp_lg_u32 s{S_TAG}, 0", f"s_cbranch_scc1 {ok}", f"s_mov_b32 s{S_SPIN}, 0x8000")
    a.label(top)
    a.e(f"buffer_load_dword v{V_NONCE}, v{V_ZERO}, {sr(S_DBG,4)}, 0 offen {SC1}", "s_waitcnt vmcnt(0)",
        f"v_readfirstlane_b32 s{S_TAG}, v{V_NONCE}", f"s_cmp_lg_u32 s{S_TAG}, 0", f"s_cbranch_scc1 {ok}", "s_sleep 2",
        f"s_sub_u32 s{S_SPIN}, s{S_SPIN}, 1", f"s_cmp_lg_u32 s{S_SPIN}, 0", f"s_cbranch_scc1 {top}")
    a.label(ok)
    a.e(f"s_xor_b32 s{S_TAG+1}, s{S_TAG}, {TAGX:#x}", f"v_mov_b32 v{V_FD}, s{S_TAG}", f"v_mov_b32 v{V_FD+1}, s{S_TAG+1}")

def wd_piece(n, h):
    L_ = []
    if n % 4 == 0 and h == 0:
        L_ += [f"s_bfe_u32 s{SD_W}, s{SD_CP}, {(4 << 16) | n:#x}", f"s_mul_i32 s{SD_W}, s{SD_W}, {64*896}", f"s_add_u32 s{SD_W}, s{SD_W}, s{SD_WB}"]
    return L_ + [f"s_add_u32 m0, s{SD_LDS}, {n*2048 + h*1024}", f"s_add_u32 s97, s{SD_W}, {(16*(n%4) + 8*h)*896}",
                 f"buffer_load_dwordx4 v{D_VW}, {sr(S_WD,4)}, s97 offen lds"]

def ab_program(a, kinds, params, solo=None):
    vm, lg = Vm2(), Lg()
    stages = []
    for gi, kind in enumerate(kinds):
        if gi == 0: continue
        if kind == "F":
            for k0, nk in (O.fbig if O.fbig else [(4 * c, 4) for c in range(7)]):
                stages.append(dict(gi=gi, k0=k0, nk=nk, kind=kind, nu=nk // 2))
        elif kind == "S" and solo == "G":
            stages.append(dict(gi=gi, k0=0, nk=28, kind=kind, nu=1))
        else:
            for k0, nk in ((0, 8), (8, 8), (16, 8), (24, 4)):
                stages.append(dict(gi=gi, k0=k0, nk=nk, kind=kind, nu=nk // 4))
    mf = []
    for si, st in enumerate(stages):
        st["first"] = len(mf)
        for s in range(st["k0"], st["k0"] + st["nk"]):
            for tile in range(2 if st["kind"] == "F" else 1):
                mf.append(dict(si=si, s=s, tile=tile, kind=st["kind"], gi=st["gi"]))
    g0 = [dict(u=14 + c if c < 6 else 14) for c in range(7)]
    for c in range(O.la0):
        g0[c]["t"] = vm.issue_lo(6)
    free = []
    state = dict(next_dma=0, tag=False, nonce=None)
    pend, dq, wq = [], [], []
    def issue_dma(si, lo):
        st = stages[si]
        gi, kind = st["gi"], st["kind"]
        if O.wpre:
            NS = len(stages)
            if si >= NS - 3: free.sort(key=lambda q: (not 13 <= q <= 18))
            elif si >= NS - 9: free.sort(key=lambda q: (q >= 13))
            if si >= NS - 3: assert all(13 <= q <= 18 for q in free[:st["nu"]]), (kinds, si, free)
        elif si >= len(stages) - 2 and 19 in free[:st["nu"]] and len(free) > st["nu"]:
            free.remove(19); free.append(19)
        st["u"] = [free.pop(0) for _ in range(st["nu"])]
        u = st["u"]
        c = st["k0"] // 4
        if lo:
            if kind == "F":
              for p_ in range(st["nk"] // 4):
                a.e(*koff(S_T0, c + p_, 64 * 3584, S_COL + gi), f"s_add_u32 s{S_T1}, s{S_T0}, {8*3584}")
                for q, w in enumerate((S_WG, S_WU)):
                    a.e(f"s_add_u32 m0, s{S_W2K}, {u[2*p_+q]*8192}", "s_nop 0", f"buffer_load_dwordx4 v{V_LWF}, {sr(w,4)}, s{S_T0} offen lds")
                    a.e(f"s_add_u32 m0, s{S_W2K}, {u[2*p_+q]*8192+1024}", "s_nop 0", f"buffer_load_dwordx4 v{V_LWF}, {sr(w,4)}, s{S_T1} offen lds")
            else:
                for q in range(st["nu"]):
                    a.e(f"s_add_u32 m0, s{S_W2K}, {u[q]*8192}", *koff(S_T0, c + q, 64 * 2688, S_COL + gi), f"buffer_load_dwordx4 v{V_LW}, {sr(S_WQ,4)}, s{S_T0} offen lds")
                    a.e(f"s_add_u32 m0, s{S_W2K}, {u[q]*8192+1024}", f"s_add_u32 s{S_T0}, s{S_T0}, {8*2688}", f"buffer_load_dwordx4 v{V_LW}, {sr(S_WQ,4)}, s{S_T0} offen lds")
            st["t"] = vm.issue_lo(2 * st["nu"])
        elif kind == "F":
            for p_ in range(st["nk"] // 4):
                a.e(f"s_add_u32 m0, s{S_W1K}, {u[2*p_]*8192}", *koff(96, c + p_, 64 * 3584, S_COL + gi))
                a.e(f"buffer_load_dwordx4 v{V_WF}, {sr(S_WG,4)}, s96 offen lds"); vm.issue()
                a.e(f"s_add_u32 m0, s{S_W1K}, {u[2*p_+1]*8192}", "s_nop 0")
                a.e(f"buffer_load_dwordx4 v{V_WF}, {sr(S_WU,4)}, s96 offen lds"); st["t"] = vm.issue()
        else:
            for q in range(st["nk"] // 4 if not (kind == "S" and solo == "G") else 0):
                a.e(f"s_add_u32 m0, s{S_W1K}, {u[q]*8192}", *koff(S_T0, c + q, 64 * 2688, S_COL + gi))
                a.e(f"buffer_load_dwordx4 v{V_WQ}, {sr(S_WQ,4)}, s{S_T0} offen lds"); st["t"] = vm.issue()
            if kind == "S" and solo == "G":
                state["gu"] = st["u"][0]
                a.e(f"s_and_b32 s{S_T0}, s{S_CP}, 15", f"s_lshl_b32 s{S_T0}, s{S_T0}, 7", f"v_add_u32 v{V_T0}, s{S_T0}, v{V_SH}",
                    f"v_subrev_u32 v207, 896, v{V_T0}", f"v_min_u32 v{V_T0}, v{V_T0}, v207")
                a.e(f"s_add_u32 m0, s{S_W1K}, {state['gu']*8192}", "s_nop 0")
                a.e(f"buffer_load_dwordx4 v{V_T0}, {sr(S_GW,4)}, 0 offen lds"); st["t"] = vm.issue()
    def fill(pos, lo=False, si=-9):
        if si >= 0 and stages[si]["kind"] == "S": pos += 8 if solo == "H" else 24
        while state["next_dma"] < len(stages):
            st = stages[state["next_dma"]]
            if len(free) < st["nu"] or (st["first"] - pos > O.la and state["next_dma"] > si + O.minla) or (lo and st["kind"] == "S"):
                break
            issue_dma(state["next_dma"], lo); state["next_dma"] += 1
    def xreads(c):
        for q in range(4):
            a.e(f"v_add_u32 v{V_XC+q}, {c*16384}, v{V_XR+q}")
        return [f"ds_read_b128 {vr(X+16*c+4*q,4)}, v{V_XC+q}" for q in range(4)]
    def xconv(pairs):
        for S2 in pairs:
            for i in range(4): a.e(f"v_permlane16_swap_b32 v{X+8*S2+i}, v{X+8*S2+4+i}")
    cv0 = O.f16 and kinds[1] == "F"
    def g0_mfma(c, i):
        s_, t_ = 4 * c + i // 2, i % 2
        f = (FB0 if c % 2 == 0 else FR) + 4 * i
        acc = ACC + 16 * t_
        cin = "0" if s_ == 0 else vr(acc, 16)
        if kinds[0] == "V":
            return f"{MFMA} {vr(acc,16)}, {vr(X+4*s_,4)}, {vr(f,4)}, {cin}"
        return f"{MFMA} {vr(acc,16)}, {vr(f,4)}, {vr(X+4*s_,4)}, {cin}"
    params(a, range(len(kinds)))
    a.e(f"s_mov_b32 s{S_LOB}, s{S_OB+len(kinds)-1}", f"s_mov_b32 s{S_LFL}, s{S_FL+len(kinds)-1}")
    lc, lj = uid("g0c"), uid("g0j")
    a.e(f"s_cmp_ge_u32 s{S_W}, 4", f"s_cbranch_scc1 {lc}")
    if O.prio_ld: a.e(f"s_setprio {O.prio_ld}")
    for c in range(7):
        a.e(f"s_waitcnt vmcnt({vm.n[0] - g0[c]['t'][0]}) lgkmcnt(4)", "s_barrier")
        if O.bars == 1: stamp(a, 16 + c)
        if c >= 2:
            if c != 2: free.append(g0[c-2]["u"])
            free.extend([2 * (c - 2), 2 * (c - 2) + 1])
        if not O.xlast: a.e(*xreads(c))
        for q in range(7):
            if "t" not in g0[q] and q <= c + O.la1 and (q < 6 or c >= 2):
                g0[q]["t"] = vm.issue_lo(dma_g0(a, q, g0[q]["u"]))
        if "t" in g0[6]: fill(8 * (c - 7), lo=True)
        if O.xlast: a.e(*xreads(c))
    if O.prio_ld: a.e("s_setprio 0")
    a.e(f"s_branch {lj}")
    a.label(lc)
    def ftouch():
        a.e(f"s_and_b32 s{S_T0}, s{S_RB}, 7", f"s_lshl_b32 s{S_T0}, s{S_T0}, 3", f"v_lshrrev_b32 v{T}, 3, v{V_LANE}", f"v_min_u32 v{T}, 6, v{T}",
            f"v_lshlrev_b32 v{T}, 6, v{T}", f"v_and_b32 v{T+1}, 7, v{V_LANE}", f"v_add3_u32 v{T}, v{T}, v{T+1}, s{S_T0}")
        for wv, (sd, stride, gi) in enumerate([(S_WG, 3584, 1), (S_WU, 3584, 1)] if kinds[1] == "F" else [(S_WQ, 2688, 1)]):
            nx = uid("ft")
            a.e(f"s_cmp_lg_u32 s{S_W}, {5+wv}", f"s_cbranch_scc1 {nx}", f"v_mul_u32_u24 v{T}, {stride}, v{T}",
                f"buffer_load_dword v{V_DUM}, v{T}, {sr(sd,4)}, s{S_COL+gi} offen")
            a.label(nx)
    if O.ftouch == -2: ftouch()
    for c in range(7):
        a.e("s_barrier")
        if O.ftouch == c: ftouch()
        if O.bars == 1: stamp(a, 16 + c)
        if O.pref_f >= 2 and c == O.pref_f - 2: pref_weights(a, None, [(4, S_WG), (5, S_WU)], True)
        rd = xreads(c)
        for i in range(8):
            f = (FB0 if c % 2 == 0 else FR) + 4 * i
            for u in range(2):
                off = g0[c]["u"] * 8192 + (16 * (i // 2) + 4 * u) * 128
                base = (V_TR + off // 65536) if i % 2 else (V_TRX + off // 65536 - 1)
                rd.append(f"ds_read_b64_tr_b16 {vr(f+2*u,2)}, v{base} offset:{off % 65536}")
        if c == 0:
            a.e(*rd)
        else:
            new = 0
            for i in range(8):
                a.e(f"s_waitcnt lgkmcnt({min(15, 2 * (7 - i) + new)})", g0_mfma(c - 1, i))
                k = 3 if i < 4 else 2
                a.e(*rd[:k]); rd = rd[k:]; new += k
                if cv0 and c >= 2: a.e(f"v_permlane16_swap_b32 v{X+16*(c-2)+8*(i//4)+i%4}, v{X+16*(c-2)+8*(i//4)+4+i%4}")
            assert not rd
    a.label(lj)
    rel = [[g0[5]["u"], 10, 11], [g0[6]["u"], 12, 13]]
    def bar(si, m):
        st = stages[si]
        due = [p for p in pend if p[0] <= si]
        tk = [st["t"]] + [p[1] for p in due] + ([state["nonce"]] if due and not state["tag"] else [])
        if st.get("sg"):
            nx = uid("sb")
            a.e(f"s_cmp_ge_u32 s{S_W}, 4", f"s_cbranch_scc1 {nx}")
            t0 = st["t"][0]
            a.e(f"s_waitcnt vmcnt({min(63, vm.n[0] - t0) if t0 else 63})", "s_barrier")
            a.label(nx)
            if len(tk) > 1: vm.wait(a, tk[1:])
        else:
            vm.wait(a, tk)
            a.e("s_barrier")
        if O.bars == 1 and si < 6: stamp(a, 23 + si)
        if O.bars == 2 and si < 13: stamp(a, 16 + si)
        if si < 2: free.extend(rel[si])
        for q_ in range(si - 1):
            o = stages[q_]
            if not o.get("rel") and stages[q_ + 1]["first"] - 1 <= st["first"] - PD - (O.sg if st.get("sg") else 0):
                o["rel"] = True; free.extend(o["u"])
        if O.dsplit and stages[si]["kind"] != "S" and si + 1 < len(stages) and stages[si + 1]["kind"] != "S":
            sub = Asm(); keep = a.lines; a.lines = sub.lines
            n0, d0 = list(vm.n), state["next_dma"]
            fill(m - PD, si=si)
            a.lines = keep
            vm.n = n0
            cur, k = [], 0
            for l in sub.lines:
                cur.append(l)
                if "buffer_load" in l:
                    dq.append([min(m + O.dq_off + k * O.dsplit, stages[si + 1]["first"] - 1), cur, None]); cur = []; k += 1
            idx = len(dq) - k
            for q in range(d0, state["next_dma"]):
                idx += stages[q]["nu"]
                dq[idx - 1][2] = q
        else:
            fill(m - PD, si=si)
        for p in due:
            if not state["tag"]:
                get_tag(a); state["tag"] = True
            if p[2] == 0:
                nx = uid("p0")
                a.e(f"s_cmp_lt_u32 s{S_W}, 4", f"s_cbranch_scc1 {nx}", f"s_add_u32 s{S_T0}, s{S_FL}, 512")
                publish(a, f"s{S_FL}"); publish(a, f"s{S_T0}"); vm.n[1] += 2
                a.label(nx)
            elif kinds[p[2]] == "S":
                nx = uid("p0")
                a.e(f"s_cmp_ge_u32 s{S_W}, 4" if solo == "H" else f"s_cmp_lt_u32 s{S_W}, 4", f"s_cbranch_scc1 {nx}")
                publish(a, f"s{S_FL+p[2]}"); vm.n[solo == "G"] += 1
                a.label(nx)
            else:
                publish(a, f"s{S_FL+p[2]}"); vm.issue()
            pend.remove(p)
        if si == 0:
            a.e(f"buffer_load_dword v{V_NONCE}, v{V_ZERO}, {sr(S_DBG,4)}, 0 offen {SC1}"); state["nonce"] = vm.issue()
        if si == 3:
            role_d(a)
        if si == len(stages) - (2 if O.wpre else 1):
            u = [q for q in free if q * 8192 >= L_XCH + 49152][0]
            a.e(f"s_mov_b32 s{S_CNT}, {u*8192 + 4096}", f"v_mov_b32 v204, s{S_CNT}", f"ds_write_b32 v204, v{V_ZERO}", f"ds_write_b32 v204, v{V_ZERO} offset:4"); lg.issue(); lg.issue()
            if O.wpre:
                assert all(q in free for q in range(13)), (kinds, free)
                a.e(f"ds_write_b32 v204, v{V_ZERO} offset:8"); lg.issue()
                for k_ in range(2 * O.wpre): wq.append((m - PD + 1 + (k_ * O.wpre_e) // 2, k_))
        if si == O.mall_at:
            pref_weights(a, vm, [(0, S_WD), (1, S_WO)])
        if si == len(stages) - O.poll_back:
            a.e(f"s_mov_b32 s{S_T0}, {WS_F}")
            a.e(f"buffer_load_dwordx2 {vr(V_PD,2)}, v{C_PA}, {sr(S_WS,4)}, s{S_T0} offen {SC1}"); vm.issue()
            a.e(f"buffer_load_dwordx2 {vr(V_PD+2,2)}, v{C_PB}, {sr(S_WS,4)}, s{S_T0} offen {SC1}"); state["poll"] = vm.issue()
    def hibar(si):
        t1 = stages[si]["t"][1]
        a.e(f"s_waitcnt vmcnt({min(63, vm.n[1] - t1) if t1 else 63})", "s_barrier")
    if O.sg:
        for q_, st_ in enumerate(stages):
            st_["sg"] = q_ >= 1 and st_["kind"] != "S" and stages[q_ - 1]["kind"] != "S"
    blocks = {}
    def flush_dq(m):
        while dq and dq[0][0] <= m:
            _, ls, q = dq.pop(0)
            a.lines.extend(ls); t = vm.issue()
            if q is not None: stages[q]["t"] = t
    def reads(m, hi=False):
        e = mf[m]; st = stages[e["si"]]
        if e["si"] + 1 < len(stages) and e["si"] >= 1 and stages[e["si"] + 1].get("sg") and m == max(st["first"] + 0, stages[e["si"] + 1]["first"] - O.sg) and m != st["first"]:
            nx = uid("hb")
            a.e(f"s_cmp_lt_u32 s{S_W}, 4", f"s_cbranch_scc1 {nx}"); hibar(e["si"] + 1); a.label(nx)
        if m == st["first"]:
            if hi:
                labs = [l[:-1] for l in blocks[m] if l.endswith(":")]
                for l in blocks[m]:
                    for q in labs: l = re.sub(rf"\b{q}\b", q + "h", l)
                    a.lines.append(l)
            else:
                n0 = len(a.lines); bar(e["si"], m); blocks[m] = a.lines[n0:]
                if e["si"] + 1 < len(stages) and e["si"] >= 1 and stages[e["si"] + 1].get("sg") and stages[e["si"] + 1]["first"] - O.sg <= m:
                    stages[e["si"] + 1]["sg"] = False
        if O.dq_first: flush_dq(m)
        f = FR + 4 * (m % NFR)
        if st["kind"] == "S" and hi != (solo == "G"):
            return
        if hi:
            for u in range(2):
                a.e(f"ds_read_b64 {vr(f+2*u,2)}, v{V_XC+3} offset:{32*e['s']+8*u}"); e["t"] = lg.issue()
        else:
            kk = e["s"] - st["k0"]
            if O.f16 and st["kind"] == "F":
                if m == st["first"] and st["k0"] == 0 and not state.get("tf"):
                    state["tf"] = True
                    a.e(f"v_bfe_u32 v{V_T0}, v{V_LANE}, 4, 1", f"v_lshlrev_b32 v{V_T0}, 11, v{V_T0}")
                    for q in range(3): a.e(f"v_add_u32 v{V_TR+q}, v{V_TR+q}, v{V_T0}", f"v_xor_b32 v{V_TF1+q}, 32, v{V_TR+q}")
                idx = m - st["first"]
                for u in range(2):
                    off = st["u"][(idx % 4) // 2] * 8192 + (32 * (idx // 4) + 4 * u) * 128
                    a.e(f"ds_read_b64_tr_b16 {vr(f+2*u,2)}, v{(V_TF1 if idx % 2 else V_TR) + off // 65536} offset:{off % 65536}"); e["t"] = lg.issue()
                flush_dq(m)
                return
            unit = st["u"][2 * (kk // 4) + e["tile"]] if st["kind"] == "F" else st["u"][kk // 4]
            for u in range(2):
                off = unit * 8192 + (16 * (kk % 4) + 4 * u) * 128
                a.e(f"ds_read_b64_tr_b16 {vr(f+2*u,2)}, v{(V_XC if st['kind'] == 'S' else V_TR) + off // 65536} offset:{off % 65536}"); e["t"] = lg.issue()
        flush_dq(m)
    for m in range(PD):
        reads(m)
    nx, ny = uid("e0"), uid("e0")
    a.e(f"s_cmp_ge_u32 s{S_W}, 4", f"s_cbranch_scc1 {ny}")
    role_c(a)
    if cv0:
        a.e(f"s_waitcnt lgkmcnt({2*PD})"); xconv(range(14))
    a.e(f"s_branch {nx}")
    a.label(ny)
    for i in range(8):
        a.e(f"s_waitcnt lgkmcnt({min(15, 2 * (7 - i) + 2 * PD)})", g0_mfma(6, i))
        if cv0: a.e(f"v_permlane16_swap_b32 v{X+80+8*(i//4)+i%4}, v{X+80+8*(i//4)+4+i%4}")
    if O.sg: hibar(1)
    if cv0: xconv([12, 13])
    dummy = Vm()
    epilogue(a, dummy, 0, kinds[0], ACC)
    a.e(f"s_add_u32 s{S_OB}, s{S_OB}, {131072 if kinds[0] == 'QK' else 512}")
    epilogue(a, dummy, 0, kinds[0], ACC + 16)
    vm.n[1] += dummy.n
    pend.append((O.pubd, (0, vm.n[1]), 0))
    a.label(nx)
    stamp(a, 3)
    def mfma(m, hi=False):
        e = mf[m]
        if e["kind"] == "S" and hi != (solo == "G"): return
        if O.f16 and e["kind"] == "F":
            st = stages[e["si"]]
            if not state.get("xc"):
                state["xc"] = True
                if e["gi"] > 1: xconv(range(14))
            idx = m - st["first"]
            S2 = st["k0"] // 2 + idx // 4
            lg.wait(a, e["t"])
            f = FR + 4 * (m % NFR)
            for tau in range(2):
                acc = ACC + 8 * (idx % 4) + 4 * tau
                a.e(f"{MFMA16} {vr(acc,4)}, {vr(f,4)}, {vr(X+8*S2+4*tau,4)}, {'0' if S2 == 0 else vr(acc,4)}")
            return
        if not e.get("w"): lg.wait(a, e["t"])
        f = FR + 4 * (m % NFR)
        acc = ACC + 16 * e["tile"]
        cin = "0" if e["s"] == 0 else vr(acc, 16)
        xa = vr(X + 4 * e["s"], 4)
        if e["kind"] in ("V", "S") and not hi:
            a.e(f"{MFMA} {vr(acc,16)}, {xa}, {vr(f,4)}, {cin}")
        else:
            a.e(f"{MFMA} {vr(acc,16)}, {vr(f,4)}, {xa}, {cin}")
        if O.wfirst and e["kind"] != "S" and m + 1 < len(mf) and mf[m + 1]["gi"] == e["gi"]:
            lg.wait(a, mf[m + 1]["t"]); mf[m + 1]["w"] = True
    m = 0
    while m < len(mf):
        e = mf[m]
        if e["kind"] == "S":
            m1 = m + 28
            lh, lj2 = uid("sh"), uid("sj")
            if solo == "H":
                a.e(f"s_sub_u32 s{S_T0}, s{S_J}, 13", f"s_lshl_b32 s{S_T0}, s{S_T0}, 5")
                for q in range(3): a.e(f"v_xor_b32 v{V_XC+q}, s{S_T0}, v{V_TR+q}")
            else:
                a.e(f"v_lshrrev_b32 v{V_XC+3}, 5, v{V_LANE}", f"v_lshlrev_b32 v{V_XC+3}, 4, v{V_XC+3}",
                    f"s_add_u32 s{S_T0}, s{S_W1K}, {state['gu']*8192}", f"v_add_u32 v{V_XC+3}, s{S_T0}, v{V_XC+3}")
            a.e(f"s_cmp_ge_u32 s{S_W}, 4", f"s_cbranch_scc1 {lh}")
            lg0 = lg.n
            epi = {}
            for hi in (False, True):
                lg.n = lg0
                if hi: a.label(lh)
                for q in range(m, m + PD): reads(q, hi)
                if not hi:
                    n0 = len(a.lines); state["epi"](); epi = a.lines[n0:]
                else:
                    a.lines.extend(epi)
                for q in range(m, m1):
                    mfma(q, hi)
                    if q + PD < m1: reads(q + PD, hi)
                if not hi: a.e(f"s_branch {lj2}")
            a.label(lj2)
            lg.n = lg0 + 200
            for q in range(m1, m1 + PD): reads(q)
            lj2 = uid("sj")
            d0 = Vm()
            a.e(f"s_cmp_ge_u32 s{S_W}, 4" if solo == "H" else f"s_cmp_lt_u32 s{S_W}, 4", f"s_cbranch_scc1 {lj2}", "s_nop 7")
            epilogue(a, d0, e["gi"], "V" if solo == "H" else "G")
            a.label(lj2)
            vm.n[solo == "G"] += d0.n
            pend.append((mf[m1]["si"] + O.pubd_s, (vm.n[0], 0) if solo == "H" else (0, vm.n[1]), e["gi"]))
            stamp(a, 3 + e["gi"])
            m = m1
            continue
        mfma(m)
        if m + PD < len(mf) and mf[m + PD]["kind"] != "S":
            n0 = len(a.lines)
            reads(m + PD)
            if O.f16 and O.il16 and e["kind"] == "F" and len(a.lines) - n0 == 2:
                a.lines[n0 - 1], a.lines[n0] = a.lines[n0], a.lines[n0 - 1]
        if wq and (wq[0][0] <= m or m == len(mf) - 1):
            nx = uid("wp")
            a.e(f"s_cmp_lt_u32 s{S_W}, 4", f"s_cbranch_scc1 {nx}")
            while wq and (wq[0][0] <= m or m == len(mf) - 1):
                k_ = wq.pop(0)[1]
                a.e(*wd_piece(k_ // 2, k_ % 2)); vm.n[1] += 1
            a.label(nx)
        if O.sg and m == len(mf) - 1 - PD:
            nx = uid("tb")
            a.e(f"s_cmp_lt_u32 s{S_W}, 4", f"s_cbranch_scc1 {nx}", "s_waitcnt lgkmcnt(0)", "s_barrier"); a.label(nx)
        if O.early and m == len(mf) - O.hook_back:
            early_hook(a, vm.n[0] - state["poll"][0])
        if m + 1 < len(mf) and mf[m + 1]["gi"] != e["gi"]:
            def do_epi(e=e, m=m):
                t = epilogue(a, vm, e["gi"], e["kind"])
                pend.append((mf[m + 1]["si"] + O.pubd, t, e["gi"]))
                stamp(a, 3 + e["gi"])
            if mf[m + 1]["kind"] == "S": state["epi"] = do_epi
            else: do_epi()
        m += 1
    assert not pend and state["tag"]
    assert kinds[-1] == "F"

def c_adv(a):
    a.e(f"s_add_u32 s{SC_K}, s{SC_K}, 512", f"s_and_b32 s{SC_K}, s{SC_K}, 8191", f"s_mul_i32 s{SC_V0}, s{SC_K}, 57")

def c_loads(a, buf, imm=0):
    for w in range(4):
        c_load1(a, buf, 0, w, masked=(w == 3))

def c_smfma(a, i, half):
    kt, qs = (i // 4) % 4, i % 4
    S = CS + 16 * (i % 2)
    a.e(f"{MFMA} {vr(S,16)}, {vr(CKV+16*kt+4*half,4)}, {vr(CQ+8*qs+4*half,4)}, {'0' if half == 0 else vr(S,16)}")
def c_pv(a, i, half, first=False):
    if first and i < 0: return
    i %= 16
    kt, qs = i // 4, i % 4
    Oq = CO + 16 * qs
    a.e(f"{MFMA} {vr(Oq,16)}, {vr(CKV+16*kt+8+4*half,4)}, {vr(CP+8*(i%2)+4*half,4)}, {'0' if first and half == 0 else vr(Oq,16)}")

def c_load1(a, buf, imm, which, masked=False):
    kb, vb = CKV + 16 * buf, CKV + 16 * buf + 8
    if which < 2:
        a.e(f"buffer_load_dwordx4 {vr(kb+4*which,4)}, v{C_VK1 if which else C_VK}, {sr(S_KV,4)}, s{SC_K} offen {SC1}")
    else:
        a.e(f"buffer_load_dwordx4 {vr(vb+4*(which-2),4)}, v{C_VV1 if which == 3 else C_VV}, {sr(S_KV,4)}, s{SC_V0} offen {SC1}")
        if which == 3: c_adv(a)

def c_step(a, i, first=False, extra=None):
    S, P = CS + 16 * (i % 2), CP + 8 * (i % 2)
    ex = lambda k: a.e(f"v_exp_f32 v{S+k}, v{S+k}")
    cv = lambda k: a.e(f"v_cvt_pk_bf16_f32 v{P+k}, v{S+2*k}, v{S+2*k+1}")
    kt = i // 4
    def mem():
        if i == 4:
            a.e(f"s_cmp_eq_u32 s{SC_IT}, 1", f"s_cselect_b32 s{S_KV+2}, 0, s{S_KV+2}")
        if O.noload:
            pass
        elif O.spread:
            c_load1(a, (kt + 3) % 4, 512 * (kt + 3), i % 4)
        elif i % 4 == 0:
            c_loads(a, (kt + 3) % 4, 512 * (kt + 3))
    def wt():
        if O.delay_d and i == O.d_go[1]:
            sk = uid("go")
            a.e(f"s_cmp_lg_u32 s{SC_IT}, {O.d_go[0]}", f"s_cbranch_scc1 {sk}", f"ds_write_b32 v{C_T+15}, v{C_T+15} offset:4")
            if O.wpre: a.e(f"ds_read_b32 v{C_T+6}, v{C_T+15} offset:8", "s_waitcnt lgkmcnt(0)", f"v_readfirstlane_b32 s{S_HD}, v{C_T+6}")
            a.label(sk)
        if first and i == 3:
            a.e("s_waitcnt vmcnt(8)", "s_mov_b64 exec, 1", f"buffer_store_dwordx2 {vr(C_T,2)}, v{V_ZERO}, {sr(S_WS,4)}, s{S_LFL} offen {SC1}", "s_mov_b64 exec, -1")
        elif i % 4 == 3:
            a.e(f"s_waitcnt vmcnt({7 if O.spread and O.pack != 6 else 8})")
            if i == 3 and not O.peel:
                sk = uid("pub")
                a.e(f"s_cmp_lg_u32 s{SC_IT}, 4", f"s_cbranch_scc1 {sk}")
                a.e("s_mov_b64 exec, 1", f"buffer_store_dwordx2 {vr(C_T,2)}, v{V_ZERO}, {sr(S_WS,4)}, s{S_LFL} offen {SC1}")
                if O.poison: a.e(f"buffer_store_dwordx2 {vr(C_T,2)}, v{V_ZERO}, {sr(S_WS,4)}, s{S_OFL} offen {SC1}")
                a.e("s_mov_b64 exec, -1")
                if O.plite:
                    a.e(f"buffer_store_dwordx4 {vr(C_T+4,4)}, v{V_SH}, {sr(S_WS,4)}, s{S_OST} offen {SC1}",
                        f"buffer_store_dwordx4 {vr(C_T+4,4)}, v{V_SH}, {sr(S_WS,4)}, s{S_OST} offen offset:1024 {SC1}")
                a.label(sk)
            if i == 11 and O.plite:
                sk = uid("pub")
                a.e(f"s_cmp_lg_u32 s{SC_IT}, 4", f"s_cbranch_scc1 {sk}")
                a.e("s_mov_b64 exec, 1", f"buffer_store_dwordx2 {vr(C_T,2)}, v{V_ZERO}, {sr(S_WS,4)}, s{S_OFL} offen {SC1}", "s_mov_b64 exec, -1")
                a.label(sk)
    if O.pack == 0:
        wt()
        c_smfma(a, i + 1, 0)
        for k in range(4): ex(k)
        c_smfma(a, i + 1, 1)
        ex(4); ex(5); cv(0); cv(1); ex(6); ex(7)
        c_pv(a, i - 1, 0)
        ex(8); ex(9); cv(2); cv(3); ex(10); ex(11)
        c_pv(a, i - 1, 1)
        mem()
        for k in range(12, 16): ex(k)
        cv(4); cv(5); cv(6); cv(7)
    elif O.pack == 1:
        c_pv(a, i - 1, 0, first)
        ex(0); ex(1); ex(2)
        c_pv(a, i - 1, 1, first)
        ex(3); ex(4); ex(5)
        wt()
        c_smfma(a, i + 1, 0)
        ex(6); ex(7); cv(0); cv(1)
        c_smfma(a, i + 1, 1)
        mem()
        if extra: extra()
        ex(8); ex(9); cv(2); ex(10); ex(11); cv(3); ex(12); ex(13); cv(4); ex(14); ex(15); cv(5); cv(6); cv(7)
    elif O.pack == 6:
        buf = (kt + 3) % 4
        kb, vb = CKV + 16 * buf, CKV + 16 * buf + 8
        sl = [[], [], [], []]
        if i == 4:
            sl[0].append(f"s_cmp_eq_u32 s{SC_IT}, 1"); sl[1].append(f"s_cselect_b32 s{S_KV+2}, 0, s{S_KV+2}")
        ld = [f"buffer_load_dwordx4 {vr(kb,4)}, v{C_VK}, {sr(S_KV,4)}, s{SC_K} offen {SC1}", f"buffer_load_dwordx4 {vr(kb+4,4)}, v{C_VK1}, {sr(S_KV,4)}, s{SC_K} offen {SC1}",
              f"buffer_load_dwordx4 {vr(vb,4)}, v{C_VV}, {sr(S_KV,4)}, s{SC_V0} offen {SC1}", f"buffer_load_dwordx4 {vr(vb+4,4)}, v{C_VV1}, {sr(S_KV,4)}, s{SC_V0} offen {SC1}"]
        if O.ldm == 0:
            if i % 4 == 0: sl[3] += ld[:2]
            if i % 4 == 1: sl[3] += ld[2:]
        elif i % 4 == 1:
            for q in range(4): sl[q].append(ld[q])
        if i % 4 == 2:
            sl[0].append(f"s_add_u32 s{SC_K}, s{SC_K}, 512"); sl[1].append(f"s_and_b32 s{SC_K}, s{SC_K}, 8191"); sl[2].append(f"s_mul_i32 s{SC_V0}, s{SC_K}, 57")
        if i == 15 and O.wt_early:
            sl[2].append(f"s_sub_u32 s{SC_IT}, s{SC_IT}, 1"); sl[3].append(f"s_cmp_eq_u32 s{SC_IT}, 0" if O.peel else f"s_cmp_lg_u32 s{SC_IT}, 0")
        em = lambda k: [a.e(l) for l in sl[k]]
        c_pv(a, i - 1, 0, first); em(0)
        ex(0); ex(1); ex(2)
        c_pv(a, i - 1, 1, first); em(1)
        if O.wt_early: wt()
        ex(3); ex(4); ex(5)
        if not O.wt_early: wt()
        c_smfma(a, i + 1, 0); em(2)
        ex(6); ex(7); cv(0); cv(1)
        c_smfma(a, i + 1, 1); em(3)
        if extra: extra()
        ex(8); ex(9); cv(2); ex(10); ex(11); cv(3); ex(12); ex(13); cv(4); ex(14); ex(15); cv(5); cv(6); cv(7)
    elif O.pack == 4:
        c_pv(a, i - 1, 0)
        ex(0); ex(1); ex(2)
        c_pv(a, i - 1, 1)
        ex(3); ex(4); cv(0); ex(5); cv(1); ex(6); ex(7); cv(2); cv(3)
        wt()
        c_smfma(a, i + 1, 0)
        ex(8); ex(9); ex(10)
        c_smfma(a, i + 1, 1)
        mem()
        ex(11); ex(12); cv(4); ex(13); cv(5); ex(14); ex(15); cv(6); cv(7)
    elif O.pack == 5:
        c_pv(a, i - 1, 0)
        ex(0); ex(1); ex(2)
        c_pv(a, i - 1, 1)
        ex(3); ex(4); cv(0); ex(5); cv(1); ex(6); ex(7); ex(8); cv(2); cv(3)
        wt()
        c_smfma(a, i + 1, 0)
        ex(9); ex(10); ex(11)
        c_smfma(a, i + 1, 1)
        mem()
        ex(12); cv(4); ex(13); cv(5); ex(14); ex(15); cv(6); cv(7)
    elif O.pack == 3:
        sub = Asm(); keep = a.lines; a.lines = sub.lines; mem(); a.lines = keep
        ml = sub.lines
        grp = []
        k = 0
        while k < len(ml):
            if "s_mov_b64 exec, s[" in ml[k]: grp.append(ml[k:k+3]); k += 3
            elif "s_cmp_eq" in ml[k]: grp.append(ml[k:k+2]); k += 2
            else: grp.append([ml[k]]); k += 1
        def nx():
            if grp: a.lines.extend(grp.pop(0))
        c_pv(a, i - 1, 0)
        ex(0); ex(1); ex(2)
        c_pv(a, i - 1, 1)
        ex(3); ex(4); ex(5)
        wt()
        c_smfma(a, i + 1, 0)
        ex(6); ex(7); cv(0); cv(1)
        c_smfma(a, i + 1, 1)
        ex(8); nx(); ex(9); nx(); cv(2); ex(10); nx(); ex(11); nx(); cv(3); ex(12); nx(); ex(13); cv(4); ex(14); ex(15); cv(5); cv(6); cv(7)
        assert not grp
    elif O.pack == 2:
        c_pv(a, i - 1, 0)
        ex(0); ex(1)
        c_pv(a, i - 1, 1)
        ex(2); ex(3); cv(0)
        wt()
        c_smfma(a, i + 1, 0)
        ex(4); ex(5); cv(1)
        c_smfma(a, i + 1, 1)
        mem()
        ex(6); ex(7); cv(2); ex(8); ex(9); cv(3); ex(10); ex(11); cv(4); ex(12); ex(13); cv(5); ex(14); ex(15); cv(6); cv(7)

def vinit(a, b):
    if b == 3:
        for k in range(8):
            a.e(f"v_mov_b32 v{CKV+16*b+8+k}, 0")

def first_loads(a):
    vinit(a, 0)
    c_loads(a, 0, 0)
    a.e(f"s_lshl_b32 s4, s{SC_O}, 15", f"s_lshl_b32 s5, s{SC_QT}, 11", "s_add_u32 s4, s4, s5")
    for i in range(4):
        a.e(f"s_add_u32 s5, s{S_W}, {i+1}", "s_and_b32 s5, s5, 3", "s_lshl_b32 s5, s5, 9", "s_add_u32 s5, s5, s4", f"s_add_u32 s6, s5, {2*OCT}")
        a.e(f"buffer_load_dwordx4 {vr(CQ+8*i,4)}, v{C_QA}, {sr(S_WS,4)}, s5 offen {SC1}")
        a.e(f"buffer_load_dwordx4 {vr(CQ+8*i+4,4)}, v{C_QA}, {sr(S_WS,4)}, s6 offen {SC1}")
    a.e(f"s_lshl_b32 s4, s{SC_QT}, 2", f"s_add_u32 s4, s4, s{S_W}", "s_lshl_b32 s4, s4, 7", f"s_add_u32 s4, s4, {WS_G}",
        f"v_and_b32 v{C_G}, 31, v{V_LANE}", f"v_lshlrev_b32 v{C_G}, 2, v{C_G}")
    a.e(f"buffer_load_dword v{C_G}, v{C_G}, {sr(S_WS,4)}, s4 offen {SC1}")

def early_hook(a, k):
    sk = uid("eh")
    a.e(f"s_mov_b32 s{S_EARLY}, 0", f"s_cmp_ge_u32 s{S_W}, 4", f"s_cbranch_scc1 {sk}")
    a.e(f"s_waitcnt vmcnt({k})")
    poll_check(a, V_PD, sk); poll_check(a, V_PD + 2, sk)
    first_loads(a)
    a.e(f"s_mov_b32 s{S_EARLY}, 1")
    a.label(sk)

def fallback(a):
    TT = C_T
    KB, VB, M, VA = CKV, CKV + 8, TT + 7, TT + 10
    SK, SK1, SV, SV1, SN = 4, 5, 6, 7, SC_IT
    def kbase():
        a.e(f"s_add_u32 s{SK}, s{SC_O}, 56", f"s_lshl_b32 s{SK}, s{SK}, 15", f"s_add_u32 s{SK1}, s{SK}, {2*OCT}", f"s_mov_b32 s{SN}, 64")
    def kload():
        a.e(f"buffer_load_dwordx4 {vr(KB,4)}, v{C_QA}, {sr(S_WS,4)}, s{SK} offen {SC1}", f"buffer_load_dwordx4 {vr(KB+4,4)}, v{C_QA}, {sr(S_WS,4)}, s{SK1} offen {SC1}",
            f"s_add_u32 s{SK}, s{SK}, 512", f"s_add_u32 s{SK1}, s{SK1}, 512")
    def scores():
        a.e("s_waitcnt vmcnt(0)", f"{MFMA} {vr(CS,16)}, {vr(KB,4)}, {vr(CQ+24,4)}, 0", f"{MFMA} {vr(CS,16)}, {vr(KB+4,4)}, {vr(CQ+28,4)}, {vr(CS,16)}")
    a.label("L_fallback")
    a.e(f"v_mov_b32 v{M}, 0xff800000")
    kbase()
    a.label("L_fb1")
    kload(); scores()
    for i in range(8):
        a.e(f"v_max3_f32 v{M}, v{M}, v{CS+2*i}, v{CS+2*i+1}")
    a.e(f"s_sub_u32 s{SN}, s{SN}, 1", f"s_cmp_lg_u32 s{SN}, 0", "s_cbranch_scc1 L_fb1")
    a.e(f"v_mov_b32 v{M+1}, v{M}", f"v_permlane32_swap_b32 v{M}, v{M+1}", f"v_max_f32 v{M}, v{M}, v{M+1}")
    for i in range(16):
        a.e(f"v_mov_b32 v{CO+i}, 0")
    kbase()
    a.e(f"s_mul_i32 s{SV}, s{S_W}, {16*V_TB}", f"v_subrev_u32 v{VA}, s{SV}, v{C_VV}", f"v_subrev_u32 v{VA+1}, s{SV}, v{C_VV1}", f"s_mov_b32 s{SV}, 0")
    a.label("L_fb2")
    kload()
    a.e(f"buffer_load_dwordx4 {vr(VB,4)}, v{VA}, {sr(S_WS,4)}, s{SV} offen {SC1}",
        f"buffer_load_dwordx4 {vr(VB+4,4)}, v{VA+1}, {sr(S_WS,4)}, s{SV} offen {SC1}", f"s_add_u32 s{SV}, s{SV}, {V_TB}")
    scores()
    for i in range(16):
        a.e(f"v_sub_f32 v{CS+i}, v{CS+i}, v{M}")
    for i in range(16):
        a.e(f"v_exp_f32 v{CS+i}, v{CS+i}")
    for k in range(8):
        a.e(f"v_cvt_pk_bf16_f32 v{CP+k}, v{CS+2*k}, v{CS+2*k+1}")
    a.e(f"{MFMA} {vr(CO,16)}, {vr(VB,4)}, {vr(CP,4)}, {vr(CO,16)}", f"{MFMA} {vr(CO,16)}, {vr(VB+4,4)}, {vr(CP+4,4)}, {vr(CO,16)}")
    a.e("s_nop 7", "s_nop 7", f"s_sub_u32 s{SN}, s{SN}, 1", f"s_cmp_lg_u32 s{SN}, 0", "s_cbranch_scc1 L_fb2")
    a.e(f"v_mov_b32 v{TT+5}, v{CO+12}", f"v_mov_b32 v{TT+6}, v{CO+12}", f"v_permlane32_swap_b32 v{TT+5}, v{TT+6}", f"s_mov_b32 s{SN}, 1", "s_nop 1", "s_branch L_fb_done")

def attention(a):
    L, TT = V_LANE, C_T
    vm = Vm()
    spin, go, go2 = uid("aspin"), uid("ago"), uid("ago")
    if O.prio_attn: a.e(f"s_setprio {O.prio_attn}")
    if O.early:
        a.e(f"s_cmp_eq_u32 s{S_EARLY}, 0", f"s_cbranch_scc1 {spin}")
    else:
        a.e("s_waitcnt vmcnt(0)")
        poll_check(a, V_PD, spin); poll_check(a, V_PD + 2, spin)
        a.label(go2)
        first_loads(a)
    a.label(go)
    stamp(a, 8)
    if O.peel:
        assert O.pack == 6 and O.early and not O.poison and not O.plite
        a.e(f"v_mov_b32 v{TT}, v{V_FD}", f"v_mov_b32 v{TT+1}, v{V_FD+1}")
        if O.peel == 2:
            epi_F(a, vm, S_LOB, CP)
            c_loads(a, 1)
        od, dn = uid("qm"), uid("qm")
        a.e(f"s_bitcmp1_b32 s{SC_HEAD}, 0", f"s_waitcnt vmcnt({6 if O.peel == 2 else 0})", f"s_cbranch_scc1 {od}")
        for qs in range(4): a.e(f"v_and_b32 v{CQ+8*qs+6}, v{CQ+8*qs+6}, v{C_MB}", f"v_and_b32 v{CQ+8*qs+7}, v{CQ+8*qs+7}, v{C_MB}")
        a.e(f"s_branch {dn}")
        a.label(od)
        for qs in range(4): a.e(f"v_and_b32 v{CQ+8*qs}, v{CQ+8*qs}, v{C_MA}", f"v_and_b32 v{CQ+8*qs+1}, v{CQ+8*qs+1}, v{C_MA}")
        a.label(dn)
        a.e("s_nop 1")
        c_smfma(a, 0, 0); c_smfma(a, 0, 1)
        if O.peel != 2:
            epi_F(a, vm, S_LOB, CP)
            c_loads(a, 1)
        c_loads(a, 2)
        for i in range(16): a.e(f"v_mov_b32 v{CO+48+i}, 0")
        stamp(a, 9)
        def x0():
            a.e(f"s_lshl_b32 s{S_TB}, s{SC_QT}, 2", f"s_add_u32 s{S_TB}, s{S_TB}, s{S_W}", f"s_mov_b32 s{SC_IT}, 4")
            a.e(f"s_mul_i32 s{S_OST}, s{S_TB}, {HO_TB}", f"s_lshl_b32 s{S_T1}, s{SC_HEAD}, 11", f"s_add_u32 s{S_OST}, s{S_OST}, s{S_T1}",
                f"s_add_u32 s{S_OST}, s{S_OST}, {WS_HO + 112*1024}")
            a.e(f"s_lshl_b32 s{S_OFL}, s{S_TB}, 4", f"s_add_u32 s{S_OFL}, s{S_OFL}, s{SC_HEAD}", f"s_lshl_b32 s{S_OFL}, s{S_OFL}, 3",
                f"s_add_u32 s{S_OFL}, s{S_OFL}, {WS_F + F_O}")
        def x1():
            for i in range(3):
                a.e(f"s_add_u32 s{S_T1}, s{S_W}, {i+1}", f"s_and_b32 s{S_T1}, s{S_T1}, 3", f"s_mul_i32 s{S_T1}, s{S_T1}, 12288",
                    f"s_add_u32 s{S_T1}, s{S_T1}, {L_XCH + i*4096}", f"v_add_u32 v{TT+11+i}, s{S_T1}, v{V_SH}")
            a.e(f"s_mul_i32 s{S_T1}, s{S_W}, 12288", f"s_add_u32 s{S_T1}, s{S_T1}, {L_XCH}", f"v_add_u32 v{TT+14}, s{S_T1}, v{V_SH}", f"v_mov_b32 v{TT+15}, s{S_CNT}")
        for i in range(4):
            c_step(a, i, first=True, extra=[x0, x1, None, None][i])
        a.raw(".p2align 3")
        a.label("L_c_loop")
        for i in range(4, 16):
            c_step(a, i)
        a.e("s_cbranch_scc1 L_c_out", )
        for i in range(4):
            c_step(a, i)
        a.e("s_branch L_c_loop")
        a.label("L_c_out")
        a.e("s_nop 0")
    else:
        a.e(f"v_and_b32 v{TT+2}, 31, v{L}", f"s_lshl_b32 s{S_TB}, s{SC_QT}, 2", f"s_add_u32 s{S_TB}, s{S_TB}, s{S_W}")
        epi_F(a, vm, S_LOB)
        a.e(f"v_mov_b32 v{TT}, v{V_FD}", f"v_mov_b32 v{TT+1}, v{V_FD+1}")
        a.e(f"s_mul_i32 s{S_OST}, s{S_TB}, {HO_TB}", f"s_lshl_b32 s{S_T1}, s{SC_HEAD}, 11", f"s_add_u32 s{S_OST}, s{S_OST}, s{S_T1}",
            f"s_add_u32 s{S_OST}, s{S_OST}, {WS_HO + 112*1024}")
        a.e(f"s_lshl_b32 s{S_OFL}, s{S_TB}, 4", f"s_add_u32 s{S_OFL}, s{S_OFL}, s{SC_HEAD}", f"s_lshl_b32 s{S_OFL}, s{S_OFL}, {O.fo_sh}",
            f"s_add_u32 s{S_OFL}, s{S_OFL}, {WS_F + F_O if O.fo_sh == 3 else 0x11D0000}")
        if O.poison:
            for k in range(4): a.e(f"v_mov_b32 v{CP+k}, -1")
            a.e(f"buffer_store_dwordx4 {vr(CP,4)}, v{V_SH}, {sr(S_WS,4)}, s{S_OST} offen {SC1}",
                f"buffer_store_dwordx4 {vr(CP,4)}, v{V_SH}, {sr(S_WS,4)}, s{S_OST} offen offset:1024 {SC1}")
        for b in range(1, 4): vinit(a, b)
        if O.plite:
            for k in range(4): a.e(f"v_mov_b32 v{TT+4+k}, -1")
        c_loads(a, 1, 512)
        for i in range(64):
            a.e(f"v_mov_b32 v{CO+i}, 0")
        for i in range(8):
            a.e(f"v_mov_b32 v{CP+8+i}, 0")
        c_loads(a, 2, 1024)
        for i in range(3):
            a.e(f"s_add_u32 s{S_T1}, s{S_W}, {i+1}", f"s_and_b32 s{S_T1}, s{S_T1}, 3", f"s_mul_i32 s{S_T1}, s{S_T1}, 12288",
                f"s_add_u32 s{S_T1}, s{S_T1}, {L_XCH + i*4096}", f"v_add_u32 v{TT+11+i}, s{S_T1}, v{V_SH}")
        a.e(f"s_mul_i32 s{S_T1}, s{S_W}, 12288", f"s_add_u32 s{S_T1}, s{S_T1}, {L_XCH}", f"v_add_u32 v{TT+14}, s{S_T1}, v{V_SH}", f"v_mov_b32 v{TT+15}, s{S_CNT}")
        a.e(f"s_mov_b32 s{SC_IT}, 4")
        a.e(f"s_waitcnt vmcnt({12 if O.poison else 10})")
        for qs in range(4):
            a.e(f"v_and_b32 v{CQ+8*qs}, v{CQ+8*qs}, v{C_MA}", f"v_and_b32 v{CQ+8*qs+1}, v{CQ+8*qs+1}, v{C_MA}",
                f"v_and_b32 v{CQ+8*qs+6}, v{CQ+8*qs+6}, v{C_MB}", f"v_and_b32 v{CQ+8*qs+7}, v{CQ+8*qs+7}, v{C_MB}")
        stamp(a, 9)
        c_smfma(a, 0, 0); c_smfma(a, 0, 1)
        a.e("s_nop 7")
        a.raw(f".p2align {O.lalign}")
        a.label("L_c_loop")
        for i in range(16):
            c_step(a, i)
        if O.stamp == 1 and O.bars == 3:
            a.e("s_memtime s[6:7]", "s_waitcnt lgkmcnt(0)", "s_sub_u32 s6, s6, s100", f"s_add_u32 m0, s{SC_IT}, 15", "s_nop 0", f"v_writelane_b32 v255, s6, m0")
        if not (O.wt_early and O.pack == 6): a.e(f"s_sub_u32 s{SC_IT}, s{SC_IT}, 1", f"s_cmp_lg_u32 s{SC_IT}, 0")
        a.e("s_cbranch_scc1 L_c_loop")
    stamp(a, 10)
    if O.wpre:
        t_, d_ = uid("hw"), uid("hw")
        a.e(f"s_cmp_ge_u32 s{S_HD}, 8", f"s_cbranch_scc1 {d_}", f"s_mov_b32 s{S_SPIN}, 0x100000")
        a.label(t_)
        a.e(f"ds_read_b32 v{TT+6}, v{TT+15} offset:8", "s_waitcnt lgkmcnt(0)", f"v_readfirstlane_b32 s{S_HD}, v{TT+6}", f"s_cmp_ge_u32 s{S_HD}, 8",
            f"s_cbranch_scc1 {d_}", f"s_sub_u32 s{S_SPIN}, s{S_SPIN}, 1", f"s_cmp_lg_u32 s{S_SPIN}, 0", f"s_cbranch_scc1 {t_}")
        a.label(d_)
    for i in range(3):
        if i < 2: c_pv(a, 15, i)
        for q in range(4):
            a.e(f"ds_write_b128 v{TT+11+i}, {vr(CO+16*i+4*q,4)} offset:{q*1024}")
    a.e(f"v_mov_b32 v{TT+6}, 1", "s_waitcnt lgkmcnt(0)", "s_mov_b64 exec, 1",
        f"ds_add_u32 v{TT+15}, v{TT+6}", "s_mov_b64 exec, -1", f"s_mov_b32 s{S_SPIN}, 0x100000")
    top, dn = uid("xs"), uid("xd")
    a.label(top)
    a.e(f"ds_read_b32 v{TT+6}, v{TT+15}", "s_waitcnt lgkmcnt(0)", f"v_readfirstlane_b32 s{S_T1}, v{TT+6}", f"s_cmp_ge_u32 s{S_T1}, 4",
        f"s_cbranch_scc1 {dn}", f"s_sub_u32 s{S_SPIN}, s{S_SPIN}, 1", f"s_cmp_lg_u32 s{S_SPIN}, 0", f"s_cbranch_scc1 {top}")
    a.label(dn)
    stamp(a, 11)
    for i in range(3):
        for q in range(4):
            a.e(f"ds_read_b128 {vr(CO+16*i+4*q,4)}, v{TT+14} offset:{i*4096+q*1024}")
    a.e("s_waitcnt lgkmcnt(8)")
    vadd(a, CO, CO, CO + 48, 16)
    a.e("s_waitcnt lgkmcnt(4)")
    vadd(a, CO, CO, CO + 16, 16)
    a.e("s_waitcnt lgkmcnt(0)")
    vadd(a, CO, CO, CO + 32, 16)
    def check():
        a.e(f"v_pk_mul_f32 {vr(TT+8,2)}, {vr(CO,2)}, 0 op_sel_hi:[1,0]", f"v_pk_mul_f32 {vr(TT+10,2)}, {vr(CO+2,2)}, 0 op_sel_hi:[1,0]")
        for i in range(2, 8):
            r = TT + 8 + 2 * (i % 2)
            a.e(f"v_pk_fma_f32 {vr(r,2)}, {vr(CO+2*i,2)}, 0, {vr(r,2)} op_sel_hi:[1,0,1]")
        a.e(f"v_cmp_nle_f32 vcc, {f2u(2.0**-30):#x}, v{TT+6}", f"v_cmp_nge_f32 s[4:5], s{SC_BIG}, v{TT+6}", f"v_pk_add_f32 {vr(TT+8,2)}, {vr(TT+8,2)}, {vr(TT+10,2)}",
            "s_or_b64 vcc, vcc, s[4:5]", f"v_cmp_u_f32 s[6:7], v{TT+8}, v{TT+9}", "s_or_b64 vcc, vcc, s[6:7]")
        if O.force_fb: a.e("s_mov_b64 vcc, -1")
        if not (O.poison or O.plite): a.e(f"s_cmp_lg_u32 s{SC_IT}, 0", "s_cselect_b64 vcc, 0, vcc")
        a.e("s_cbranch_vccnz L_fallback")
    a.e(f"v_mov_b32 v{TT+5}, v{CO+12}", f"v_mov_b32 v{TT+6}, v{CO+12}", f"s_mov_b32 s{SC_IT}, 0", f"v_permlane32_swap_b32 v{TT+5}, v{TT+6}")
    if O.poison or O.plite: check()
    a.label("L_fb_done")
    a.e(f"v_rcp_f32 v{TT+5}, v{TT+6}", f"v_mul_f32 v{TT+5}, v{TT+5}, v{C_G}")
    def fin(k):
        a.e(f"v_cvt_pk_bf16_f32 v{CP+k}, v{CO+16+2*k}, v{CO+17+2*k}")
        if O.poison or O.plite: a.e(f"v_min_u32 v{CP+k}, -2, v{CP+k}")
    for k in range(8):
        vscale(a, CO + 16 + 2 * k, CO + 2 * k, TT + 5, 2)
        if k: fin(k - 1)
        if k == 4:
            a.e(f"buffer_store_dwordx4 {vr(CP,4)}, v{V_SH}, {sr(S_WS,4)}, s{S_OST} offen {SC1}")
    fin(7)
    a.e("s_mov_b32 exec_lo, 0", f"v_mov_b32 v{CP+6}, 0", f"v_mov_b32 v{CP+7}, 0", "s_mov_b32 exec_lo, -1")
    a.e(f"buffer_store_dwordx4 {vr(CP+4,4)}, v{V_SH}, {sr(S_WS,4)}, s{S_OST} offen offset:1024 {SC1}")
    if not (O.poison or O.plite):
        check()
        a.e("s_waitcnt vmcnt(0)", "s_mov_b64 exec, 1")
        a.e(f"buffer_store_dwordx2 {vr(TT,2)}, v{V_ZERO}, {sr(S_WS,4)}, s{S_OFL} offen {SC1}")
    stamp(a, 12)
    if O.red8:
        sk = uid("r8")
        a.e("s_mov_b64 exec, -1", "s_setprio 0", "s_cmp_ge_u32 s2, 224", f"s_cbranch_scc1 {sk}")
        a.e("s_and_b32 s4, s2, 7", "s_lshr_b32 s5, s2, 3", "s_mul_i32 s6, s5, 37", "s_lshr_b32 s6, s6, 8", "s_mul_i32 s7, s6, 7", "s_sub_u32 s7, s5, s7",
            "s_lshl_b32 s4, s4, 2", "s_add_u32 s6, s6, s4")
        red_addr(a, TT, 6, 7)
        a.e("s_barrier")
        red_pass(a, TT, [0])
        a.label(sk)
    stamp_end(a)
    a.e("s_endpgm")
    fallback(a)
    a.label(spin)
    poll_spin(a, [C_PA, C_PB], V_PD)
    if O.early:
        first_loads(a)
        a.e(f"s_branch {go}")
    else:
        a.e(f"s_branch {go2}")

def red_addr(a, TT, rt, ct):
    a.e(f"v_and_b32 v{TT+4}, 255, v0", f"v_lshrrev_b32 v{TT}, 3, v{TT+4}", f"v_and_b32 v{TT+1}, 7, v0", f"v_mul_u32_u24 v{TT+5}, 272, v{TT}",
        f"v_lshl_add_u32 v{TT+5}, v{TT+1}, 5, v{TT+5}")
    a.e(f"v_mul_u32_u24 v{TT+3}, 896, v{TT}", f"v_lshl_add_u32 v{TT+3}, v{TT+1}, 4, v{TT+3}")
    a.e(f"s_mul_i32 s{S_T0}, s{rt}, {64*896}", f"s_lshl_b32 s{S_T1}, s{ct}, 7", f"s_add_u32 s{S_T0}, s{S_T0}, s{S_T1}",
        f"s_add_u32 s{S_T1}, s{S_T0}, {32*896}")
    a.e(f"v_add_u32 v{TT+6}, {2*L_DREG}, v{TT+5}")

def red_pass(a, TT, ps):
    for p in ps:
        for w in range(4):
            for q in range(2):
                a.e(f"ds_read_b128 {vr(DACC+32*p+8*w+4*q,4)}, v{TT+5+w//2} offset:{(w%2)*L_DREG + p*32*272 + q*16}")
    for p in ps:
        b = DACC + 32 * p
        left = 8 * (len(ps) - 1 - ps.index(p))
        a.e(f"s_waitcnt lgkmcnt({left + 4})")
        vadd(a, b, b, b + 8, 8)
        a.e(f"s_waitcnt lgkmcnt({left})")
        vadd(a, b + 16, b + 16, b + 24, 8)
        vadd(a, b, b, b + 16, 8)
        for k in range(4):
            a.e(f"v_cvt_pk_bf16_f32 v{b+8+k}, v{b+2*k}, v{b+2*k+1}")
        a.e(f"buffer_store_dwordx4 {vr(b+8,4)}, v{TT+3}, {sr(S_OUT,4)}, s{S_T0 if p == 0 else S_T1} offen {O.outf}")

def dphase(a):
    L, TT = V_LANE, D_T
    vm, lg = Vm(), Lg()
    RW, RB = O.rw, O.rb
    ts = epi_F(a, vm, S_LOB)
    fin = uid("dfin")
    a.e(f"s_cmp_ge_u32 s2, 224", f"s_cbranch_scc1 {fin}")
    a.e(f"s_and_b32 s{S_W}, s{S_W}, 3")
    a.e(f"s_mul_i32 s{SD_BB}, s{SD_RT}, {2*HO_TB}", f"s_mul_i32 s{S_T0}, s{S_W}, {28*1024}", f"s_add_u32 s{SD_BB}, s{SD_BB}, s{S_T0}",
        f"s_add_u32 s{SD_BB}, s{SD_BB}, {WS_HO}")
    NK = 36
    wt, bt = {}, {}
    pace = [O.d_pace >= 0]
    def wload(n):
        if n == 28:
            a.e(f"s_mul_i32 s{SD_W}, s{S_W}, {112*896}", f"s_lshl_b32 s{S_T0}, s{SD_CT}, 7", f"s_add_u32 s{SD_W}, s{SD_W}, s{S_T0}")
        elif n < 28 and n % 4 == 0:
            a.e(f"s_bfe_u32 s{SD_W}, s{SD_CP}, {(4 << 16) | n:#x}", f"s_mul_i32 s{SD_W}, s{SD_W}, {64*896}", f"s_add_u32 s{SD_W}, s{SD_W}, s{SD_WB}")
        row = 16 * (n % 4) if n < 28 else 28 * ((n - 28) // 2) + 16 * (n % 2)
        w = S_WD if n < 28 else S_WO
        slot = n % RW
        a.e(f"s_add_u32 m0, s{SD_LDS}, {slot*2048}", f"s_add_u32 s{S_T0}, s{SD_W}, {row*896}")
        a.e(f"buffer_load_dwordx4 v{D_VW}, {sr(w,4)}, s{S_T0} offen lds"); vm.issue()
        a.e(f"s_add_u32 m0, s{SD_LDS}, {slot*2048+1024}", f"s_add_u32 s{S_T0}, s{S_T0}, {8*896}")
        a.e(f"buffer_load_dwordx4 v{D_VW}, {sr(w,4)}, s{S_T0} offen lds"); wt[n] = vm.issue()
        if pace[0]: a.e(f"s_waitcnt vmcnt({O.d_pace})")
    def bload(n):
        if n == 28:
            a.e(f"s_mul_i32 s{SD_B0}, s{SD_RT}, {2*HO_TB}", f"s_mul_i32 s{S_T0}, s{S_W}, {8*1024}", f"s_add_u32 s{SD_B0}, s{SD_B0}, s{S_T0}",
                f"s_add_u32 s{SD_B0}, s{SD_B0}, {WS_HO + 112*1024}", f"s_add_u32 s{SD_B1}, s{SD_B0}, {HO_TB}")
        elif n == 32:
            a.e(f"s_add_u32 s{SD_B0}, s{SD_B0}, 4096", f"s_add_u32 s{SD_B1}, s{SD_B1}, 4096")
        elif n % 4 == 0:
            a.e(f"s_bfe_u32 s{SD_B0}, s{SD_CP}, {(4 << 16) | n:#x}", f"s_lshl_b32 s{SD_B0}, s{SD_B0}, 12", f"s_add_u32 s{SD_B0}, s{SD_B0}, s{SD_BB}",
                f"s_add_u32 s{SD_B1}, s{SD_B0}, {HO_TB}")
        slot = n % RB
        a.e(f"buffer_load_dwordx4 {vr(DB+8*slot,4)}, v{V_SH}, {sr(S_WS,4)}, s{SD_B0} offen offset:{(n%4)*1024} {SC1}"); vm.issue()
        a.e(f"buffer_load_dwordx4 {vr(DB+8*slot+4,4)}, v{V_SH}, {sr(S_WS,4)}, s{SD_B1} offen offset:{(n%4)*1024} {SC1}"); bt[n] = vm.issue()
        if pace[0]: a.e(f"s_waitcnt vmcnt({O.d_pace})")
    lt = {}
    def areads(n):
        vm.wait(a, wt[n])
        slot = n % RW
        for nb in range(2):
            for u in range(2):
                a.e(f"ds_read_b64_tr_b16 {vr(DA+8*(n%2)+4*nb+2*u,2)}, v{(D_TRN if O.f16 and n < 28 else D_TR)+nb} offset:{slot*2048+u*(512 if O.f16 and n < 28 else 1024)}"); lt[(n, nb)] = lg.issue()
    keep_pace = pace[0]; pace[0] = False
    for n in range(O.d_first):
        wload(n)
    pace[0] = keep_pace
    vm.wait(a, ts)
    publish(a, f"s{S_LFL}"); vm.issue()
    for n in range(O.wpre): wt[n] = ts
    for n in range(max(O.d_first, O.wpre), RW):
        wload(n)
    stamp(a, 8)
    poll_spin(a, [D_PH], V_PD)
    stamp(a, 9)
    a.e(f"buffer_load_dwordx2 {vr(V_PD,2)}, v{D_PO}, {sr(S_WS,4)}, s{S_T0} offen {SC1}"); vm.issue()
    if O.h_touch:
        a.e(f"v_lshrrev_b32 v{TT+3}, 4, v{L}", f"v_mul_u32_u24 v{TT+3}, 7168, v{TT+3}", f"v_bfe_u32 v{TT+4}, v{L}, 3, 1",
            f"v_mul_u32_u24 v{TT+4}, {HO_TB}, v{TT+4}", f"v_add_u32 v{TT+3}, v{TT+3}, v{TT+4}", f"v_and_b32 v{TT+4}, 7, v{L}",
            f"v_lshl_add_u32 v{TT+3}, v{TT+4}, 7, v{TT+3}", f"s_mul_i32 s{S_T0}, s{S_W}, 28", f"s_add_u32 s{S_T0}, s{S_T0}, s{SD_CT}",
            f"s_lshl_b32 s{S_T0}, s{S_T0}, 10", f"s_mul_i32 s{S_T1}, s{SD_RT}, {2*HO_TB}", f"s_add_u32 s{S_T0}, s{S_T0}, s{S_T1}",
            f"s_add_u32 s{S_T0}, s{S_T0}, {WS_HO}", f"buffer_load_dword v{TT+5}, v{TT+3}, {sr(S_WS,4)}, s{S_T0} offen {SC1}"); vm.issue()
    a.e(f"v_and_b32 v{TT+1}, 31, v{L}", f"v_lshlrev_b32 v{TT+2}, 2, v{TT+1}", f"s_lshl_b32 s{S_T0}, s{SD_RT}, 8", f"s_add_u32 s{S_T0}, s{S_T0}, {WS_G}")
    a.e(f"buffer_load_dword v{D_G}, v{TT+2}, {sr(S_WS,4)}, s{S_T0} offen {SC1}"); vm.issue()
    a.e(f"buffer_load_dword v{D_G+1}, v{TT+2}, {sr(S_WS,4)}, s{S_T0} offen offset:128 {SC1}"); vm.issue()
    for n in range(RB):
        bload(n)
    if O.wo_touch:
        a.e(f"s_and_b32 s4, s{SD_RT}, 3", "s_mul_i32 s4, s4, 28", f"s_mul_i32 s5, s{S_W}, 112", "s_add_u32 s4, s4, s5", f"v_min_u32 v{TT+3}, 27, v{L}",
            f"v_add_u32 v{TT+3}, s4, v{TT+3}", f"v_mul_u32_u24 v{TT+3}, 896, v{TT+3}", f"s_lshl_b32 s4, s{SD_CT}, 7",
            f"buffer_load_dword v{TT+4}, v{TT+3}, {sr(S_WO,4)}, s4 offen"); vm.issue()
    if O.poison or O.plite:
        poll_spin(a, [D_PO], V_PD)
    if O.plite:
        a.e(f"v_lshrrev_b32 v{TT+3}, 5, v{L}", f"v_mul_u32_u24 v{TT+3}, {HO_TB}, v{TT+3}", f"v_and_b32 v{D_PO}, 3, v{L}",
            f"v_lshl_add_u32 v{D_PO}, v{D_PO}, 11, v{TT+3}", f"v_add_u32 v{D_PO}, 2032, v{D_PO}")
    if O.poison or O.wo2:
        NK = 28
    def gowait():
        pace[0] = False
        if O.delay_d:
            top, dn = uid("dg"), uid("dg")
            a.e(f"v_mov_b32 v{TT+3}, s{S_CNT}", f"s_mov_b32 s{S_SPIN}, 0x40000")
            a.label(top)
            a.e(f"ds_read_b32 v{TT+4}, v{TT+3} offset:4", "s_waitcnt lgkmcnt(0)", f"v_readfirstlane_b32 s{S_T0}, v{TT+4}", f"s_cmp_lg_u32 s{S_T0}, 0",
                f"s_cbranch_scc1 {dn}", f"s_sleep {O.dsleep}", f"s_sub_u32 s{S_SPIN}, s{S_SPIN}, 1", f"s_cmp_lg_u32 s{S_SPIN}, 0", f"s_cbranch_scc1 {top}")
            a.label(dn)
            if O.prio_d: a.e(f"s_setprio {O.prio_d}")
            stamp(a, 15)
    DONE, RDY, SO = SD_CP, SD_WB, 4
    OBH = [DB + 96, DB + 112, DB, DB + 16]
    AW = DB + 32
    def oload(i):
        for s_ in range(2):
            for tb in range(2):
                a.e(f"buffer_load_dwordx4 {vr(OBH[i]+8*s_+4*tb,4)}, v{V_SH}, {sr(S_WS,4)}, s{SO + 2*(i//2) + tb} offen offset:{((2*i+s_)%4)*1024} {SC1}"); vm.issue()
    def ofirst():
        a.e(f"s_mul_i32 s{SO}, s{SD_RT}, {2*HO_TB}", f"s_mul_i32 s{S_T0}, s{S_W}, {8*1024}", f"s_add_u32 s{SO}, s{SO}, s{S_T0}",
            f"s_add_u32 s{SO}, s{SO}, {WS_HO + 112*1024}", f"s_add_u32 s{SO+1}, s{SO}, {HO_TB}",
            f"s_add_u32 s{SO+2}, s{SO}, 4096", f"s_add_u32 s{SO+3}, s{SO+1}, 4096")
        for i in range(4): oload(i)
    if O.d_pre == 0: gowait()
    areads(0)
    for n in range(NK):
        if n == O.d_pre and n > 0:
            gowait()
        if n == 28:
            stamp(a, 10)
            poll_spin(a, [D_PO], V_PD, sleep=O.o_sleep)
            stamp(a, 11)
            for k in range(28, NK):
                bload(k)
            a.e(f"v_sub_f32 v{D_G}, 1.0, v{D_G}", f"v_sub_f32 v{D_G+1}, 1.0, v{D_G+1}")
            for nb in range(2):
                for tb in range(2):
                    for i in range(16):
                        r = DACC + 32 * nb + 16 * tb + i
                        a.e(f"v_mul_f32 v{r}, v{r}, v{D_G+tb}")
        if O.bars == 4 and n % 4 == 0 and n < 28: stamp(a, 16 + n // 4)
        if n + 1 < NK:
            areads(n + 1)
        vm.wait(a, bt[n])
        slot = n % RB
        parts = []
        if O.d_il and n >= 1:
            sub = Asm(); keep = a.lines; a.lines = sub.lines
            if n - 1 + RW < 36: wload(n - 1 + RW)
            if n - 1 + RB < 28: bload(n - 1 + RB)
            a.lines = keep
            cur = []
            for l in sub.lines:
                cur.append(l)
                if "buffer_load" in l: parts.append(cur); cur = []
            if cur: parts[-1].extend(cur)
        for nb in range(2):
            lg.wait(a, lt[(n, nb)])
            for tb in range(2):
                acc = DACC + 32 * nb + 16 * tb
                a.e(f"{MFMA} {vr(acc,16)}, {vr(DA+8*(n%2)+4*nb,4)}, {vr(DB+8*slot+4*tb,4)}, {'0' if n == 0 else vr(acc,16)}")
                if parts: a.lines.extend(parts.pop(0))
        if not O.d_il:
            if n + RW < 36:
                wload(n + RW)
            if n + RB < 28:
                bload(n + RB)
        if O.poison and n == O.o_early: ofirst()
        if O.wo2 and n == O.o_pre:
            a.e(f"s_mov_b32 s{S_T0}, {WS_F}", f"buffer_load_dwordx2 {vr(V_PD,2)}, v{D_PO}, {sr(S_WS,4)}, s{S_T0} offen {SC1}"); vm.issue()
        if O.wo2 and n == O.o_poll:
            a.e(f"s_mov_b32 s{S_T0}, {WS_F}", f"buffer_load_dwordx2 {vr(V_PD,2)}, v{D_PO}, {sr(S_WS,4)}, s{S_T0} offen {SC1}"); optk = vm.issue()
        if O.wo2 and n == O.o_chk:
            sk = uid("oe")
            vm.wait(a, optk)
            a.e(f"s_mov_b32 s{DONE}, 0")
            poll_check(a, V_PD, sk)
            n0 = vm.n; ofirst(); vm.n = n0
            a.e(f"s_mov_b32 s{DONE}, 1")
            a.label(sk)
    if O.wo2:
        stamp(a, 10)
        lw = uid("ow")
        a.e(f"v_sub_f32 v{D_G}, 1.0, v{D_G}", f"v_sub_f32 v{D_G+1}, 1.0, v{D_G+1}")
        if O.o_poll < 28:
            a.e(f"s_cmp_eq_u32 s{DONE}, 0", f"s_cbranch_scc1 L_olate", "s_waitcnt vmcnt(16)")
            a.label("L_oback")
        else:
            def oloads():
                a.e(f"s_mul_i32 s{SO}, s{SD_RT}, {2*HO_TB}", f"s_mul_i32 s{S_T0}, s{S_W}, {8*1024}", f"s_add_u32 s{SO}, s{SO}, s{S_T0}",
                    f"s_add_u32 s{SO}, s{SO}, {WS_HO + 112*1024}", f"s_add_u32 s{SO+1}, s{SO}, {HO_TB}",
                    f"s_add_u32 s{SO+2}, s{SO}, 4096", f"s_add_u32 s{SO+3}, s{SO+1}, 4096")
                for tb in range(2):
                    for k in range(8):
                        a.e(f"buffer_load_dwordx4 {vr(OBH[k//2]+8*(k%2)+4*tb,4)}, v{V_SH}, {sr(S_WS,4)}, s{SO + 2*(k//4) + tb} offen offset:{(k%4)*1024} {SC1}")
            if O.o_pre < 28:
                a.e("s_waitcnt vmcnt(0)", f"s_mov_b32 s{DONE}, 0")
                poll_check(a, V_PD, "L_onot")
                oloads()
                a.e(f"s_mov_b32 s{DONE}, 1")
                a.label("L_onot")
            else:
                vm.wait(a, wt[35])
        for n in range(28, 36):
            for nb in range(2):
                for u in range(2):
                    a.e(f"ds_read_b64_tr_b16 {vr(AW+8*(n-28)+4*nb+2*u,2)}, v{D_TR+nb} offset:{(n%RW)*2048+u*1024}")
        for nb in range(2):
            for tb in range(2):
                vscale(a, DACC + 32 * nb + 16 * tb, DACC + 32 * nb + 16 * tb, D_G + tb, 16)
        a.e(f"v_lshrrev_b32 v{TT}, 5, v{L}", f"v_mul_u32_u24 v{TT+2}, 272, v{TT+1}", f"v_lshl_add_u32 v{TT+2}, v{TT}, 4, v{TT+2}",
            f"v_add_u32 v{TT+2}, s{SD_LDS}, v{TT+2}")
        if O.o_poll >= 28:
            if O.plite:
                a.e(f"s_mul_i32 s{SO}, s{SD_RT}, {2*HO_TB}", f"s_mul_i32 s{S_T0}, s{S_W}, {8*1024}", f"s_add_u32 s{SO}, s{SO}, s{S_T0}",
                    f"s_add_u32 s{SO}, s{SO}, {WS_HO + 112*1024}", f"s_add_u32 s{SO+1}, s{SO}, {HO_TB}",
                    f"s_add_u32 s{SO+2}, s{SO}, 4096", f"s_add_u32 s{SO+3}, s{SO+1}, 4096", f"s_mov_b32 s{S_SPIN}, 0x10000")
                a.label("L_probe")
                a.e(f"buffer_load_dword v{V_PD}, v{D_PO}, {sr(S_WS,4)}, s{SO} offen {SC1}", f"s_sub_u32 s{S_SPIN}, s{S_SPIN}, 1", f"s_cmp_eq_u32 s{S_SPIN}, 0",
                    "s_cbranch_scc1 L_probed", "s_waitcnt vmcnt(0)", f"v_cmp_eq_u32 vcc, -1, v{V_PD}", "s_and_b64 vcc, vcc, exec", "s_cbranch_vccnz L_probe")
                a.label("L_probed")
                stamp(a, 11)
                if O.stamp == 1:
                    a.e(f"s_mul_i32 s{SO}, s{SD_RT}, {2*HO_TB}", f"s_mul_i32 s{S_T0}, s{S_W}, {8*1024}", f"s_add_u32 s{SO}, s{SO}, s{S_T0}",
                        f"s_add_u32 s{SO}, s{SO}, {WS_HO + 112*1024}", f"s_add_u32 s{SO+1}, s{SO}, {HO_TB}",
                        f"s_add_u32 s{SO+2}, s{SO}, 4096", f"s_add_u32 s{SO+3}, s{SO+1}, 4096")
                def tbloads(tb):
                    for k in range(8):
                        a.e(f"buffer_load_dwordx4 {vr(OBH[k//2]+8*(k%2)+4*tb,4)}, v{V_SH}, {sr(S_WS,4)}, s{SO + 2*(k//4) + tb} offen offset:{(k%4)*1024} {SC1}")
                def vchk(tb, k):
                    b = OBH[k // 2] + 8 * (k % 2) + 4 * tb
                    r = TT + 6 + tb
                    return [f"v_max3_u32 v{r}, v{b}, v{b+1}, " + (f"v{r}" if k else f"v{b+2}"), f"v_max3_u32 v{r}, v{b+2}, v{b+3}, v{r}"]
                a.label("L_oa")
                tbloads(0); tbloads(1)
                for k in range(8):
                    a.e(f"s_waitcnt vmcnt({15 - k})", *vchk(0, k))
                a.e(f"v_cmp_eq_u32 vcc, -1, v{TT+6}", "s_waitcnt lgkmcnt(0)", "s_and_b64 vcc, vcc, exec", "s_cbranch_vccnz L_oa_retry")
                a.label("L_oa_ok")
            else:
                if O.o_pre < 28: a.e(f"s_cmp_lg_u32 s{DONE}, 0", "s_cbranch_scc1 L_ogot")
                poll_spin(a, [D_PO], V_PD, sleep=O.o_sleep)
                oloads()
                if O.o_pre < 28: a.label("L_ogot")
                stamp(a, 11)
                a.e("s_waitcnt lgkmcnt(0)")
        else:
            a.e("s_waitcnt vmcnt(0) lgkmcnt(0)")
            stamp(a, 11)
        def wr(q, g):
            nb, tb = q % 2, q // 2
            a.e(f"ds_write_b128 v{TT+2}, {vr(DACC+32*nb+16*tb+4*g,4)} offset:{tb*32*272 + nb*128 + g*32}")
        for q in range(4):
            nb, tb = q % 2, q // 2
            acc = DACC + 32 * nb + 16 * tb
            for k in range(8):
                if O.o_poll >= 28 and nb == 0 and not O.plite: a.e(f"s_waitcnt vmcnt({15 - 8 * tb - k})")
                if O.plite and q == 2 and k == 0:
                    a.e(f"v_cmp_eq_u32 vcc, -1, v{TT+7}", "s_nop 0", "s_and_b64 vcc, vcc, exec", "s_cbranch_vccnz L_ob_retry")
                    a.label("L_ob_ok")
                a.e(f"{MFMA} {vr(acc,16)}, {vr(AW+8*k+4*nb,4)}, {vr(OBH[k//2]+8*(k%2)+4*tb,4)}, {vr(acc,16)}")
                if O.plite and q == 0: a.e(f"s_waitcnt vmcnt({7 - k})", *vchk(1, k))
                if q and k >= 4:
                    if k == 4: a.e("s_nop 7")
                    wr(q - 1, k - 4)
                if O.red8 and q == 3 and k == 1: a.e("s_waitcnt lgkmcnt(0)", "s_barrier")
        for g in range(4): wr(3, g)
    if O.poison:
        a.e(f"v_sub_f32 v{D_G}, 1.0, v{D_G}", f"v_sub_f32 v{D_G+1}, 1.0, v{D_G+1}")
        vm.wait(a, wt[35])
        for n in range(28, 36):
            for nb in range(2):
                for u in range(2):
                    a.e(f"ds_read_b64_tr_b16 {vr(AW+8*(n-28)+4*nb+2*u,2)}, v{D_TR+nb} offset:{(n%RW)*2048+u*1024}")
        for nb in range(2):
            for tb in range(2):
                for i in range(16):
                    r = DACC + 32 * nb + 16 * tb + i
                    a.e(f"v_mul_f32 v{r}, v{r}, v{D_G+tb}")
        a.e("s_waitcnt lgkmcnt(0)")
        a.e(f"s_mov_b32 s{DONE}, 0", f"s_mov_b32 s{S_SPIN}, 0x10000")
        a.label("L_oround")
        a.e(f"s_mov_b32 s{RDY}, 0")
        for i in range(4):
            sk, bad = uid("oc"), uid("oc")
            a.e(f"s_bitcmp1_b32 s{DONE}, {i}", f"s_cbranch_scc1 {sk}")
            if i == 0: pass
            a.e(f"s_waitcnt vmcnt(0)" if i == 0 or True else "")
            b = OBH[i]
            a.e(f"v_max3_u32 v{TT}, v{b}, v{b+1}, v{b+2}", f"v_max3_u32 v{TT+4}, v{b+3}, v{b+4}, v{b+5}")
            for k in range(6, 14, 4):
                a.e(f"v_max3_u32 v{TT}, v{TT}, v{b+k}, v{b+k+1}", f"v_max3_u32 v{TT+4}, v{TT+4}, v{b+k+2}, v{b+k+3}")
            a.e(f"v_max3_u32 v{TT}, v{TT}, v{b+14}, v{b+15}", f"v_max_u32 v{TT}, v{TT}, v{TT+4}", f"v_cmp_eq_u32 vcc, -1, v{TT}", f"s_cbranch_vccnz {sk}",
                f"s_bitset1_b32 s{RDY}, {i}")
            a.label(sk)
        a.e(f"s_or_b32 s{DONE}, s{DONE}, s{RDY}")
        for i in range(4):
            sk = uid("or")
            a.e(f"s_bitcmp1_b32 s{DONE}, {i}", f"s_cbranch_scc1 {sk}")
            oload(i)
            a.label(sk)
        for i in range(4):
            sk = uid("om")
            a.e(f"s_bitcmp0_b32 s{RDY}, {i}", f"s_cbranch_scc1 {sk}")
            for s_ in range(2):
                for nb in range(2):
                    for tb in range(2):
                        acc = DACC + 32 * nb + 16 * tb
                        a.e(f"{MFMA} {vr(acc,16)}, {vr(AW+8*(2*i+s_)+4*nb,4)}, {vr(OBH[i]+8*s_+4*tb,4)}, {vr(acc,16)}")
            a.label(sk)
        a.e(f"s_cmp_eq_u32 s{DONE}, 15", "s_cbranch_scc1 L_odone", f"s_sub_u32 s{S_SPIN}, s{S_SPIN}, 1", f"s_cmp_lg_u32 s{S_SPIN}, 0", "s_cbranch_scc1 L_oround")
        a.label("L_odone")
        a.e("s_nop 7", "s_nop 7")
    stamp(a, 12)
    if not O.wo2:
        a.e(f"v_lshrrev_b32 v{TT}, 5, v{L}", f"v_mul_u32_u24 v{TT+2}, 272, v{TT+1}", f"v_lshl_add_u32 v{TT+2}, v{TT}, 4, v{TT+2}",
            f"v_add_u32 v{TT+2}, s{SD_LDS}, v{TT+2}")
        for nb in range(2):
            for tb in range(2):
                for g in range(4):
                    a.e(f"ds_write_b128 v{TT+2}, {vr(DACC+32*nb+16*tb+4*g,4)} offset:{tb*32*272 + nb*128 + g*32}")
    red_addr(a, TT, SD_RT, SD_CT)
    a.e("s_waitcnt lgkmcnt(0)", "s_barrier")
    red_pass(a, TT, [1] if O.red8 else [0, 1])
    if O.stamp: a.e(f"s_add_u32 s{S_W}, s{S_W}, 4")
    stamp_end(a)
    a.e("s_endpgm")
    if O.plite:
        a.label("L_oa_retry")
        a.e(f"s_sub_u32 s{S_SPIN}, s{S_SPIN}, 1", f"s_cmp_gt_i32 s{S_SPIN}, 0", "s_waitcnt vmcnt(0)", "s_cbranch_scc1 L_oa", "s_branch L_oa_ok")
        a.label("L_ob_retry")
        tbloads(1)
        a.e("s_waitcnt vmcnt(0)")
        for k in range(8): a.e(*vchk(1, k))
        a.e(f"v_cmp_eq_u32 vcc, -1, v{TT+7}", f"s_sub_u32 s{S_SPIN}, s{S_SPIN}, 1", "s_and_b64 vcc, vcc, exec", "s_cbranch_vccz L_ob_ok",
            f"s_cmp_gt_i32 s{S_SPIN}, 0", "s_cbranch_scc1 L_ob_retry", "s_branch L_ob_ok")
    if O.wo2 and O.o_poll < 28:
        a.label("L_olate")
        poll_spin(a, [D_PO], V_PD, sleep=O.o_sleep)
        ofirst()
        a.e("s_branch L_oback")
    a.label(fin)
    a.e("s_waitcnt vmcnt(0)")
    publish(a, f"s{S_LFL}")
    if not O.diag: stamp_end(a)
    a.e("s_endpgm")

def gen(a):
    K = NAME + "_kernel"
    a.label(K)
    a.e("s_cmp_ge_u32 s2, 256", "s_cbranch_scc1 L_exit")
    stamp_start(a)
    prologue(a)
    N = S_N
    a.e(f"s_cmp_eq_u32 s{S_J}, 12", "s_cbranch_scc1 L_B", f"s_cmp_eq_u32 s{S_J}, 14", "s_cbranch_scc1 L_C",
        f"s_cmp_gt_u32 s{S_J}, 12", "s_cbranch_scc1 L_D")
    def paramsA(a, gis):
        nf = 0
        for gi, k in enumerate(O.order_A):
            if gi in gis:
                if k == "QK": a.e(f"s_mov_b32 s{N}, s{S_J}")
                else: a.e(f"s_lshl_b32 s{N}, s{S_J}, 1", f"s_add_u32 s{N}, s{N}, {nf}")
                group_params(a, gi, k, N)
            if k == "F": nf += 1
    ab_program(a, O.order_A, paramsA)
    a.label("L_tail")
    if not O.sg and not O.wpre: a.e("s_waitcnt lgkmcnt(0)", "s_barrier")
    if O.wpre:
        a.e("v_mov_b32 v205, 1", "s_waitcnt lgkmcnt(0)", "s_mov_b64 exec, 1", "ds_add_u32 v204, v205 offset:8", "s_mov_b64 exec, -1")
    stamp(a, 7)
    a.e(f"s_cmp_ge_u32 s{S_W}, 4", "s_cbranch_scc1 L_dphase")
    if O.sg: a.e("s_waitcnt lgkmcnt(0)", "s_barrier")
    attention(a)
    a.label("L_dphase")
    a.e("s_nop 7", "s_nop 7")
    dphase(a)
    for lab, kinds in (("C", ["V", "V", "S", "F"]), ("D", ["V", "V", "S", "F"])):
        a.label(f"L_{lab}")
        def params(a, gis, kinds=kinds):
            for gi in gis:
                k = kinds[gi]
                if k == "V": a.e(f"s_lshl_b32 s{N}, s{S_J}, 1", f"s_sub_u32 s{N}, s{N}, {11 - gi}")
                if k == "F": a.e(f"s_add_u32 s{N}, s{S_J}, 12")
                group_params(a, gi, k, N)
        ab_program(a, kinds, params, solo="G" if lab == "C" else "H")
        a.e("s_branch L_tail")
    a.label("L_B")
    kb, nb = ["QK", "QK", "F"], [12, 13, 24]
    def paramsB(a, gis):
        for gi in gis:
            a.e(f"s_mov_b32 s{N}, {nb[gi]}"); group_params(a, gi, kb[gi], N)
    ab_program(a, kb, paramsB)
    a.e("s_branch L_tail")
    a.label("L_exit")
    a.e("s_endpgm")
    a.label("L_code_end")

DOC = """;
; One persistent launch, 256 workgroups x 8 waves (one workgroup per CU), three phases chained by tagged flags in d_ws:
;  GEMM phase : x rows stationary in registers; wqkv / W_gate / W_up streamed HBM -> LDS (LDS-DMA) and read with
"""

def main(out):
    head = open("cdna_kernels/" + NAME + ".s.ref").read().split("; Override launch")[0]
    K = NAME + "_kernel"
    txt = head + "; @launch grid=(256,1,1) block=(512,1,1) lds=163840\n" + DOC
    txt += '.amdgcn_target "amdgcn-amd-amdhsa--gfx950"\n.text\n'
    a = Asm()
    gen(a)
    if O.dmaf or O.dmad:
        k0 = a.lines.index("L_dphase:"); k1 = a.lines.index("L_C:")
        for i_, l_ in enumerate(a.lines):
            if l_.endswith(" offen lds"):
                f_ = O.dmad if k0 < i_ < k1 else O.dmaf
                if f_: a.lines[i_] = l_[:-4] + f" {f_} lds"
    lines = fix_hazards(a.lines)
    for l_ in ("L_c_loop", "L_fb1", "L_fb2"): check_loop(lines, l_)
    txt += f".globl {K}\n.p2align 8\n.type {K},@function\n" + "\n".join(lines) + "\n"
    txt += f""".section .rodata,"a"
.p2align 6
.amdhsa_kernel {K}
  .amdhsa_next_free_vgpr 256
  .amdhsa_next_free_sgpr 102
  .amdhsa_accum_offset 256
  .amdhsa_group_segment_fixed_size 0
  .amdhsa_kernarg_size 88
  .amdhsa_user_sgpr_count 2
  .amdhsa_user_sgpr_kernarg_segment_ptr 1
  .amdhsa_system_sgpr_workgroup_id_x 1
.end_amdhsa_kernel
"""
    open(out, "w").write(txt)

if __name__ == "__main__":
    args = sys.argv[1:]
    out = "cdna_kernels/" + NAME + ".s"
    for x in args:
        if "=" in x:
            k, v = x.split("=", 1)
            setattr(O, k, eval(v))
        else:
            out = x
    set_rw(); set_pd()
    main(out)
```
